```python
import torch

def _softmax(x, axis=-1):
    return torch.softmax(x, dim=axis)
def _gelu(x):
    return torch.nn.functional.gelu(x, approximate="tanh")
def _silu(x):
    return torch.nn.functional.silu(x)
def _sigmoid(x):
    return torch.sigmoid(x)
def _layernorm(x, axis=-1, eps=1e-5):
    m = x.mean(dim=axis, keepdim=True)
    v = x.var(dim=axis, keepdim=True, unbiased=False)
    return (x - m) / torch.sqrt(v + eps)
def _scatter_add(tgt, idx, src, axis=0):
    return tgt.clone().index_add_(axis, idx, src)
def _segment_sum(src, seg, n):
    out = torch.zeros((n,) + src.shape[1:], dtype=src.dtype)
    return out.index_add_(0, seg, src)
def _pad(x, pw):
    flat = tuple(v for pair in reversed(pw) for v in pair)
    return torch.nn.functional.pad(x, flat)

kernel_name = 'concat_heads__ssm_conv_s4__linear_attn_block__prompt'

def setup_inputs():

    _w = (lambda a: (lambda t: t.to(torch.bfloat16) if t.is_floating_point() else t)(torch.as_tensor(a)))
    def _A_setup():
        B, L, D, N = 1, 2048, 576, 128
        A_re = -(lambda _x: torch.exp(torch.as_tensor(_x)))((lambda *s: torch.randn(*s, dtype=torch.bfloat16) * 6.4)(D, N))
        A_im = torch.pi * (lambda *s: torch.randn(*s, dtype=torch.bfloat16) * 0.05)(D, N)
        B_re = (lambda *s: torch.randn(*s, dtype=torch.bfloat16) * 0.1)(D, N)
        B_im = (lambda *s: torch.randn(*s, dtype=torch.bfloat16) * 0.1)(D, N)
        C_re = (lambda *s: torch.randn(*s, dtype=torch.bfloat16) * 0.1)(D, N)
        C_im = (lambda *s: torch.randn(*s, dtype=torch.bfloat16) * 0.1)(D, N)
        log_dt = (lambda *s: torch.randn(*s, dtype=torch.bfloat16) * 0.05)(D) * 0.5 - 4.0
        Dskip = (lambda *s: torch.randn(*s, dtype=torch.bfloat16) * 0.05)(D)
        return {
            "u": _w((lambda *s: torch.randn(*s, dtype=torch.bfloat16) * 0.05)(B, L, D)),
            "A_re": _w(A_re),
            "A_im": _w(A_im),
            "B_re": _w(B_re),
            "B_im": _w(B_im),
            "C_re": _w(C_re),
            "C_im": _w(C_im),
            "log_dt": _w(log_dt),
            "Dskip": _w(Dskip),
        }
    _A_in = _A_setup()

    def _B_setup():
        B, S, D = 1, 2048, 576
        return {
            "x": _w((lambda *s: torch.randn(*s, dtype=torch.bfloat16) * 0.05)(B, S, D)),
            "wqkv": _w((lambda *s: torch.randn(*s, dtype=torch.bfloat16) * 0.4)(D, 3 * D)),
            "wo": _w((lambda *s: torch.randn(*s, dtype=torch.bfloat16) * 0.05)(D, D)),
        }
    _B_in = _B_setup()

    return {
        "A_u": _A_in["u"],
        "A_A_re": _A_in["A_re"],
        "A_A_im": _A_in["A_im"],
        "A_B_re": _A_in["B_re"],
        "A_B_im": _A_in["B_im"],
        "A_C_re": _A_in["C_re"],
        "A_C_im": _A_in["C_im"],
        "A_log_dt": _A_in["log_dt"],
        "A_Dskip": _A_in["Dskip"],
        "B_x": _B_in["x"],
        "B_wqkv": _B_in["wqkv"],
        "B_wo": _B_in["wo"],
    }

def reference(A_u, A_A_re, A_A_im, A_B_re, A_B_im, A_C_re, A_C_im, A_log_dt, A_Dskip, B_x, B_wqkv, B_wo):
    def _A_ref(u, A_re, A_im, B_re, B_im, C_re, C_im, log_dt, Dskip):
        Bsz, L, D = u.shape
        dt = torch.exp(log_dt)[:, None]
        A = A_re + 1j * A_im
        Bc = B_re + 1j * B_im
        Cc = C_re + 1j * C_im
        logdA = dt * A
        dB = dt * Bc
        l = (lambda x, dt: x.to(dt))(torch.arange(L), A_re.dtype)
        P = torch.exp(logdA[:, :, None] * l[None, None, :])
        K = torch.einsum("dn,dnl,dn->dl", Cc, P, dB).real
        L2 = 2 * L
        Kp = _pad(K, ((0, 0), (0, L)))
        up = (lambda x, *d: x.permute(*d))(u, 0, 2, 1)
        up = _pad(up, ((0, 0), (0, 0), (0, L)))
        Kf = (lambda x, axes=(-2,-1): torch.fft.rfft2(x.float(), dim=axes))(Kp[:, None, :], axes=(-2, -1))
        Uf = (lambda x, axes=(-2,-1): torch.fft.rfft2(x.float(), dim=axes))(up[:, :, None, :], axes=(-2, -1))
        Yf = Uf * Kf[None, :, :, :]
        y = (lambda x, s, axes=(-2,-1): torch.fft.irfft2(x, s=s, dim=axes).to(torch.bfloat16))(Yf, (1, L2), axes=(-2, -1))[:, :, 0, :L]
        y = (lambda x, *d: x.permute(*d))(y, 0, 2, 1) + u * Dskip[None, None, :]
        return y

    def _B_ref(x, wqkv, wo):
        B, S, D = x.shape
        H = 32; Dh = D // H
        qkv = (lambda x, *d: x.permute(*d))((x @ wqkv).reshape(B, S, 3, H, Dh), 2, 0, 3, 1, 4)
        q, k, v = qkv[0], qkv[1], qkv[2]
        phi = lambda t: torch.where(t > 0, t + 1, torch.exp(t)) + 1e-6
        pq, pk = phi(q), phi(k)
        kv = torch.einsum("bhsd,bhse->bhde", pk, v)
        z = torch.einsum("bhsd->bhd", pk)
        num = torch.einsum("bhqd,bhde->bhqe", pq, kv)
        den = torch.einsum("bhqd,bhd->bhq", pq, z)[..., None] + 1e-6
        o = num / den
        return (lambda x, *d: x.permute(*d))(o, 0, 2, 1, 3).reshape(B, S, D) @ wo

    a = _A_ref(A_u, A_A_re, A_A_im, A_B_re, A_B_im, A_C_re, A_C_im, A_log_dt, A_Dskip)
    b = _B_ref(B_x, B_wqkv, B_wo)
    return torch.concatenate([a, b], axis=-1)
```

```python
import re

TRANS = ("v_exp_f32", "v_log_f32", "v_rcp_f32", "v_rsq_f32", "v_sqrt_f32", "v_sin_f32", "v_cos_f32", "v_rcp_iflag_f32")


def regs_of(tok):
    tok = tok.strip()
    tok = tok.lstrip("-").replace("abs(", "").replace("|", "").rstrip(")")
    m = re.fullmatch(r"([vas])\[(\d+):(\d+)\]", tok)
    if m:
        return [(m.group(1), i) for i in range(int(m.group(2)), int(m.group(3)) + 1)]
    m = re.fullmatch(r"([vas])(\d+)", tok)
    if m:
        return [(m.group(1), int(m.group(2)))]
    if tok in ("vcc", "vcc_lo", "vcc_hi"):
        return [("s", "vcc")]
    if tok in ("exec", "exec_lo", "exec_hi"):
        return [("s", "exec")]
    if tok == "m0":
        return [("s", "m0")]
    return []


class I:
    __slots__ = ("text", "op", "dst", "src", "kind", "tag", "mfma_c", "passes", "ab", "after", "wide_store", "lds_dma")

    def __init__(self, text, tag=None, after=None):
        self.text = text
        self.tag = tag
        self.after = after or []
        t = text.split(";")[0].strip()
        parts = t.split(None, 1)
        self.op = parts[0] if parts else ""
        ops = []
        if len(parts) > 1:
            ops = [x.strip() for x in re.split(r",(?![^\[]*\])", parts[1])]
            if ops:
                ops[-1] = ops[-1].split()[0] if ops[-1].split() else ""
        mods = t
        op = self.op
        self.dst, self.src = [], []
        self.mfma_c, self.ab, self.passes = [], [], 0
        self.wide_store = False
        self.lds_dma = False
        R = regs_of
        if op.endswith(":") or op.startswith("."):
            self.kind = "label"
        elif op.startswith("v_mfma"):
            self.kind = "mfma"
            self.dst = R(ops[0]); self.ab = R(ops[1]) + R(ops[2]); self.mfma_c = R(ops[3])
            self.src = self.ab + self.mfma_c
            self.passes = 8 if "32x32" in op else 4
        elif op.startswith("buffer_") or op.startswith("global_"):
            self.kind = "vmem"
            if op.startswith("buffer_wbl2") or op.startswith("buffer_inv"):
                pass
            elif re.search(r"\blds\b", mods):
                self.lds_dma = True
                self.src = sum((R(o) for o in ops), []) + [("s", "m0")]
            elif "_load_" in op:
                self.dst = R(ops[0]); self.src = sum((R(o) for o in ops[1:]), [])
            elif "_atomic_" in op:
                self.src = sum((R(o) for o in ops), [])
                if re.search(r"\bsc0\b", mods):
                    self.dst = R(ops[0])
            else:
                self.src = sum((R(o) for o in ops), [])
                if "x4" in op or "x3" in op:
                    self.wide_store = True
        elif op.startswith("ds_"):
            self.kind = "ds"
            if op.startswith("ds_read") or op.startswith("ds_bpermute") or op.startswith("ds_swizzle"):
                self.dst = R(ops[0]); self.src = sum((R(o) for o in ops[1:]), [])
            else:
                self.src = sum((R(o) for o in ops), [])
        elif op.startswith("s_load") or op.startswith("s_memtime") or op.startswith("s_memrealtime"):
            self.kind = "smem"
            self.dst = R(ops[0]); self.src = sum((R(o) for o in ops[1:]), [])
        elif op.startswith("v_"):
            self.kind = "valu"
            if op.startswith("v_permlane"):
                self.dst = R(ops[0]) + R(ops[1]); self.src = list(self.dst)
            elif op.startswith("v_add_co") or op.startswith("v_addc_co") or op.startswith("v_sub_co"):
                self.dst = R(ops[0]) + R(ops[1]); self.src = sum((R(o) for o in ops[2:]), [])
            else:
                self.dst = R(ops[0]); self.src = sum((R(o) for o in ops[1:]), [])
                if op.startswith("v_fmac") or op.startswith("v_writelane"):
                    self.src += self.dst
        elif op.startswith("s_"):
            self.kind = "salu"
            if op in ("s_waitcnt", "s_barrier", "s_nop", "s_endpgm", "s_setprio", "s_branch", "s_sleep") or op.startswith("s_cbranch"):
                if op in ("s_cbranch_vccz", "s_cbranch_vccnz"):
                    self.src = [("s", "vcc")]
                if op in ("s_cbranch_execz", "s_cbranch_execnz"):
                    self.src = [("s", "exec")]
            elif op.startswith("s_cmp") or op.startswith("s_bitcmp"):
                self.src = sum((R(o) for o in ops), [])
            else:
                self.dst = R(ops[0]); self.src = sum((R(o) for o in ops[1:]), [])
                if "saveexec" in op:
                    self.dst += [("s", "exec")]
        else:
            self.kind = "other"

    def states(self):
        if self.kind == "label":
            return 0
        if self.op == "s_nop":
            return int(self.text.split()[1]) + 1
        return 1


class Asm:
    def __init__(self):
        self.ins = []

    def __call__(self, text, tag=None, after=None):
        for line in text.split("\n"):
            line = line.strip()
            if line:
                self.ins.append(I(line, tag=tag, after=after))
                after = None
        return self

    def ext(self, lst):
        self.ins.extend(lst.ins if isinstance(lst, Asm) else lst)

    def wait(self, *tags):
        i = I("; wait", after=list(tags))
        i.kind = "label"
        self.ins.append(i)

    def drain(self):
        self("s_waitcnt vmcnt(0) lgkmcnt(0)")


def interleave(main, fill, per=1, start=0, pred=lambda i: i.kind == "mfma"):
    main = main.ins if isinstance(main, Asm) else main
    fill = list(fill.ins if isinstance(fill, Asm) else fill)
    out, n, acc = [], 0, 0.0
    for i in main:
        out.append(i)
        if pred(i):
            n += 1
            if n > start:
                acc += per
                while acc >= 1 and fill:
                    out.append(fill.pop(0))
                    acc -= 1
    out.extend(fill)
    return out


def insert_waits(ins):
    out = []
    vm, lg = [], []

    def need(queue, regs, tags):
        last = -1
        for k, (d, tg, _) in enumerate(queue):
            if (d & regs) or (tg is not None and tg in tags):
                last = k
        return last

    for i in ins:
        if i.op == "s_waitcnt":
            m = re.search(r"vmcnt\((\d+)\)", i.text)
            if m:
                n = int(m.group(1)); vm[:] = vm[len(vm) - n:] if n < len(vm) and n > 0 else ([] if n == 0 else vm)
            m = re.search(r"lgkmcnt\((\d+)\)", i.text)
            if m:
                n = int(m.group(1)); lg[:] = lg[len(lg) - n:] if n < len(lg) and n > 0 else ([] if n == 0 else lg)
            out.append(i)
            continue
        regs = set(i.src) | set(i.dst)
        tags = set(i.after)
        w = []
        k = need(vm, regs, tags)
        if k >= 0:
            n = len(vm) - 1 - k
            n = min(n, 63)
            w.append(f"vmcnt({n})")
            vm[:] = vm[len(vm) - n:] if n > 0 else []
        k = need(lg, regs, tags)
        if k >= 0:
            n = len(lg) - 1 - k
            if any(e[2] for e in lg):
                n = 0
            n = min(n, 15)
            w.append(f"lgkmcnt({n})")
            lg[:] = lg[len(lg) - n:] if n > 0 else []
        if w:
            out.append(I("s_waitcnt " + " ".join(w)))
        out.append(i)
        if i.kind == "vmem":
            vm.append((set(i.dst), i.tag, False))
            assert len(vm) <= 63, "more than 63 vector-memory operations outstanding: " + i.text
        elif i.kind == "ds":
            lg.append((set(i.dst), i.tag, False))
        elif i.kind == "smem":
            lg.append((set(i.dst), i.tag, True))
    return out


def base_op(op):
    return re.sub(r"_e(32|64)$", "", op)


def hazard_need(p, c):
    n = 0
    pd, cs, cd = set(p.dst), set(c.src), set(c.dst)
    vec = lambda s: {r for r in s if r[0] in "va"}
    sca = lambda s: {r for r in s if r[0] == "s"}
    if p.kind == "valu":
        if c.kind == "mfma" and vec(pd) & cs:
            n = max(n, 2)
        if base_op(p.op) in TRANS and c.kind == "valu" and vec(pd) & cs and base_op(c.op) not in TRANS:
            n = max(n, 1)
        if base_op(p.op) in TRANS and c.kind in ("ds", "vmem") and vec(pd) & cs:
            n = max(n, 1)
        if sca(pd):
            if c.kind == "valu" and sca(pd) & cs:
                n = max(n, 4 if c.op.startswith(("v_readlane", "v_writelane")) else 2)
            if c.kind == "vmem" and sca(pd) & cs:
                n = max(n, 5)
            if c.kind == "salu" and sca(pd) & cs:
                n = max(n, 1)
        if c.kind == "valu" and vec(pd) & cs:
            if c.op.startswith(("v_readlane", "v_readfirstlane")):
                n = max(n, 1)
            if c.op.startswith("v_permlane") or "row_" in c.text or "quad_perm" in c.text:
                n = max(n, 2)
    if p.kind == "mfma":
        far = p.passes + 4
        if c.kind == "mfma":
            if pd & set(c.ab):
                n = max(n, far)
            if pd & set(c.mfma_c):
                same = (p.dst == c.mfma_c and p.passes == c.passes)
                n = max(n, 0 if same else p.passes + 2)
            elif pd & cd:
                n = max(n, p.passes + 2)
        elif c.kind in ("valu", "vmem", "ds"):
            if pd & (cs | cd):
                n = max(n, far)
            if c.kind == "valu" and set(p.mfma_c) & cd:
                n = max(n, p.passes - 1)
    if p.kind == "vmem" and p.wide_store:
        if vec(set(p.src)) & cd:
            n = max(n, 2)
    if p.kind == "salu" and ("s", "m0") in pd and ((c.kind == "vmem" and c.lds_dma) or "addtid" in c.op):
        n = max(n, 1)
    return n


def insert_nops(ins):
    out = []
    for c in ins:
        if c.kind != "label":
            dist, need = 0, 0
            for p in reversed(out):
                if dist > 14:
                    break
                if p.kind != "label":
                    h = hazard_need(p, c)
                    if h > dist:
                        need = max(need, h - dist)
                dist += p.states()
            if need:
                out.append(I(f"s_nop {need - 1}"))
        out.append(c)
    return out


def finish(asm):
    ins = asm.ins if isinstance(asm, Asm) else asm
    ins = insert_waits(ins)
    ins = insert_nops(ins)
    return ins


def text_of(ins):
    return "\n".join(i.text for i in ins if not i.text.startswith("; wait"))


def V(n, cnt=1):
    return f"v{n}" if cnt == 1 else f"v[{n}:{n + cnt - 1}]"


def A(n, cnt=1):
    return f"a{n}" if cnt == 1 else f"a[{n}:{n + cnt - 1}]"


def S(n, cnt=1):
    return f"s{n}" if cnt == 1 else f"s[{n}:{n + cnt - 1}]"
```

```python
from asmlib import *
from gen_common import *
import numpy as np

SU = 4640
UT = 0
U0 = 8 * SU
SY = 4160
YT = U0
KG = U0 + 8 * SY
KGW = 32 * 528
KA0 = KG + 4 * KGW
KASZ = 3584
A_LDS_END = KA0 + 4 * KASZ
KE, KO, K2, K3 = 0, 1120, 2240, 2752
XC = list(range(9)) + [256, 258, 260, 262, 264, 516, 520, 772, 776, 1032, 1288, 1544, 1800]


def table_a():
    T = np.zeros((6, 64, 4), np.uint32)
    one = 0x3F80
    for l in range(64):
        r, g = l % 16, l // 16
        for bi, (ctr, w) in enumerate([(8, 2), (12, 1), (8, 4), (8, 3)]):
            for dw in range(4):
                v = 0
                for hf in range(2):
                    k = 8 * g + 2 * dw + hf
                    if abs(k - (r + ctr)) <= w:
                        v |= one << (16 * hf)
                T[bi, l, dw] = v
        for dw in range(4):
            v = 0
            for hf in range(2):
                if 8 * g + 2 * dw + hf - r in (12, 13):
                    v |= 0xFFFF << (16 * hf)
            T[4, l, dw] = v
        io, hh = l % 32, l // 32
        rho, h = 4 * (io // 8) + io % 4, (io // 4) % 2
        if rho < 5:
            c = 4 * h + rho
        elif rho < 8:
            c = 256 + 4 * h + 2 * (rho - 5)
        elif rho < 12:
            c = [(516, 772), (520, 776), (1032, 1544), (1288, 1800)][rho - 8][h]
        else:
            c = 0
        T[5, l, 0] = XC.index(c) * 528 + 16 * hh
    return T


vLANE = 1
vP = 2
vTAB5 = 14
vMASK = 18
vKGW, vKGB, vKGA = 22, 23, 24
vT0, vT1, vT2, vT3 = 25, 26, 27, 28
vKW, vK2W, vK3W = 29, 30, 31
vW = 32
vD = 96
vKFA, vKFB, vHK2, vHK3, vUF, vA2, vA3, vYW = 112, 113, 114, 115, 116, 117, 118, 119
vACC = 120
vBXD = 152
vBX = 168
vKFX = 184
vEP = 188
vZ = 192
vDMA, vTR0, vTR1, vTW, vOR, vOS = 196, 197, 198, 199, 200, 201
vTB = 204
vKA = 236
aBAND = 0
aY = 16
aX = 80
aKF = 16
aHK2 = 84
aHK3 = 108
aUF = 144
aAP = 168
sW, sAG, sIDX, sJJ = 68, 69, 70, 71
sLDT, sDSK = 72, 73
sT0, sT1, sT2 = 74, 75, 76
sCON = 78
sEX = 80


def cmul(a, z, x, y, t, conj=False):
    n = "neg_hi:[1,0,0]" if conj else "neg_lo:[1,0,0]"
    return [f"v_pk_mul_f32 {V(t,2)}, {V(x,2)}, {V(y,2)} op_sel_hi:[1,0]",
            f"v_pk_fma_f32 {V(z,2)}, {V(x,2)}, {V(y,2)}, {V(t,2)} op_sel:[1,1,0] op_sel_hi:[0,1,1] {n}"]


def kgen(a, ch, prof, mid=None):
    base = [vW, vW + 30]
    AB, E1, E8, G, X, T, S0, S1, U = 0, 2, 4, 6, 8, 10, 12, 14, 16
    CC, BB = 18, 20
    PK = vW + 60
    p = vP + 6 * ch
    if ch == 0:
        a(f"s_lshl_b32 s{sT0}, s{sLDT}, 16\ns_lshl_b32 s{sT1}, s{sDSK}, 16")
    else:
        a(f"s_and_b32 s{sT0}, s{sLDT}, 0xffff0000\ns_and_b32 s{sT1}, s{sDSK}, 0xffff0000")
    a(f"v_mov_b32 v{vT0}, s{sT0}\nv_mul_f32 v{vT0}, 0x3fb8aa3b, v{vT0}\nv_exp_f32 v{vT0}, v{vT0}")
    a(f"v_cvt_pk_bf16_f32 v{vT0}, v{vT0}, v{vT0}\nv_lshlrev_b32 v{vT1}, 16, v{vT0}")
    assert vT1 % 2 == 0
    for n in range(2):
        b = base[n]
        un = (lambda d, s: f"v_lshlrev_b32 v{d}, 16, v{s}") if n == 0 else (lambda d, s: f"v_and_b32 v{d}, 0xffff0000, v{s}")
        a(un(b + AB, p + 0)); a(un(b + AB + 1, p + 1))
        a(un(b + BB, p + 2)); a(un(b + BB + 1, p + 3))
        a(un(b + CC, p + 4)); a(un(b + CC + 1, p + 5))
    for n in range(2):
        b = base[n]
        a(f"v_pk_mul_f32 {V(b+AB,2)}, {V(b+AB,2)}, {V(vT1,2)} op_sel_hi:[1,0]")
        a(f"v_pk_mul_f32 {V(b+BB,2)}, {V(b+BB,2)}, {V(vT1,2)} op_sel_hi:[1,0]")
    for n in range(2):
        b = base[n]
        a(f"v_pk_mul_f32 {V(b+AB,2)}, {V(b+AB,2)}, {S(sCON,2)}")
    W = [cmul(a, base[n] + X, base[n] + CC, base[n] + BB, base[n] + T) for n in range(2)]
    a(W[0][0]); a(W[1][0]); a(W[0][1]); a(W[1][1])

    def cexp(dst, mul):
        for n in range(2):
            b = base[n]
            if mul == 1:
                a(f"v_exp_f32 v{b+U}, v{b+AB}\nv_fract_f32 v{b+T}, v{b+AB+1}")
            else:
                a(f"v_mul_f32 v{b+U}, {mul}, v{b+AB}\nv_mul_f32 v{b+T}, {mul}, v{b+AB+1}")
                a(f"v_exp_f32 v{b+U}, v{b+U}\nv_fract_f32 v{b+T}, v{b+T}")
        for n in range(2):
            b = base[n]
            a(f"v_cos_f32 v{b+dst}, v{b+T}\nv_sin_f32 v{b+dst+1}, v{b+T}")
        for n in range(2):
            b = base[n]
            a(f"v_pk_mul_f32 {V(b+dst,2)}, {V(b+dst,2)}, {V(b+U,2)} op_sel_hi:[1,0]")
    cexp(E8, "0x41000000")
    cnt = [0]

    def put(reg, row):
        pk = PK + 2 * (cnt[0] & 1); cnt[0] += 1
        a(f"v_cvt_pk_bf16_f32 v{pk}, v{base[0]+reg}, v{base[0]+reg+1}")
        a(f"v_cvt_pk_bf16_f32 v{pk+1}, v{base[1]+reg}, v{base[1]+reg+1}")
        a(f"ds_write_b64 v{vKGW}, {V(pk,2)} offset:{row*528}")

    def mul2(z, x, y, conj):
        m = [cmul(a, base[n] + z, base[n] + x, base[n] + y, base[n] + T, conj) for n in range(2)]
        a(m[0][0]); a(m[1][0]); a(m[0][1]); a(m[1][1])
    prof(a, 10 + 5 * ch)
    a(f"v_mov_b32 v{PK}, 0x3f80\nv_mov_b32 v{PK+1}, 0x3f80\nds_write_b64 v{vKGW}, {V(PK,2)}")
    cnt[0] = 1
    put(E8, 1)
    mul2(S0, E8, E8, False); put(S0, 2)
    for j in range(3, 32):
        mul2(S0, S0, E8, False); put(S0, j)
        if j == 16 and mid is not None:
            mid(a)
    prof(a, 11 + 5 * ch)
    for k in range(16):
        a(f"ds_read_b128 {A(aY+4*k,4)}, v{vKGB} offset:{32*k}")
        if k == 3:
            cexp(E1, 1)
        if k == 9:
            cexp(G, "0x43800000")
    prof(a, 12 + 5 * ch)
    for n in range(2):
        a(f"v_xor_b32 v{base[n]+X+1}, 0x80000000, v{base[n]+X+1}")
    for c in range(9):
        if c:
            mul2(X, X, E1, True)
        put(X, c)
        if c % 2 == 0:
            d = S0 if c == 4 else (S1 if c == 8 else U)
            mul2(d, X, G, True); put(d, XC.index(256 + c))
    for c in (516, 772):
        mul2(S0, S0, G, True); put(S0, XC.index(c))
        mul2(S1, S1, G, True); put(S1, XC.index(c + 4))
    for c in (1032, 1288, 1544, 1800):
        mul2(S1, S1, G, True); put(S1, XC.index(c))
    prof(a, 13 + 5 * ch)
    for k in range(16):
        a(f"ds_read_b128 {A(aX+4*k,4)}, v{vKGA} offset:{32*k}")
    if ch == 0:
        a(f"s_mul_i32 s{sT2}, s{sW}, {KASZ}\ns_add_u32 s{sT2}, s{sT2}, {KA0}")
    else:
        a(f"s_mul_i32 s{sT2}, s{sW}, {KGW}\ns_add_u32 s{sT2}, s{sT2}, {KG}")
    a(f"v_lshl_add_u32 v{vT0}, v{vLANE}, 4, s{sT2}")
    a(f"v_add_u32 v{vT1}, s{sT2}, v{vKW}\nv_add_u32 v{vT2}, s{sT2}, v{vK2W}\nv_add_u32 v{vT3}, s{sT2}, v{vK3W}")
    for k in range(16):
        a(f"v_mfma_f32_32x32x16_bf16 {V(vD,16)}, {A(aX+4*k,4)}, {A(aY+4*k,4)}, {'0' if k == 0 else V(vD,16)}")
        if k in (12, 13, 14):
            a(f"ds_write_b128 v{vT0}, {V(vZ,4)} offset:{(k-12)*1024}")
    prof(a, 14 + 5 * ch)
    a(f"s_mov_b32 exec_hi, 0\nds_write_b128 v{vT0}, {V(vZ,4)} offset:3072\ns_mov_b64 exec, 1")
    a(f"v_add_f32 v{vD}, s{sT1}, v{vD}\ns_mov_b64 exec, -1")
    t = vW
    d = vD
    a(f"v_cvt_pk_bf16_f32 v{t}, v{d+3}, v{d+2}\nv_cvt_pk_bf16_f32 v{t+1}, v{d+1}, v{d}")
    a(f"v_cvt_pk_bf16_f32 v{t+2}, v{d+4}, v{d+3}\nv_cvt_pk_bf16_f32 v{t+3}, v{d+2}, v{d+1}")
    a(f"ds_write_b64 v{vT1}, {V(t,2)} offset:{KO+512}\nds_write_b64 v{vT1}, {V(t+2,2)} offset:{KE+512}")
    a(f"v_cvt_pk_bf16_f32 v{t+4}, v{d+7}, v{d+6}\nv_cvt_pk_bf16_f32 v{t+5}, v{d+5}, v{d+5}")
    a(f"v_cvt_pk_bf16_f32 v{t+6}, v{d+7}, v{d+7}\nv_cvt_pk_bf16_f32 v{t+7}, v{d+6}, v{d+5}")
    a(f"ds_write_b64 v{vT1}, {V(t+4,2)} offset:{KO}\nds_write_b64 v{vT1}, {V(t+6,2)} offset:{KE}")
    a(f"v_cvt_pk_bf16_f32 v{t+8}, v{d+8}, v{d+9}\nv_cvt_pk_bf16_f32 v{t+9}, v{d+10}, v{d+11}")
    a(f"ds_write_b16 v{vT2}, v{t+8} offset:{K2+256}\nds_write_b16_d16_hi v{vT2}, v{t+8} offset:{K2}")
    a(f"ds_write_b16 v{vT3}, v{t+9} offset:{K3+32}\nds_write_b16 v{vT3}, v{t+9} offset:{K3+32+190}")
    a(f"ds_write_b16_d16_hi v{vT3}, v{t+9} offset:{K3}\nds_write_b16_d16_hi v{vT3}, v{t+9} offset:{K3+190}")
    a(f"v_and_b32 v{t+10}, 0xffff0000, v{t+6}\nv_mov_b32 v{t+11}, v{t+6}\nv_lshrrev_b32 v{t+12}, 16, v{t+1}")
    a(f"v_mov_b32 v{t+13}, s{sT2}")
    a(f"s_mov_b32 exec_lo, 0\ns_mov_b32 exec_hi, 0x80000000")
    a(f"ds_write_b32 v{t+13}, v{t+6} offset:{KE+60}\nds_write_b64 v{t+13}, {V(t+10,2)} offset:{KO+56}")
    a(f"s_mov_b64 exec, 1\nds_write_b32 v{t+13}, v{t+12} offset:{KE+1088}\ns_mov_b64 exec, -1")
    a(f"v_readlane_b32 s{82+ch}, v{t+8}, 63")


def conv(a, ch, prof):
    if ch == 0:
        a(f"s_mul_i32 s{sT2}, s{sW}, {KASZ}\ns_add_u32 s{sT2}, s{sT2}, {KA0}")
    else:
        a(f"s_mul_i32 s{sT2}, s{sW}, {KGW}\ns_add_u32 s{sT2}, s{sT2}, {KG}")
    a(f"s_lshl_b32 s{sT0}, s{sW}, 1\ns_add_u32 s{sT0}, s{sT0}, {ch}\ns_mul_i32 s{sT1}, s{sT0}, {SY}\ns_mul_i32 s{sT0}, s{sT0}, {SU}")
    kfa, kfb, hk2, hk3, uf, a2, a3, yw = range(vKA, vKA + 8)
    a(f"v_add_u32 v{uf}, s{sT0}, v{vUF}\nv_add_u32 v{kfa}, s{sT2}, v{vKFA}\nv_add_u32 v{kfb}, s{sT2}, v{vKFB}")
    a(f"v_add_u32 v{hk2}, s{sT2}, v{vHK2}\nv_add_u32 v{hk3}, s{sT2}, v{vHK3}")
    a(f"v_add_u32 v{a2}, s{sT0}, v{vA2}\nv_add_u32 v{a3}, s{sT0}, v{vA3}\nv_add_u32 v{yw}, s{sT1}, v{vYW}")
    a(f"s_lshr_b32 s{sT0}, s{82+ch}, 16\ns_and_b32 s{sT1}, s{82+ch}, 0xffff0000\ns_or_b32 s{sT0}, s{sT0}, s{sT1}")
    for k in range(4):
        a(f"v_and_b32 v{vKFX+k}, s{sT0}, v{vMASK+k}")

    def rd_kf(s):
        r = aKF + 4 * s
        ad, o = (kfb, 0) if s == 0 else (kfa, 16 * (16 - s))
        return [f"ds_read2_b32 {A(r,2)}, v{ad} offset0:{o} offset1:{o+1}", f"ds_read2_b32 {A(r+2,2)}, v{ad} offset0:{o+2} offset1:{o+3}"]

    def rd_hk2(pi, dl):
        r = aHK2 + 4 * (3 * pi + dl); o = 16 * (2 - dl) + 64 * pi
        return [f"ds_read2_b32 {A(r,2)}, v{hk2} offset0:{o} offset1:{o+1}", f"ds_read2_b32 {A(r+2,2)}, v{hk2} offset0:{o+2} offset1:{o+3}"]

    def rd_hk3(pi, q):
        r = aHK3 + 4 * (4 * pi + q); o = (48 - 16 * q) // 2 + 96 * pi
        return [f"ds_read2_b32 {A(r,2)}, v{hk3} offset0:{o} offset1:{o+1}", f"ds_read2_b32 {A(r+2,2)}, v{hk3} offset0:{o+2} offset1:{o+3}"]
    NR = 6
    rd_uf = lambda n: f"ds_read_b128 {A(aUF+4*(n % NR),4)}, v{uf} offset:{64*n}"
    touched = set()

    def mm(t, x, y):
        c = V(vACC + 4 * t, 4) if t in touched else "0"
        touched.add(t)
        return f"v_mfma_f32_16x16x32_bf16 {V(vACC+4*t,4)}, {x}, {y}, {c}"
    NS = 64
    pre = [[] for _ in range(NS + 8)]
    extra = [[] for _ in range(NS + 8)]
    last = [8 * t + 7 for t in range(8)]
    LA = 3
    head = []
    for n in range(LA):
        head += rd_kf(7 - n) + rd_kf(15 - n) + [rd_uf(n)]
    for n in range(NS):
        m = n + LA
        if m <= 7:
            pre[n] += rd_kf(7 - m) + rd_kf(15 - m)
            if m == 7:
                pre[n] += rd_kf(16)
        if m < NS:
            pre[n].append(rd_uf(m))
    hk = sum([rd_hk2(pi, dl) for dl in range(3) for pi in range(2)], []) + sum([rd_hk3(pi, q) for pi in range(2) for q in range(4)], [])
    for i in range(0, len(hk), 2):
        pre[6 + i // 2] += hk[i:i + 2]
    jobs = [("2", 0), ("2", 1), ("3", 0, 0), ("3", 0, 1), ("2", 2), ("2", 3), ("3", 1, 0), ("3", 1, 1), ("2", 4), ("2", 5)]
    n0 = 7
    for ji, jb in enumerate(jobs):
        ap = aAP + 8 * (ji & 1); bx = vBX + 8 * (ji & 1)
        F = jb[1]
        if jb[0] == "2":
            for om in range(2):
                pre[n0].append(f"ds_read_b128 {A(ap+4*om,4)}, v{a2} offset:{512*F+64*om}")
            for pi in range(2):
                for om in range(2):
                    extra[n0 + 2].append(f"v_mfma_f32_16x16x32_bf16 {V(vBXD+8*pi+4*om,4)}, {A(ap+4*om,4)}, {A(aBAND+4*pi,4)}, 0")
            for pi in range(2):
                for q in range(4):
                    pre[n0 + 4 + pi].append(f"v_cvt_pk_bf16_f32 v{bx+4*pi+q}, v{vBXD+8*pi+2*q}, v{vBXD+8*pi+2*q+1}")
                for dl in range(3):
                    t = F + dl + 2
                    if t < 8:
                        extra[n0 + 5 + pi].append((t, V(bx + 4 * pi, 4), A(aHK2 + 4 * (3 * pi + dl), 4)))
                        last[t] = max(last[t], n0 + 5 + pi)
            n0 += 5
        else:
            pi = jb[2]
            for om in range(2):
                pre[n0].append(f"ds_read_b128 {A(ap+4*om,4)}, v{a3} offset:{1024*F+128*om+16*pi}")
                extra[n0 + 2].append(f"v_mfma_f32_16x16x32_bf16 {V(vBXD+4*om,4)}, {A(ap+4*om,4)}, {A(aBAND+8+4*pi,4)}, 0")
            for q in range(4):
                pre[n0 + 4].append(f"v_cvt_pk_bf16_f32 v{bx+q}, v{vBXD+2*q}, v{vBXD+2*q+1}")
            for a2_ in range(4):
                q = a2_ - 2 * F
                if q >= 0:
                    extra[n0 + 5].append((a2_ + 4, V(bx, 4), A(aHK3 + 4 * (4 * pi + q), 4)))
                    last[a2_ + 4] = max(last[a2_ + 4], n0 + 5)
            n0 += 5
    for t in range(8):
        n = last[t] + 3
        e = vEP + 2 * (t & 1)
        pre[n] += [f"v_cvt_pk_bf16_f32 v{e}, v{vACC+4*t}, v{vACC+4*t+1}", f"v_cvt_pk_bf16_f32 v{e+1}, v{vACC+4*t+2}, v{vACC+4*t+3}",
                   f"ds_write_b64 v{yw}, {V(e,2)} offset:{512*t}"]
    for s in head:
        a(s)
    for n in range(NS + 8):
        ms = []
        if ch == 0 and n % 8 == 0: prof(a, 20 + n // 8)
        if n < NS:
            phi = n - 7
            for s in list(range(17)) + [32]:
                if (phi + s) % 8 == 0 and 0 <= (phi + s) // 8 < 8:
                    ms.append(((phi + s) // 8, V(vKFX, 4) if s == 32 else A(aKF + 4 * s, 4), A(aUF + 4 * (n % NR), 4)))
        ms += extra[n]
        fill = list(pre[n])
        per = -(-len(fill) // max(1, len(ms)))
        for m in ms:
            a(m if isinstance(m, str) else mm(*m))
            for _ in range(per):
                if fill:
                    a(fill.pop(0))
        for f in fill:
            a(f)


def gen_a(prof):
    a = Asm()
    a("L_A:")
    a("s_load_dwordx16 s[52:67], s[0:1], 0")
    a(f"s_sub_u32 s{sJJ}, s{sJ}, 22\ns_mul_i32 s{sIDX}, s{sX}, 10\ns_add_u32 s{sIDX}, s{sIDX}, s{sJJ}")
    a(f"s_mul_i32 s{sAG}, s{sX}, 9\ns_add_u32 s{sAG}, s{sAG}, s{sJJ}")
    a(f"v_lshrrev_b32 v{vT0}, 6, v0\nv_and_b32 v{vLANE}, 63, v0\nv_readfirstlane_b32 s{sW}, v{vT0}")
    a(f"v_mov_b32 v{vZ}, -1\nv_mov_b32 v{vZ+1}, -1\nv_mov_b32 v{vZ+2}, -1\nv_mov_b32 v{vZ+3}, -1")
    a(f"s_lshl_b32 s{sT0}, s{sAG}, 11\ns_lshl_b32 s{sT1}, s{sW}, 9\ns_add_u32 s{sT0}, s{sT0}, s{sT1}")
    a(f"v_lshl_add_u32 v{vT1}, v{vLANE}, 2, s{sT0}")
    a(f"v_lshlrev_b32 v{vT2}, 4, v{vLANE}")
    a(f"s_lshl_b32 s{sT0}, s{sIDX}, 2\ns_add_u32 s{sT0}, s{sT0}, s{sW}\ns_mul_i32 s{sT0}, s{sT0}, 9216")
    a(f"v_add_u32 v{vT3}, s{sT0}, v{vT2}")
    a(f"s_add_u32 s6, s4, L_TABA-L_PC\ns_addc_u32 s7, s5, 0")
    a("s_waitcnt lgkmcnt(0)")
    srd(a, 8, pWS, SENT_SIZE)
    srd(a, 12, pDBG, 256)
    a(f"s_cmp_ge_u32 s{sJJ}, 9\ns_cbranch_scc1 L_SPARE")
    a(f"s_lshl_b32 s{sT0}, s{sAG}, 4\ns_lshl_b32 s{sT1}, s{sW}, 2\ns_add_u32 s{sT0}, s{sT0}, s{sT1}")
    a(f"s_load_dword s{sLDT}, s[{pLOGDT}:{pLOGDT+1}], s{sT0}\ns_load_dword s{sDSK}, s[{pDSKIP}:{pDSKIP+1}], s{sT0}")
    for ch in range(2):
        for k in range(6):
            a(f"global_load_dword v{vP+6*ch+k}, v{vT1}, s[{54+2*k}:{55+2*k}] offset:{256*ch}")
    a(f"global_load_dwordx4 {V(vTAB5,4)}, v{vT2}, s[6:7]")
    a(f"global_load_dwordx4 {V(vMASK,4)}, v{vT2}, s[6:7] offset:1024")
    a(f"s_add_u32 s6, s6, 2048\ns_addc_u32 s7, s7, 0")
    for k in range(4):
        a(f"global_load_dwordx4 {A(aBAND+4*k,4)}, v{vT2}, s[6:7] offset:{1024*k}")
    for k in range(9):
        if k % 4 == 0 and k:
            a(f"v_add_u32 v{vT3}, 4096, v{vT3}")
        a(f"buffer_store_dwordx4 {V(vZ,4)}, v{vT3}, s[8:11], 0 offen offset:{1024*(k % 4)} sc1", tag="init")
    prof(a, 0)
    srd(a, 16, 52, 2048 * 1152)
    srd(a, 20, pOUT, 2048 * 2304)
    a(f"s_mov_b32 s{sCON}, 0x3fb8aa3b\ns_mov_b32 s{sCON+1}, 0x3e22f983")
    L = vLANE
    t0, t1, t2, t3 = vW, vW + 1, vW + 2, vW + 3
    r16, g = vW + 4, vW + 5
    a(f"v_and_b32 v{r16}, 15, v{L}\nv_lshrrev_b32 v{g}, 4, v{L}")
    a(f"s_mul_i32 s{sT0}, s{sW}, {KGW}\ns_add_u32 s{sT0}, s{sT0}, {KG}")
    a(f"v_lshl_add_u32 v{vKGW}, v{L}, 3, s{sT0}")
    a(f"v_and_b32 v{t0}, 31, v{L}\nv_lshrrev_b32 v{t1}, 5, v{L}")
    a(f"v_mul_u32_u24 v{t2}, 528, v{t0}\nv_lshl_add_u32 v{t2}, v{t1}, 4, v{t2}\nv_add_u32 v{vKGB}, s{sT0}, v{t2}")
    a(f"v_lshlrev_b32 v{t2}, 4, v{t0}\nv_lshl_add_u32 v{t2}, v{t1}, 3, v{t2}\nv_sub_u32 v{vKW}, 568, v{t2}")
    a(f"v_lshlrev_b32 v{t2}, 1, v{L}\nv_sub_u32 v{vK2W}, 190, v{t2}")
    a(f"v_and_b32 v{t2}, 1, v{t0}\nv_mul_u32_u24 v{t2}, 384, v{t2}\nv_and_b32 v{t3}, 30, v{t0}\nv_add_u32 v{t2}, v{t2}, v{t3}")
    a(f"v_lshl_add_u32 v{t2}, v{t1}, 6, v{t2}\nv_sub_u32 v{vK3W}, {384+96}, v{t2}")
    a(f"v_and_b32 v{t0}, 1, v{r16}\nv_add_u32 v{t1}, v{r16}, v{t0}\nv_lshlrev_b32 v{t2}, 3, v{g}\nv_sub_u32 v{t1}, v{t2}, v{t1}")
    a(f"v_lshlrev_b32 v{t1}, 1, v{t1}")
    a(f"v_mul_u32_u24 v{t2}, {KO-KE}, v{t0}\nv_add3_u32 v{vKFA}, v{t1}, v{t2}, 32\nv_add_u32 v{vKFB}, 1024, v{vKFA}")
    a(f"v_mul_u32_u24 v{t2}, 192, v{t0}\nv_add_u32 v{t2}, {K3+32}, v{t2}\nv_add_u32 v{vHK3}, v{t1}, v{t2}")
    a(f"v_lshlrev_b32 v{t1}, 4, v{g}\nv_lshlrev_b32 v{t2}, 2, v{r16}\nv_sub_u32 v{t2}, v{t1}, v{t2}\nv_add_u32 v{vHK2}, {K2+60}, v{t2}")
    a(f"v_lshl_add_u32 v{t2}, v{r16}, 5, v{t1}\nv_add_u32 v{vUF}, {UT+32}, v{t2}")
    a(f"v_lshrrev_b32 v{t2}, 2, v{r16}\nv_and_b32 v{t3}, 3, v{r16}\nv_lshl_add_u32 v{t0}, v{t2}, 3, v{t3}")
    a(f"v_lshl_add_u32 v{vA2}, v{t0}, 4, v{t1}\nv_add_u32 v{vA2}, {UT+464}, v{vA2}")
    a(f"v_lshl_add_u32 v{vA3}, v{t0}, 5, v{t1}\nv_add_u32 v{vA3}, {UT+464}, v{vA3}")
    a(f"v_lshlrev_b32 v{t0}, 3, v{g}\nv_lshl_add_u32 v{t0}, v{r16}, 5, v{t0}\nv_add_u32 v{vYW}, {YT}, v{t0}")
    a(f"v_lshrrev_b32 v{t0}, 2, v{L}\nv_and_b32 v{t0}, 4, v{t0}\nv_xor_b32 v{t0}, v{t0}, v{L}\nv_mul_u32_u24 v{t0}, 1152, v{t0}")
    a(f"s_mul_i32 s{sT0}, s{sW}, {512*1152}\ns_lshl_b32 s{sT1}, s{sAG}, 4\ns_add_u32 s{sT0}, s{sT0}, s{sT1}\nv_add_u32 v{vDMA}, s{sT0}, v{t0}")
    a(f"v_lshrrev_b32 v{t0}, 1, v{g}\nv_lshlrev_b32 v{t0}, 5, v{t0}\nv_lshl_add_u32 v{t0}, v{t3}, 3, v{t0}\nv_add_u32 v{t0}, v{t0}, v{t2}")
    a(f"v_and_b32 v{t1}, 2, v{t3}\nv_lshlrev_b32 v{t1}, 1, v{t1}")
    a(f"v_xor_b32 v{vTR0}, v{t0}, v{t1}\nv_xor_b32 v{vTR1}, 4, v{vTR0}")
    a(f"s_lshl_b32 s{sT0}, s{sW}, 13\ns_add_u32 s{sT0}, s{sT0}, {U0}")
    a(f"v_and_b32 v{t1}, 1, v{g}\nv_lshl_add_u32 v{t0}, v{t1}, 3, s{sT0}")
    a(f"v_lshl_add_u32 v{vTR0}, v{vTR0}, 4, v{t0}\nv_lshl_add_u32 v{vTR1}, v{vTR1}, 4, v{t0}")
    a(f"v_lshl_add_u32 v{t1}, v{t1}, 2, v{t3}\nv_mul_u32_u24 v{t1}, {SU}, v{t1}")
    a(f"v_lshrrev_b32 v{t0}, 1, v{g}\nv_lshlrev_b32 v{t0}, 6, v{t0}\nv_lshl_add_u32 v{t0}, v{t2}, 4, v{t0}")
    a(f"s_lshl_b32 s{sT0}, s{sW}, 10\ns_add_u32 s{sT0}, s{sT0}, {UT+512}\nv_add3_u32 v{vTW}, v{t0}, v{t1}, s{sT0}")
    a(f"v_mul_u32_u24 v{t0}, {SY}, v{t2}\nv_lshl_add_u32 v{t0}, v{g}, 5, v{t0}\nv_lshl_add_u32 v{t0}, v{t3}, 3, v{t0}")
    a(f"s_lshl_b32 s{sT0}, s{sW}, 10\ns_add_u32 s{sT0}, s{sT0}, {YT}\nv_add_u32 v{vOR}, s{sT0}, v{t0}")
    a(f"s_mul_i32 s{sT0}, s{sW}, {512*2304}\ns_lshl_b32 s{sT1}, s{sAG}, 4\ns_add_u32 s{sT0}, s{sT0}, s{sT1}")
    a(f"v_mul_u32_u24 v{t0}, 2304, v{L}\nv_add_u32 v{vOS}, s{sT0}, v{t0}")
    a(f"v_mov_b32 v{vZ}, 0\nv_mov_b32 v{vZ+1}, 0\nv_mov_b32 v{vZ+2}, 0\nv_mov_b32 v{vZ+3}, 0")
    a(f"v_lshrrev_b32 v{t0}, 5, v{L}\nv_mul_u32_u24 v{t0}, {SU}, v{t0}\nv_and_b32 v{t1}, 31, v{L}\nv_lshl_add_u32 v{t0}, v{t1}, 4, v{t0}")
    a(f"s_mul_i32 s{sT0}, s{sW}, {2*SU}\nv_add_u32 v{t0}, s{sT0}, v{t0}\nds_write_b128 v{t0}, {V(vZ,4)} offset:{UT}")
    a(f"s_mul_i32 s{sT0}, s{sW}, {KGW}\ns_add_u32 s{sT0}, s{sT0}, {KG}\nv_add_u32 v{vKGA}, s{sT0}, v{vTAB5}")
    a("s_waitcnt lgkmcnt(0)")
    prof(a, 1)

    def signal(a):
        a.wait("init")
        a("s_barrier")
        a(f"s_cmp_lg_u32 s{sW}, 0\ns_cbranch_scc1 L_A_NOSIG")
        a(f"s_and_b32 s{sT0}, s{sIDX}, 3\ns_lshl_b32 s{sT0}, s{sT0}, 6\nv_mov_b32 v{vT2}, 1\nv_mov_b32 v{vT3}, s{sT0}")
        a(f"s_mov_b64 exec, 1\nbuffer_atomic_add v{vT2}, v{vT3}, s[12:15], 0 offen sc1\ns_mov_b64 exec, -1")
        a("L_A_NOSIG:")

    def udma(a):
        a(f"s_lshl_b32 s{sT0}, s{sW}, 13\ns_add_u32 s{sT0}, s{sT0}, {U0}\ns_mov_b32 s{sT2}, 0")
        for i in range(8):
            a(f"s_mov_b32 m0, s{sT0}\ns_add_u32 s{sT0}, s{sT0}, 1024")
            a(f"buffer_load_dwordx4 v{vDMA}, s[16:19], s{sT2} offen lds", tag=f"u{i}")
            a(f"s_add_u32 s{sT2}, s{sT2}, {64*1152}")
    kgen(a, 0, prof, mid=signal)
    prof(a, 2)
    udma(a)
    kgen(a, 1, prof)
    prof(a, 3)
    a("s_waitcnt vmcnt(0)")
    for i in range(8):
        a(f"ds_read_b64_tr_b16 {V(vTB+4*i,2)}, v{vTR0} offset:{1024*i}\nds_read_b64_tr_b16 {V(vTB+4*i+2,2)}, v{vTR1} offset:{1024*i}")
    for i in range(8):
        a(f"ds_write_b128 v{vTW}, {V(vTB+4*i,4)} offset:{128*i}")
    a("s_waitcnt lgkmcnt(0)\ns_barrier")
    prof(a, 4)
    conv(a, 0, prof)
    prof(a, 5)
    conv(a, 1, prof)
    a("s_waitcnt lgkmcnt(0)\ns_barrier")
    prof(a, 6)
    for i in range(8):
        a(f"ds_read_b64_tr_b16 {V(vTB+4*i,2)}, v{vOR} offset:{128*i}\nds_read_b64_tr_b16 {V(vTB+4*i+2,2)}, v{vOR} offset:{128*i+4*SY}")
    a(f"s_mov_b32 s{sT0}, 0")
    for i in range(8):
        a(f"buffer_store_dwordx4 {V(vTB+4*i,4)}, v{vOS}, s[20:23], s{sT0} offen")
        a(f"s_add_u32 s{sT0}, s{sT0}, {64*2304}")
    prof(a, 7, final=True)
    a("s_endpgm")
    main = finish(a)
    b = Asm()
    b("L_SPARE:")
    for k in range(9):
        if k % 4 == 0 and k:
            b(f"v_add_u32 v{vT3}, 4096, v{vT3}")
        b(f"buffer_store_dwordx4 {V(vZ,4)}, v{vT3}, s[8:11], 0 offen offset:{1024*(k % 4)} sc1")
    b("s_waitcnt vmcnt(0)\ns_barrier")
    b(f"s_cmp_lg_u32 s{sW}, 0\ns_cbranch_scc1 L_END")
    b(f"s_and_b32 s{sT0}, s{sIDX}, 3\ns_lshl_b32 s{sT0}, s{sT0}, 6\nv_mov_b32 v{vT2}, 1\nv_mov_b32 v{vT3}, s{sT0}")
    b(f"s_mov_b64 exec, 1\nbuffer_atomic_add v{vT2}, v{vT3}, s[12:15], 0 offen sc1")
    b("s_endpgm")
    return main + finish(b)
```

```python
from asmlib import *
from gen_common import *
import numpy as np

XR = 0
WQ = 0
WR = 73728
EX = WR + 16384
WO = WR
FM = 147456
FDUMMY = FM + 4608
NX, NW = 3, 4
PAIRS = [[(0, 2), (0, 3)], [(0, 4), (1, 4)], [(1, 2), (1, 3)], [(2, 3), (2, 4)]]


def head_of(e):
    return 0 if (e < 18 or e == 36) else 1


def table_b():
    T = np.zeros((256, 4), np.uint32)
    T[:, 0] = OOB; T[:, 1] = OOB
    cons = []
    for w in range(4):
        for q in range(2):
            kt, vt = PAIRS[w][q]
            for l in range(64):
                c, g = l % 16, l // 16
                e, ch = 16 * vt + c - 36, 4 * kt + g
                if 0 <= e < 38 and 4 * head_of(e) <= ch <= 4 * head_of(e) + 4:
                    T[64 * w + l, q] = 16 * len(cons)
                    cons.append((e, ch))
    assert len(cons) == 190
    for t in range(256):
        if t < 190:
            e, ch = cons[t]
            fl = 3 if ch != 4 else (1 if head_of(e) == 0 else 2)
            T[t, 2] = FM + 96 * e + 8 * ch; T[t, 3] = fl
        else:
            T[t, 2] = FDUMMY + 8 * (t - 190); T[t, 3] = 0
    return T


vRO = 2
vOL, vOLT, vOUT, vCK = 6, 7, 8, 9
vL, vI, vG, vX = 10, 11, 12, 13
vX1, vDK, vDQ = 14, 15, 16
vXR = 17
vRK = 22
vRQ = 27
vEW, vGA = 30, 31
vTAB = 32
vT = 36
vONE = 42
vER = 44
vDO = 48
vFR, vFD, vS2, vS2T, vDBG, vDBA = 50, 51, 52, 53, 54, 55
vACC = 56
vFB = 116
vPH = 156
vPK = 172
vEF = 156
vKD = 56
vAQ = 64
vFQ = 116
vGAT = 156
vPQ = 200
vFA = 220
vON = 64
vOF = 116
vR = 140
vA2 = 12
vWV = 44
vOM = 76
sW, sRB, sP, sRB2, sCB, sG2 = 52, 53, 54, 55, 56, 57
sT = 58
sB, sMX = 64, 65
sM0 = 66
sMK4, sMK89, sMG0 = 68, 70, 72
sLOG, sEPS = 74, 76
sRETRY = 78
sSO = 79


OL_START, OL_PER = 64, 0.6
OUT_FLAGS = ""


def xreg(s, tau):
    return (3 * s + tau) * 4


def mneed(s):
    return -(-(5 * s + 5) // 4)


def phi4(a, src, dst, tmp, keep=None):
    e = tmp
    a(f"v_pk_mul_f32 {V(e,2)}, {V(src,2)}, {S(sLOG,2)}\nv_pk_mul_f32 {V(e+2,2)}, {V(src+2,2)}, {S(sLOG,2)}")
    m = src if keep is None else tmp + 4
    for i in range(4):
        a(f"v_exp_f32_e64 v{e+i}, v{e+i} clamp\nv_max_f32 v{m+i}, 0, v{src+i}")
    a(f"v_pk_add_f32 {V(m,2)}, {V(m,2)}, {S(sEPS,2)}\nv_pk_add_f32 {V(m+2,2)}, {V(m+2,2)}, {S(sEPS,2)}")
    a(f"v_pk_add_f32 {V(e,2)}, {V(e,2)}, {V(m,2)}\nv_pk_add_f32 {V(e+2,2)}, {V(e+2,2)}, {V(m+2,2)}")
    if keep is not None:
        for i in range(4):
            a(f"v_cndmask_b32 v{e+i}, v{src+i}, v{e+i}, {S(keep,2)}")
    a(f"v_cvt_pk_bf16_f32 v{dst}, v{e}, v{e+1}\nv_cvt_pk_bf16_f32 v{dst+1}, v{e+2}, v{e+3}")


def gen_b(prof):
    a = Asm()
    slow = Asm()
    t0, t1, t2, t3, t4, t5 = range(vT, vT + 6)
    a(f"s_and_b32 s{sT}, s{sX}, 3\ns_mul_i32 s{sT}, s{sT}, 22\ns_add_u32 s{sT}, s{sT}, s{sJ}")
    a(f"s_lshr_b32 s{sRB}, s{sT}, 3\ns_and_b32 s{sT}, s{sT}, 7\ns_lshr_b32 s{sP}, s{sX}, 2\ns_lshl_b32 s{sP}, s{sP}, 3\ns_add_u32 s{sP}, s{sP}, s{sT}")
    a(f"v_lshrrev_b32 v{t0}, 6, v0\nv_bfe_u32 v{vG}, v0, 4, 2\nv_bfe_u32 v{t1}, v0, 3, 3\nv_readfirstlane_b32 s{sW}, v{t0}")
    a(f"s_mul_i32 s{sT}, s{sRB}, 192\nv_lshl_add_u32 v{t1}, v{t0}, 4, v{t1}\nv_add_u32 v{t1}, s{sT}, v{t1}\nv_mul_u32_u24 v{t1}, 1152, v{t1}")
    a(f"v_and_b32 v{t2}, 7, v0\nv_xor_b32 v{t2}, v{t2}, v{vG}\nv_lshl_add_u32 v{vX}, v{t2}, 4, v{t1}")
    a(f"v_xor_b32 v{t2}, 4, v{t2}\nv_lshl_add_u32 v{vX1}, v{t2}, 4, v{t1}\nv_add_u32 v{vX1}, {8*1152}, v{vX1}")
    a(f"s_mul_i32 s{sMX}, s{sW}, 6144\ns_lshl_b32 s{sM0}, s{sW}, 10")
    a(f"s_and_b32 s{sT}, s{sP}, 1\ns_lshl_b32 s{sT}, s{sT}, 3\ns_mul_i32 s{sT+1}, s{sP}, 72\ns_sub_u32 s{sT+1}, s{sT+1}, s{sT}")
    a(f"s_and_b32 s{sB}, s{sT+1}, 127\ns_sub_u32 s{sB}, 128, s{sB}\ns_lshr_b32 s{sB}, s{sB}, 4\ns_min_u32 s{sB}, s{sB}, 4")
    a(f"s_sub_u32 s{sT+2}, 5, s{sB}\ns_mov_b32 s{sT+3}, 3456")
    a("s_waitcnt lgkmcnt(0)")
    srd(a, 8, pX, 2048 * 1152)
    srd(a, 12, pW, 576 * 3456)

    def dma(srdreg, vaddr, so, sbase, ldsbase, tag):
        o = Asm()
        o(f"s_add_u32 m0, s{sbase}, {ldsbase}")
        if so:
            o(f"s_mov_b32 s{sSO}, {so}")
        o(f"buffer_load_dwordx4 v{vaddr}, s[{srdreg}:{srdreg+3}], {'s%d' % sSO if so else '0'} offen lds", tag=tag)
        return o.ins

    def dx(P):
        return [dma(8, vX + hh, tau * 64 * 1152 + 128 * P, sMX, XR + (P % NX) * 24576 + tau * 2048 + hh * 1024, f"x{P}")
                for tau in range(3) for hh in range(2)]

    def dk(P):
        return [dma(12, vDK, (64 * P + 32 * (m >> 1) + 4 * (m & 1)) * 3456, sM0, WR + (P % NW) * 16384 + 4096 * m, f"k{P}") for m in range(4)]
    dq = lambda k: dma(12, vDQ, 32 * k * 3456, sM0, WQ + 4096 * k, f"q{k}")

    def slot_to_col(dst, q, e, tmp):
        a(f"v_mov_b32 v{tmp}, s{sB}\nv_mul_u32_u24 v{dst}, v{q}, v{tmp}\nv_add_u32 v{dst}, v{dst}, v{e}")
        a(f"v_cmp_eq_u32 vcc, 0, v{q}\nv_mov_b32 v{q}, s{sT+2}\nv_cndmask_b32 v{tmp}, v{q}, v{tmp}, vcc\nv_cmp_lt_u32 vcc, v{e}, v{tmp}")
    for x in dx(0):
        a.ext(x)
    a(f"v_bfe_u32 v{t1}, v0, 2, 2\nv_xor_b32 v{t1}, v{t1}, v{vG}")
    a(f"v_and_b32 v{t2}, 3, v0\nv_bfe_u32 v{t3}, v0, 6, 1\nv_lshlrev_b32 v{t3}, 1, v{t3}\nv_xor_b32 v{t2}, v{t2}, v{t3}")
    a(f"v_lshrrev_b32 v{t3}, 1, v{t1}\nv_and_b32 v{t1}, 1, v{t1}\nv_mul_u32_u24 v{t3}, 1152, v{t3}")
    slot_to_col(t4, t1, t2, t5)
    a(f"v_lshl_add_u32 v{t3}, v{t4}, 4, v{t3}\nv_lshl_add_u32 v{t0}, v{t0}, 3, v{vG}\nv_mad_u32_u24 v{t3}, v{t0}, s{sT+3}, v{t3}")
    a(f"s_add_u32 s{sT+4}, s{sT+1}, 1152\nv_add_u32 v{t3}, s{sT+4}, v{t3}\nv_mov_b32 v{t4}, {OOB}\nv_cndmask_b32 v{vDK}, v{t4}, v{t3}, vcc")
    for x in dk(0) + dx(1) + dk(1) + dx(2) + dk(2):
        a.ext(x)
    prof(a, 0)
    a(f"v_and_b32 v{vL}, 63, v0\nv_and_b32 v{vI}, 15, v0")
    a(f"v_lshrrev_b32 v{t0}, 1, v{vI}\nv_xor_b32 v{t0}, v{t0}, v{vG}\nv_lshl_add_u32 v{t1}, v{vI}, 7, s{sMX}")
    a(f"v_lshl_add_u32 v{vXR}, v{t0}, 4, v{t1}\nv_xor_b32 v{vXR+1}, 64, v{vXR}")
    a(f"v_lshrrev_b32 v{t0}, 3, v0\nv_bfe_u32 v{t1}, v0, 2, 1\nv_bfe_u32 v{t2}, v0, 4, 1\nv_xor_b32 v{t1}, v{t1}, v{t2}")
    a(f"v_and_b32 v{t2}, 3, v0\nv_bfe_u32 v{t3}, v0, 5, 1\nv_lshlrev_b32 v{t3}, 1, v{t3}\nv_xor_b32 v{t2}, v{t2}, v{t3}")
    slot_to_col(t4, t1, t2, t5)
    a(f"v_and_b32 v{t1}, 3, v{t0}\nv_and_b32 v{t2}, 12, v{t0}\nv_lshl_or_b32 v{t1}, v{t2}, 1, v{t1}\nv_lshrrev_b32 v{t2}, 4, v{t0}\nv_lshl_or_b32 v{t1}, v{t2}, 2, v{t1}")
    a(f"v_lshl_add_u32 v{t4}, v{t4}, 4, s{sT+1}\nv_mad_u32_u24 v{t4}, v{t1}, s{sT+3}, v{t4}\nv_mov_b32 v{t1}, {OOB}\nv_cndmask_b32 v{vDQ}, v{t1}, v{t4}, vcc")
    a(f"v_lshrrev_b32 v{t0}, 2, v{vL}\nv_and_b32 v{t1}, 3, v{vL}")
    u0, u1, u2, u3, u4, u5 = range(vACC, vACC + 6)
    a(f"v_and_b32 v{u0}, 3, v{t0}\nv_and_b32 v{u1}, 1, v{vG}\nv_lshlrev_b32 v{u1}, 1, v{u1}\nv_bfe_u32 v{u5}, v{t0}, 1, 1")

    def col_to_slot(cc):
        a(f"v_lshl_add_u32 v{u2}, v{cc}, 3, s{sT}\nv_and_b32 v{u4}, 8, v{u2}\nv_lshrrev_b32 v{u3}, 4, v{u2}")
        a(f"v_cmp_le_u32 vcc, s{sB}, v{u3}\nv_subrev_u32 v{u2}, s{sB}, v{u3}\nv_cndmask_b32 v{u3}, v{u3}, v{u2}, vcc\nv_cndmask_b32 v{u2}, 0, 1, vcc")
        a(f"v_xor_b32 v{u3}, v{u3}, v{u1}\nv_lshl_add_u32 v{u3}, v{u3}, 4, v{u4}")
    for T in range(5):
        if T < 2:
            a(f"v_add_u32 v{t3}, {4*T}, v{t1}\nv_mov_b32 v{t4}, 0")
        elif T == 2:
            a(f"v_cmp_eq_u32 vcc, 0, v{t1}\nv_add_u32 v{t3}, -1, v{t1}\nv_cndmask_b32 v{t3}, v{t3}, 8, vcc\nv_cndmask_b32 v{t4}, 2, 0, vcc")
        else:
            a(f"v_add_u32 v{t3}, {4*T-9}, v{t1}\nv_min_u32 v{t3}, 8, v{t3}\nv_mov_b32 v{t4}, 2")
        col_to_slot(t3)
        a(f"v_or_b32 v{u2}, v{u2}, v{t4}\nv_xor_b32 v{u2}, v{u2}, v{u0}\nv_lshl_add_u32 v{u3}, v{u2}, 6, v{u3}")
        a(f"v_lshl_add_u32 v{u3}, v{t0}, 8, v{u3}\nv_add_u32 v{vRK+T}, {WR}, v{u3}")
    a(f"s_cmp_eq_u32 s{sB}, 1\ns_cselect_b32 s{sT+4}, 0, 1")
    for dl in range(3):
        a(f"v_add_u32 v{t3}, {4*dl}, v{t1}")
        col_to_slot(t3)
        if dl == 2:
            a(f"v_cmp_eq_u32 vcc, 0, v{t1}\nv_mov_b32 v{t4}, s{sT+4}\nv_xor_b32 v{t5}, 3, v{u1}\nv_lshlrev_b32 v{t5}, 4, v{t5}")
            a(f"v_cndmask_b32 v{u2}, v{t4}, v{u2}, vcc\nv_cndmask_b32 v{u3}, v{t5}, v{u3}, vcc")
        a(f"v_xor_b32 v{u2}, v{u2}, v{u5}\nv_lshl_add_u32 v{u3}, v{u2}, 6, v{u3}\nv_lshl_add_u32 v{vRQ+dl}, v{t0}, 7, v{u3}")
    a(f"v_and_b32 v{t2}, 6, v{t0}\nv_lshrrev_b32 v{t3}, 1, v{t1}\nv_and_b32 v{t4}, 1, v{t1}")
    a(f"v_lshlrev_b32 v{t4}, 3, v{t4}\nv_lshl_add_u32 v{t4}, v{t0}, 7, v{t4}\nv_lshl_add_u32 v{t4}, v{t3}, 4, v{t4}")
    for T in range(4):
        a(f"v_xor_b32 v{t3}, {2*T}, v{t2}\nv_lshl_add_u32 v{vRO+T}, v{t3}, 4, v{t4}\nv_add_u32 v{vRO+T}, {WO}, v{vRO+T}")
    a(f"s_cmp_ge_u32 s{sJ}, 9\ns_cselect_b32 s{sT+4}, 1, 0\ns_lshl_b32 s{sRB2}, s{sX}, 1\ns_add_u32 s{sRB2}, s{sRB2}, s{sT+4}")
    a(f"s_mul_i32 s{sT+4}, s{sT+4}, 9\ns_sub_u32 s{sCB}, s{sJ}, s{sT+4}")
    a(f"s_cmp_lt_u32 s{sJ}, 18\ns_cselect_b32 s{sG2}, 1, 0\ns_cselect_b32 s18, {576*1152}, 0")
    a(f"s_mov_b32 s16, s{pWO}\ns_mov_b32 s17, s{pWO+1}\ns_mov_b32 s19, 0x20000")
    srd(a, 20, pWS, SENT_SIZE)
    srd(a, 24, pDBG, 256)
    srd(a, 28, pOUT, 2048 * 2304)
    a(f"v_lshrrev_b32 v{t0}, 3, v0\nv_and_b32 v{t1}, 7, v0\nv_and_b32 v{t2}, 6, v{t0}\nv_xor_b32 v{t1}, v{t1}, v{t2}")
    a(f"s_lshl_b32 s{sT+4}, s{sCB}, 7\nv_lshl_add_u32 v{t1}, v{t1}, 4, s{sT+4}")
    a(f"v_mul_u32_u24 v{t2}, 1152, v{t0}\nv_add_u32 v{vDO}, v{t1}, v{t2}")
    a(f"v_bfe_u32 v{t2}, v{t0}, 2, 2\nv_lshrrev_b32 v{t3}, 4, v{t0}\nv_lshl_add_u32 v{t2}, v{t2}, 1, v{t3}\nv_mul_u32_u24 v{t2}, 36, v{t2}")
    a(f"v_and_b32 v{t3}, 3, v{t0}\nv_add3_u32 v{t2}, v{t2}, v{t3}, 32\nv_mul_u32_u24 v{t2}, 1152, v{t2}\nv_add_u32 v{vDO+1}, v{t1}, v{t2}")
    a(f"s_lshr_b32 s{sT+4}, s{sW}, 1\ns_mul_i32 s{sT+4}, s{sT+4}, 5120\ns_and_b32 s{sT+5}, s{sW}, 1\ns_lshl_b32 s{sT+5}, s{sT+5}, 3\ns_add_u32 s{sT+4}, s{sT+4}, s{sT+5}\ns_add_u32 s{sT+4}, s{sT+4}, {EX}")
    a(f"v_lshl_add_u32 v{vEW}, v{vL}, 4, s{sT+4}")
    a(f"s_lshl_b32 s{sT+5}, s{sW}, 2")
    for q in range(4):
        pk = sum(PAIRS[w][q // 2][q % 2] << (4 * w) for w in range(4))
        a(f"s_lshr_b32 s{sT+4}, {pk}, s{sT+5}\ns_and_b32 s{sT+4}, s{sT+4}, 15\ns_lshl_b32 s{sT+4}, s{sT+4}, 10\ns_add_u32 s{sT+4}, s{sT+4}, {EX}\nv_lshl_add_u32 v{vER+q}, v{vL}, 4, s{sT+4}")
    a(f"v_cmp_gt_u32 {S(sMK4,2)}, 4, v{vI}\nv_and_b32 v{t0}, 14, v{vI}\nv_cmp_eq_u32 {S(sMK89,2)}, 8, v{t0}\nv_cmp_eq_u32 {S(sMG0,2)}, 0, v{vG}")
    a(f"s_mov_b32 s{sLOG}, 0x3fb8aa3b\ns_mov_b32 s{sLOG+1}, 0x3fb8aa3b\ns_mov_b32 s{sEPS}, 0x358637bd\ns_mov_b32 s{sEPS+1}, 0x358637bd")
    a(f"s_cmp_lt_u32 s{sRB}, 10\ns_cselect_b32 s{sT+4}, 0x3f803f80, 0\nv_mov_b32 v{vONE}, 0x3f803f80\nv_mov_b32 v{vONE+1}, s{sT+4}")
    a(f"s_mul_i32 s{sT+4}, s{sP}, {11*S1_SLOT}\nv_lshl_add_u32 v{t0}, v0, 4, s{sT+4}\nv_mov_b32 v{t1}, {OOB}")
    a(f"v_cmp_gt_u32 vcc, 190, v0\nv_cndmask_b32 v{vGA}, v{t1}, v{t0}, vcc")
    a(f"v_mul_u32_u24 v{t0}, 96, v{vI}\nv_lshl_add_u32 v{t0}, v{vG}, 3, v{t0}\nv_add_u32 v{vFR}, {FM}, v{t0}")
    a(f"v_and_b32 v{t0}, 1, v{vI}\nv_mul_u32_u24 v{t0}, 96, v{t0}\nv_lshl_add_u32 v{t0}, v{vG}, 3, v{t0}\nv_add_u32 v{vFD}, {FM+36*96}, v{t0}")
    a(f"s_mul_i32 s{sT+4}, s{sRB}, 12\ns_add_u32 s{sT+4}, s{sT+4}, s{sW}\ns_lshl_b32 s{sT+4}, s{sT+4}, 4\ns_add_u32 s{sT+4}, s{sT+4}, s{sP}")
    a(f"s_lshl_b32 s{sT+5}, s{sT+4}, 10\ns_add_u32 s{sT+5}, s{sT+5}, {S2_OFF}\nv_lshl_add_u32 v{vS2}, v{vL}, 4, s{sT+5}")
    a(f"s_lshl_b32 s{sT+5}, s{sT+4}, 7\ns_add_u32 s{sT+5}, s{sT+5}, {S2T_OFF}\nv_lshl_add_u32 v{t0}, v{vI}, 3, s{sT+5}")
    a(f"v_cndmask_b32 v{vS2T}, v{t1}, v{t0}, {S(sMG0,2)}")
    a(f"s_lshl_b32 s{sT+4}, s{sRB2}, 2\ns_add_u32 s{sT+4}, s{sT+4}, s{sW}")
    a(f"s_lshl_b32 s{sT+5}, s{sT+4}, 15\ns_add_u32 s{sT+5}, s{sT+5}, {S2_OFF}\nv_lshl_add_u32 v{vOL}, v{vL}, 4, s{sT+5}")
    a(f"s_lshl_b32 s{sT+5}, s{sT+4}, 12\ns_add_u32 s{sT+5}, s{sT+5}, {S2T_OFF}\nv_lshl_add_u32 v{t0}, v{vI}, 3, s{sT+5}\nv_lshl_add_u32 v{vOLT}, v{vG}, 8, v{t0}")
    a(f"s_lshl_b32 s{sT+4}, s{sT+4}, 5\nv_add_u32 v{t0}, s{sT+4}, v{vI}\nv_mul_u32_u24 v{t0}, 2304, v{t0}")
    a(f"v_and_b32 v{t1}, 1, v{vG}\nv_lshl_add_u32 v{t0}, v{t1}, 5, v{t0}\nv_lshrrev_b32 v{t1}, 1, v{vG}\nv_lshl_add_u32 v{t0}, v{t1}, 4, v{t0}")
    a(f"s_lshl_b32 s{sT+4}, s{sCB}, 7\ns_add_u32 s{sT+4}, s{sT+4}, 1152\nv_add_u32 v{vOUT}, s{sT+4}, v{t0}")
    a(f"v_and_b32 v{t0}, 3, v{vL}\nv_lshlrev_b32 v{vDBA}, 6, v{t0}")
    a(f"s_add_u32 s6, s4, L_TABB-L_PC\ns_addc_u32 s7, s5, 0\ns_mov_b32 s{sRETRY}, 0")
    a(f"v_mov_b32 v{t2}, 0\nv_mov_b32 v{t3}, 0\nv_mov_b32 v{t4}, 0\nv_mov_b32 v{t5}, 0\nv_lshlrev_b32 v{t0}, 4, v0\nv_add_u32 v{t1}, {FM}, v{t0}")
    a(f"ds_write_b128 v{t1}, {V(t2,4)}\nds_write_b128 v{t1}, {V(t2,4)} offset:4096")
    prof(a, 1)

    def rd_kv(s):
        o = Asm()
        fb = vFB + 20 * (s & 1)
        base = ((s >> 1) % NW) * 16384 + (s & 1) * 8192
        for T in range(5):
            for rd in range(2):
                o(f"ds_read_b64_tr_b16 {V(fb+4*T+2*rd,2)}, v{vRK+T} offset:{base+4096*rd}")
        return o.ins

    def rd_x(P):
        o = Asm()
        for h in range(2):
            for tau in range(3):
                o(f"ds_read_b128 {A(xreg(2*P+h,tau),4)}, v{vXR+h} offset:{XR+(P % NX)*24576+tau*2048}", tag=f"xr{P}")
        return o.ins

    def mm_kv(s):
        o = Asm()
        fb = vFB + 20 * (s & 1)
        for T in range(5):
            for tau in range(3):
                d = V(vACC + 4 * (5 * tau + T), 4)
                o(f"v_mfma_f32_16x16x32_bf16 {d}, {A(xreg(s,tau),4)}, {V(fb+4*T,4)}, {'0' if s == 0 else d}")
        return o
    flat = lambda L: [i for x in L for i in x]
    a.wait("x0", "k0"); a("s_barrier")
    rx = rd_x(0)
    a.ext(rx[:3] + rd_kv(0) + rx[3:])
    for P in range(9):
        ld = []
        if P + 3 < 9:
            w = Asm(); w.wait(f"xr{P}")
            ld = w.ins + flat(dx(P + 3))
        elif P == 6:
            ld = Asm()(f"v_lshlrev_b32 v{t0}, 4, v0\nglobal_load_dwordx4 {V(vTAB,4)}, v{t0}, s[6:7]").ins
        a.ext(interleave(mm_kv(2 * P), rd_kv(2 * P + 1) + ld, per=2))
        fill = []
        if P < 8:
            a.wait(f"x{P+1}", f"k{P+1}")
        if P >= 6:
            a.wait(f"xr{P}")
        a("s_barrier")
        if P < 8:
            rx = rd_x(P + 1)
            fill = rx[:3] + rd_kv(2 * P + 2) + rx[3:]
        if P + 3 < 9:
            fill += flat(dk(P + 3))
        else:
            fill += flat([dq(k) for k in range(6 * (P - 6), 6 * (P - 5))])
        if P == 8:
            fill += Asm()(f"buffer_load_dword v{vDBG}, v{vDBA}, s[24:27], 0 offen sc1").ins
        a.ext(interleave(mm_kv(2 * P + 1), fill, per=2))
        if P in (0, 2, 4, 6):
            prof(a, 20 + P // 2)
    prof(a, 2)
    n = 0
    for tau in range(3):
        for T in (3, 4, 0, 1, 2):
            src = vACC + 4 * (5 * tau + T)
            pk = vPK + 2 * (n & 1)
            if T >= 3:
                a(f"v_cvt_pk_bf16_f32 v{pk}, v{src}, v{src+1}\nv_cvt_pk_bf16_f32 v{pk+1}, v{src+2}, v{src+3}")
                if T == 4:
                    one = vONE + (1 if tau == 2 else 0)
                    a(f"v_cndmask_b32 v{pk}, v{pk}, v{one}, {S(sMK89,2)}\nv_cndmask_b32 v{pk+1}, v{pk+1}, v{one}, {S(sMK89,2)}")
            else:
                phi4(a, src, pk, vPH + 8 * (n & 1), keep=sMK4 if T == 2 else None)
            a(f"ds_write_b64 v{vEW}, {V(pk,2)} offset:{10240*tau+1024*T}")
            n += 1
    a.wait("q17")
    a("s_waitcnt lgkmcnt(0)\ns_barrier")
    prof(a, 3)
    for j in range(6):
        for q in range(4):
            a(f"ds_read_b128 {V(vEF+16*j+4*q,4)}, v{vER+q} offset:{5120*j}")
    a(f"s_mul_i32 s{sT}, s{sP}, 11\ns_add_u32 s{sT}, s{sT}, s{sRB}\ns_mul_i32 s{sT}, s{sT}, {S1_SLOT}")
    for j in range(6):
        for q in range(2):
            d = V(vKD + 4 * q, 4)
            a(f"v_mfma_f32_16x16x32_bf16 {d}, {V(vEF+16*j+8*q,4)}, {V(vEF+16*j+8*q+4,4)}, {'0' if j == 0 else d}")
    a(f"v_cmp_gt_u32 vcc, 20, v{vDBG}\ns_cbranch_vccnz L_B_INIT\nL_B_INIT_OK:")
    slow("L_B_INIT:")
    slow(f"buffer_load_dword v{vDBG}, v{vDBA}, s[24:27], 0 offen sc1\ns_add_u32 s{sRETRY}, s{sRETRY}, 1\ns_cmp_gt_u32 s{sRETRY}, 0x100000")
    slow(f"s_waitcnt vmcnt(0)\ns_cbranch_scc1 L_B_INIT_OK\nv_cmp_gt_u32 vcc, 20, v{vDBG}\ns_nop 1\ns_cbranch_vccnz L_B_INIT\ns_branch L_B_INIT_OK")
    for i in range(8):
        a(f"v_min_u32 v{vKD+i}, -2, v{vKD+i}")
    for q in range(2):
        a(f"buffer_store_dwordx4 {V(vKD+4*q,4)}, v{vTAB+q}, s[20:23], s{sT} offen sc1")
    a("s_barrier")
    prof(a, 4)

    def rd_q(s):
        o = Asm()
        if s == 16:
            for dl in range(3):
                o(f"v_add_u32 v{vRQ+dl}, 0x10000, v{vRQ+dl}")
        for dl in range(3):
            for rd in range(2):
                o(f"ds_read_b64_tr_b16 {V(vFQ+12*(s&1)+4*dl+2*rd,2)}, v{vRQ+dl} offset:{4096*(s % 16)+2048*rd}")
        return o

    def mm_q(s):
        o = Asm()
        for dl in range(3):
            for tau in range(3):
                d = V(vAQ + 4 * (3 * tau + dl), 4)
                o(f"v_mfma_f32_16x16x32_bf16 {d}, {V(vFQ+12*(s&1)+4*dl,4)}, {A(xreg(s,tau),4)}, {'0' if s == 0 else d}")
        return o

    def gather():
        o = Asm()
        for r in range(11):
            if r:
                o(f"s_mov_b32 s{sSO}, {r*S1_SLOT}")
            o(f"buffer_load_dwordx4 {V(vGAT+4*r,4)}, v{vGA}, s[20:23], {'s%d' % sSO if r else '0'} offen sc1")
        return o.ins
    ld = []
    for k in range(18):
        ld.append(dma(16, vDO + (k >= 16), 36 * 1152 * k if k < 16 else 288 * 1152 * (k - 16), sM0, WO + 4096 * k, f"o{k}"))
    ga = gather()
    GS = 11
    a.ext(rd_q(0))
    for s in range(18):
        fill = list(rd_q(s + 1).ins) if s < 17 else []
        if s < 9:
            fill += ld[2 * s] + ld[2 * s + 1]
        if s >= GS and ga:
            fill += ga[:7]; ga = ga[7:]
        a.ext(interleave(mm_q(s), fill, per=1.5))
    prof(a, 5)
    for tau in range(3):
        for dl in range(3):
            phi4(a, vAQ + 4 * (3 * tau + dl), vPQ + 6 * tau + 2 * dl, vFQ + 4 * (dl & 1))
    prof(a, 6)

    def check(o, regs, label):
        r = list(regs)
        o(f"v_max3_u32 v{vCK}, v{r[0]}, v{r[1]}, v{r[2]}")
        r = r[3:]
        while len(r) >= 2:
            o(f"v_max3_u32 v{vCK}, v{r[0]}, v{r[1]}, v{vCK}"); r = r[2:]
        if r:
            o(f"v_max_u32 v{vCK}, v{r[0]}, v{vCK}")
        o(f"v_cmp_eq_u32 vcc, -1, v{vCK}\ns_cbranch_vccnz {label}")

    def slow_path(name, loads, regs):
        slow(f"{name}:")
        slow.ext(loads)
        slow(f"s_add_u32 s{sRETRY}, s{sRETRY}, 1\ns_cmp_gt_u32 s{sRETRY}, 0x100000\ns_waitcnt vmcnt(0)\ns_cbranch_scc1 {name}_OK")
        check(slow, regs, name)
        slow(f"s_branch {name}_OK")
    check(a, range(vGAT, vGAT + 44), "L_B_GA")
    a("L_B_GA_OK:")
    slow_path("L_B_GA", gather(), range(vGAT, vGAT + 44))
    step = 1
    while step < 11:
        for r in range(0, 11 - step, 2 * step):
            for h in range(2):
                a(f"v_pk_add_f32 {V(vGAT+4*r+2*h,2)}, {V(vGAT+4*r+2*h,2)}, {V(vGAT+4*(r+step)+2*h,2)}")
        step *= 2
    a(f"v_bfe_i32 v{t0}, v{vTAB+3}, 0, 1\nv_bfe_i32 v{t1}, v{vTAB+3}, 1, 1")
    a(f"v_cvt_pk_bf16_f32 v{t2}, v{vGAT}, v{vGAT+1}\nv_cvt_pk_bf16_f32 v{t3}, v{vGAT+2}, v{vGAT+3}")
    a(f"v_and_b32 v{t2}, v{t2}, v{t0}\nv_and_b32 v{t3}, v{t3}, v{t1}\nds_write_b64 v{vTAB+2}, {V(t2,2)}")
    a.wait("o17")
    a("s_waitcnt lgkmcnt(0)\ns_barrier")
    prof(a, 7)
    for h in range(2):
        a(f"ds_read_b64 {V(vFA+12+2*h,2)}, v{vFD} offset:{32*h}")
    a(f"ds_read_b64 {V(vFA+20,2)}, v{vFD} offset:64")
    for ep in range(3):
        for h in range(2):
            a(f"ds_read_b64 {V(vFA+4*ep+2*h,2)}, v{vFR} offset:{1536*ep+32*h}")
        if ep:
            a(f"ds_read_b64 {V(vFA+14+2*ep,2)}, v{vFR} offset:{1536*ep+64}")
    for tau in range(3):
        b1, b2 = V(vPQ + 6 * tau, 4), V(vPQ + 6 * tau + 4, 2)
        for ep in (3, 0, 1, 2):
            d = V(vON + 16 * tau + 4 * ep, 4)
            a(f"v_mfma_f32_16x16x32_bf16 {d}, {V(vFA+4*ep,4)}, {b1}, 0")
        for ep in (3, 1, 2):
            d = V(vON + 16 * tau + 4 * ep, 4)
            a(f"v_mfma_f32_16x16x16_bf16 {d}, {V(vFA+14+2*ep,2)}, {b2}, {d}")
    for tau in range(3):
        n0 = vON + 16 * tau; of = vOF + 6 * tau; r = vR
        a(f"v_pk_add_f32 {V(r,2)}, {V(n0+12,2)}, {S(sEPS,2)}\nv_rcp_f32 v{r}, v{r}\nv_rcp_f32 v{r+1}, v{r+1}")
        a(f"v_cndmask_b32 v{r+2}, v{r+1}, v{r}, {S(sMG0,2)}")
        a(f"v_pk_mul_f32 {V(n0,2)}, {V(n0,2)}, {V(r,2)} op_sel_hi:[1,0]\nv_pk_mul_f32 {V(n0+2,2)}, {V(n0+2,2)}, {V(r,2)} op_sel_hi:[1,0]")
        a(f"v_pk_mul_f32 {V(n0+4,2)}, {V(n0+4,2)}, {V(r+2,2)} op_sel_hi:[1,0]")
        for q in (6, 8, 10):
            a(f"v_pk_mul_f32 {V(n0+q,2)}, {V(n0+q,2)}, {V(r,2)} op_sel:[0,1] op_sel_hi:[1,1]")
        for q in range(6):
            a(f"v_cvt_pk_bf16_f32 v{of+q}, v{n0+2*q}, v{n0+2*q+1}")
        for q in range(6):
            a(f"v_min_u32 v{of+q}, -2, v{of+q}")
        if tau == 2:
            a(f"s_cmp_lt_u32 s{sRB}, 10\ns_cselect_b32 s{sT}, {2*65536}, {OOB}\ns_cselect_b32 s{sT+1}, {2*8192}, {OOB}")
        else:
            a(f"s_mov_b32 s{sT}, {65536*tau}\ns_mov_b32 s{sT+1}, {8192*tau}")
        a(f"buffer_store_dwordx4 {V(of,4)}, v{vS2}, s[20:23], s{sT} offen sc1")
        a(f"buffer_store_dwordx2 {V(of+4,2)}, v{vS2T}, s[20:23], s{sT+1} offen sc1")
    if prof.on:
        a(f"s_cmp_eq_u32 s{sG2}, 0\ns_cbranch_scc1 L_B_EXIT")
        pv = prof.prev
        slow("L_B_EXIT:"); prof(slow, 8, final=True); slow("s_endpgm")
        prof.prev = pv
    else:
        a(f"s_cmp_eq_u32 s{sG2}, 0\ns_cbranch_scc1 L_END")
    prof(a, 8)

    def wreg(k, T, n=4, o=0):
        return A(16 * k + 4 * T + o, n) if k < 16 else V(vWV + 16 * (k - 16) + 4 * T + o, n)
    om = lambda k, rt: vOM + 4 * (2 * k + rt)

    def oloads(ks):
        o = Asm()
        cur = None
        for k in ks:
            for rt in range(2):
                if k < 16:
                    off = 16384 * rt + 1024 * k
                    so = off & ~4095
                    if so and so != cur:
                        o(f"s_mov_b32 s{sSO}, {so}"); cur = so
                    o(f"buffer_load_dwordx4 {V(om(k,rt),4)}, v{vOL}, s[20:23], {'s%d' % sSO if so else '0'} offen offset:{off & 4095} sc1")
                else:
                    for hf in range(2):
                        o(f"buffer_load_dwordx2 {V(om(k,rt)+2*hf,2)}, v{vOLT}, s[20:23], 0 offen offset:{2048*rt+1024*(k-16)+128*hf} sc1")
        return o.ins
    rd = Asm()
    for k in range(18):
        if k == 16:
            for T in range(4):
                rd(f"v_add_u32 v{vRO+T}, 0x10000, v{vRO+T}")
        for T in range(4):
            for h in range(2):
                rd(f"ds_read_b64_tr_b16 {wreg(k,T,2,2*h)}, v{vRO+T} offset:{4096*(k % 16)+2048*h}")
    a.ext(interleave(rd, oloads(range(18)), per=OL_PER, start=OL_START, pred=lambda i: i.kind == "ds"))
    prof(a, 9)
    groups = [list(range(3 * gidx, 3 * gidx + 3)) for gidx in range(6)]
    gregs = lambda ks: [om(k, rt) + i for k in ks for rt in range(2) for i in range(4)]

    def mm_o(ks):
        o = Asm()
        for k in ks:
            for rt in range(2):
                for T in range(4):
                    d = V(vA2 + 4 * (4 * rt + T), 4)
                    o(f"v_mfma_f32_16x16x32_bf16 {d}, {wreg(k,T)}, {V(om(k,rt),4)}, {'0' if k == 0 else d}")
        return o
    check(a, gregs(groups[0]), "L_B_O0")
    a("L_B_O0_OK:")
    slow_path("L_B_O0", oloads(groups[0]), gregs(groups[0]))
    for gi, ks in enumerate(groups):
        if gi < 5:
            c = Asm(); check(c, gregs(groups[gi + 1]), f"L_B_O{gi+1}")
            a.ext(interleave(mm_o(ks), c.ins[:-1], per=1, start=8))
            a.ext(c.ins[-1:])
            a(f"L_B_O{gi+1}_OK:")
            slow_path(f"L_B_O{gi+1}", oloads(groups[gi + 1]), gregs(groups[gi + 1]))
        else:
            a.ext(mm_o(ks))
        prof(a, 10 + gi)
    a(f"s_mov_b32 s{sT}, {16*2304}")
    for rt in range(2):
        for u in range(2):
            p0 = vOM + 4 * (2 * rt + u)
            for h in range(2):
                n0 = vA2 + 4 * (4 * rt + 2 * u + h)
                a(f"v_cvt_pk_bf16_f32 v{p0+2*h}, v{n0}, v{n0+1}\nv_cvt_pk_bf16_f32 v{p0+2*h+1}, v{n0+2}, v{n0+3}")
            a(f"v_permlane16_swap_b32 v{p0}, v{p0+2}\nv_permlane16_swap_b32 v{p0+1}, v{p0+3}")
            a(f"buffer_store_dwordx4 {V(p0,4)}, v{vOUT}, s[28:31], {'s%d' % sT if rt else '0'} offen offset:{64*u} {OUT_FLAGS}")
    prof(a, 16, final=True)
    a("s_endpgm")
    return finish(a) + finish(slow)
```

```python
from asmlib import *
NAME = "concat_heads__ssm_conv_s4__linear_attn_block__prompt_kernel"
pLOGDT, pDSKIP, pX, pW, pWO, pOUT, pDBG, pWS = 36, 38, 40, 42, 44, 46, 48, 50
sX, sJ = 3, 33
S1_SLOT = 3072
S1_OFF = 0
S2_OFF = 16 * 11 * S1_SLOT
S2T_OFF = S2_OFF + 128 * 16 * 1024
SENT_SIZE = S2T_OFF + 128 * 16 * 128
PROF_OFF = 4 << 20
OOB = 0x40000000

def srd(a, r, p, size):
    a(f"s_mov_b32 s{r}, s{p}\ns_mov_b32 s{r+1}, s{p+1}\ns_mov_b32 s{r+2}, {size}\ns_mov_b32 s{r+3}, 0x20000")

class Prof:
    def __init__(self, on): self.on = on; self.prev = None
    def start(self, a):
        if self.on: a("s_memrealtime s[96:97]\ns_memtime s[100:101]\nv_mov_b32 v255, 0")
    def reset(self): self.prev = None
    def __call__(self, a, k, final=False):
        if not self.on: return
        if self.prev is not None: a(f"v_writelane_b32 v255, s98, {self.prev}")
        a("s_memtime s[98:99]"); a.ins[-1].kind = "other"; a.ins[-1].dst = []
        self.prev = k
        if final:
            a(f"s_waitcnt vmcnt(0) lgkmcnt(0)\nv_writelane_b32 v255, s98, {k}\ns_memtime s[98:99]\ns_memrealtime s[90:91]\ns_waitcnt lgkmcnt(0)")
            a("v_writelane_b32 v255, s98, 60\nv_writelane_b32 v255, s90, 61\nv_writelane_b32 v255, s96, 62\nv_writelane_b32 v255, s100, 63")
            a(f"s_mov_b32 s92, s{pWS}\ns_mov_b32 s93, s{pWS+1}\ns_mov_b32 s94, {PROF_OFF + (1 << 20)}\ns_mov_b32 s95, 0x20000")
            a(f"s_lshl_b32 s98, s2, 10\ns_add_u32 s98, s98, {PROF_OFF}\nv_lshl_add_u32 v254, v0, 2, s98")
            a("buffer_store_dword v255, v254, s[92:95], 0 offen\ns_waitcnt vmcnt(0)")
            self.prev = None
```

```python
import sys
from asmlib import *
from gen_common import *
import gen_a
def build(prof_on=False, with_b=True):
    prof = Prof(prof_on)
    e = Asm()
    prof.start(e)
    e("s_load_dwordx16 s[36:51], s[0:1], 56")
    e("s_cmp_ge_u32 s2, 256\ns_cbranch_scc1 L_END")
    e("s_getpc_b64 s[4:5]\nL_PC:")
    e("v_lshlrev_b32 v1, 7, v0\nv_min_u32 v2, L_LAST-L_PC, v1\nglobal_load_dword v253, v2, s[4:5]")
    e("v_add_u32 v1, 0x8000, v1\nv_min_u32 v2, L_LAST-L_PC, v1\nglobal_load_dword v252, v2, s[4:5]")
    e(f"s_and_b32 s{sX}, s2, 7\ns_lshr_b32 s{sJ}, s2, 3\ns_cmp_ge_u32 s{sJ}, 22\ns_cbranch_scc1 L_A")
    ins = e.ins
    tabs = []
    if with_b:
        import gen_b
        ins = ins + gen_b.gen_b(prof)
        tabs.append(("L_TABB", gen_b.table_b()))
    else:
        ins = ins + Asm()("s_endpgm").ins
    ins = ins + gen_a.gen_a(prof)
    tabs.append(("L_TABA", gen_a.table_a()[[5, 4, 0, 1, 2, 3]]))
    head = open("concat_heads__ssm_conv_s4__linear_attn_block__prompt.s.ref").read().split("\n")
    hdr = [l for l in head if l.startswith(";") and "@launch" not in l and "Override" not in l and "grid=ceil" not in l]
    hdr = hdr[:17]
    out = hdr + ["; @launch grid=(256,1,1) block=(256,1,1) lds=163840", '.amdgcn_target "amdgcn-amd-amdhsa--gfx950"', ".text",
                 f".globl {NAME}", ".p2align 8", f".type {NAME},@function", f"{NAME}:"]
    out.append(text_of(ins))
    out.append("L_END:\ns_endpgm")
    for lab, T in tabs:
        out.append(f".p2align 7\n.type {lab},@object\n{lab}:")
        fl = T.reshape(-1)
        for i in range(0, len(fl), 8):
            out.append(".long " + ", ".join(hex(int(x)) for x in fl[i:i+8]))
        out.append(f".size {lab}, {4*len(fl)}")
    out.append(".type L_LAST,@object\nL_LAST:\n.long 0\n.size L_LAST, 4")
    out.append(f'.section .rodata,"a"\n.p2align 6\n.amdhsa_kernel {NAME}\n  .amdhsa_next_free_vgpr 512\n  .amdhsa_next_free_sgpr 102\n  .amdhsa_accum_offset 256\n  .amdhsa_group_segment_fixed_size 0\n  .amdhsa_kernarg_size 120\n  .amdhsa_user_sgpr_count 2\n  .amdhsa_user_sgpr_kernarg_segment_ptr 1\n  .amdhsa_system_sgpr_workgroup_id_x 1\n.end_amdhsa_kernel')
    return "\n".join(out) + "\n"
if __name__ == "__main__":
    path = sys.argv[1]
    s = build(prof_on="prof" in sys.argv, with_b="noB" not in sys.argv)
    open(path, "w").write(s)
    print("wrote", path, len(s), "bytes")
```

```python
from asmlib import *
from gen_common import *
import numpy as np

SU = 4640
SY = 4160
KGW = 32 * 528
KG = 0
UT = 4 * KGW
U0 = UT + 8 * SU
YT = U0
KA0 = U0 + 8 * SY
KASZ = 3584
A_LDS_END = KA0 + 4 * KASZ
KE, KO, K2, K3 = 0, 1120, 2240, 2752
XC = list(range(9)) + [256, 258, 260, 262, 264, 516, 520, 772, 776, 1032, 1288, 1544, 1800]


def table_a():
    T = np.zeros((6, 64, 4), np.uint32)
    one = 0x3F80
    for l in range(64):
        r, g = l % 16, l // 16
        for bi, (ctr, w) in enumerate([(8, 2), (12, 1), (8, 4), (8, 3)]):
            for dw in range(4):
                v = 0
                for hf in range(2):
                    k = 8 * g + 2 * dw + hf
                    if abs(k - (r + ctr)) <= w:
                        v |= one << (16 * hf)
                T[bi, l, dw] = v
        for dw in range(4):
            v = 0
            for hf in range(2):
                if 8 * g + 2 * dw + hf - r in (12, 13):
                    v |= 0xFFFF << (16 * hf)
            T[4, l, dw] = v
        io, hh = l % 32, l // 32
        rho, h = 4 * (io // 8) + io % 4, (io // 4) % 2
        if rho < 5:
            c = 4 * h + rho
        elif rho < 8:
            c = 256 + 4 * h + 2 * (rho - 5)
        elif rho < 12:
            c = [(516, 772), (520, 776), (1032, 1544), (1288, 1800)][rho - 8][h]
        else:
            c = 0
        T[5, l, 0] = XC.index(c) * 528 + 16 * hh
    return T


vLANE = 1
vP = 2
vTAB5 = 14
vMASK = 18
vKGW, vKGB, vKGA = 22, 23, 24
vT0, vT1, vT2, vT3 = 25, 26, 27, 28
vKW, vK2W, vK3W = 29, 30, 31
vW = 32
vD = 96
vKFA, vKFB, vHK2, vHK3, vUF, vA2, vA3, vYW = 112, 113, 114, 115, 116, 117, 118, 119
vACC = 120
vBXD = 152
vBX = 168
vKFX = 184
vEP = 188
vZ = 192
vDMA, vTR0, vTR1, vTW, vOR, vOS = 196, 197, 198, 199, 200, 201
vTB = 204
vKA = 228
aBAND = 0
aY = 16
aX = 80
aKFS = (184, 16)
aHK2 = 84
aHK3 = 108
aUF = 140
aAP = 168
sW, sAG, sIDX, sJJ, sWI = 68, 69, 70, 71, 77
sLDT, sDSK = 72, 73
sT0, sT1, sT2 = 74, 75, 76
sKG, sU0 = 78, 79
sEX = 80


import os
Y_FLAGS = os.environ.get("YF", "")
EXP = os.environ.get("EXP", "").split(",")
sUB, sTB = 84, 85
DMA_PLAN = [(0, 2), (0, 30), (0, 42), (0, 54), (1, 6), (1, 18), (1, 30), (1, 42)]
TR_PLAN = [(0, 36), (0, 48), (1, 2), (1, 12), (1, 24), (1, 36), (1, 48), (1, 55)]


def cmul(a, z, x, y, t, conj=False):
    n = "neg_hi:[1,0,0]" if conj else "neg_lo:[1,0,0]"
    return [f"v_pk_mul_f32 {V(t,2)}, {V(x,2)}, {V(y,2)} op_sel_hi:[1,0]",
            f"v_pk_fma_f32 {V(z,2)}, {V(x,2)}, {V(y,2)}, {V(t,2)} op_sel:[1,1,0] op_sel_hi:[0,1,1] {n}"]


base = [vW, vW + 30]
AB, E1, E8, G, X, T, S0, S1, U = 0, 2, 4, 6, 8, 10, 12, 14, 16
CC, BB = 18, 20
PK = vW + 60


def ksetup(ch):
    a = Asm()
    p = vP + 6 * ch
    dt = vW + 24
    if ch == 0:
        a(f"s_lshl_b32 s{sT0}, s{sLDT}, 16")
    else:
        a(f"s_and_b32 s{sT0}, s{sLDT}, 0xffff0000")
    a(f"v_mov_b32 v{dt}, s{sT0}\nv_mul_f32 v{dt}, 0x3fb8aa3b, v{dt}\nv_exp_f32 v{dt}, v{dt}")
    for n in range(2):
        b = base[n]
        un = (lambda d, s: f"v_lshlrev_b32 v{d}, 16, v{s}") if n == 0 else (lambda d, s: f"v_and_b32 v{d}, 0xffff0000, v{s}")
        a(un(b + AB, p + 0)); a(un(b + AB + 1, p + 1))
        if n == 0:
            a(f"v_cvt_pk_bf16_f32 v{dt}, v{dt}, v{dt}\nv_lshlrev_b32 v{dt}, 16, v{dt}")
        a(un(b + BB, p + 2)); a(un(b + BB + 1, p + 3))
        a(un(b + CC, p + 4)); a(un(b + CC + 1, p + 5))
    for n in range(2):
        b = base[n]
        a(f"v_mul_f32 v{b+AB}, v{dt}, v{b+AB}\nv_mul_f32 v{b+AB+1}, v{dt}, v{b+AB+1}")
        a(f"v_mul_f32 v{b+AB}, 0x3fb8aa3b, v{b+AB}\nv_mul_f32 v{b+AB+1}, 0x3e22f983, v{b+AB+1}")
    for dst, mul in ((E8, "0x41000000"), (E1, None), (G, "0x43800000")):
        for n in range(2):
            b = base[n]
            if mul is None:
                a(f"v_exp_f32 v{b+U}, v{b+AB}\nv_fract_f32 v{b+T}, v{b+AB+1}")
            else:
                a(f"v_mul_f32 v{b+U}, {mul}, v{b+AB}\nv_mul_f32 v{b+T}, {mul}, v{b+AB+1}")
                a(f"v_exp_f32 v{b+U}, v{b+U}\nv_fract_f32 v{b+T}, v{b+T}")
        for n in range(2):
            b = base[n]
            a(f"v_cos_f32 v{b+dst}, v{b+T}\nv_sin_f32 v{b+dst+1}, v{b+T}")
        if dst == E8:
            for n in range(2):
                b = base[n]
                a(f"v_mul_f32 v{b+BB}, v{dt}, v{b+BB}\nv_mul_f32 v{b+BB+1}, v{dt}, v{b+BB+1}")
                a(f"v_mul_f32 v{b+X}, v{b+CC}, v{b+BB}\nv_mul_f32 v{b+X+1}, v{b+CC}, v{b+BB+1}")
                a(f"v_fma_f32 v{b+X}, -v{b+CC+1}, v{b+BB+1}, v{b+X}\nv_fma_f32 v{b+X+1}, -v{b+CC+1}, v{b+BB}, -v{b+X+1}")
        for n in range(2):
            b = base[n]
            a(f"v_mul_f32 v{b+dst}, v{b+dst}, v{b+U}\nv_mul_f32 v{b+dst+1}, v{b+dst+1}, v{b+U}")
    return a


def kgen(a, ch, prof, hook, shadow):
    cnt = [0]

    def put(reg, row):
        pk = PK + 2 * (cnt[0] & 1); cnt[0] += 1
        a(f"v_cvt_pk_bf16_f32 v{pk}, v{base[0]+reg}, v{base[0]+reg+1}")
        a(f"v_cvt_pk_bf16_f32 v{pk+1}, v{base[1]+reg}, v{base[1]+reg+1}")
        a(f"ds_write_addtid_b32 v{pk} offset:{row*528}\nds_write_addtid_b32 v{pk+1} offset:{row*528+256}")
        hook(a, ch, cnt[0])

    def mul2(z, x, y, conj):
        m = [cmul(a, base[n] + z, base[n] + x, base[n] + y, base[n] + T, conj) for n in range(2)]
        a(m[0][0]); a(m[1][0]); a(m[0][1]); a(m[1][1])
    prof(a, 10 + 5 * ch)
    a(f"v_mov_b32 v{PK}, 0x3f80\nds_write_addtid_b32 v{PK}\nds_write_addtid_b32 v{PK} offset:256")
    cnt[0] = 1
    put(E8, 1)
    mul2(S0, E8, E8, False); put(S0, 2)
    for j in range(3, 32):
        mul2(S0, S0, E8, False); put(S0, j)
    prof(a, 11 + 5 * ch)
    for k in range(16):
        a(f"ds_read_b128 {A(aY+4*k,4)}, v{vKGB} offset:{32*k}")
        if k == 7:
            mul2(U, X, G, True)
    prof(a, 12 + 5 * ch)
    for c in range(9):
        if c:
            mul2(X, X, E1, True)
        put(X, c)
        if c % 2 == 0:
            d = S0 if c == 4 else (S1 if c == 8 else U)
            if c:
                mul2(d, X, G, True)
            put(d, XC.index(256 + c))
    for c in (516, 772):
        mul2(S0, S0, G, True); put(S0, XC.index(c))
        mul2(S1, S1, G, True); put(S1, XC.index(c + 4))
    for c in (1032, 1288, 1544, 1800):
        mul2(S1, S1, G, True); put(S1, XC.index(c))
    prof(a, 13 + 5 * ch)
    for k in range(4):
        a(f"ds_read_b128 {A(aX+4*k,4)}, v{vKGA} offset:{32*k}")
    if ch == 0:
        a(f"s_mul_i32 s{sT2}, s{sW}, {KASZ}\ns_add_u32 s{sT2}, s{sT2}, {KA0}")
    else:
        a(f"s_mul_i32 s{sT2}, s{sW}, {KGW}\ns_add_u32 s{sT2}, s{sT2}, {KG}")
    a(f"v_lshl_add_u32 v{vT0}, v{vLANE}, 4, s{sT2}")
    a(f"v_add_u32 v{vT1}, s{sT2}, v{vKW}\nv_add_u32 v{vT2}, s{sT2}, v{vK2W}\nv_add_u32 v{vT3}, s{sT2}, v{vK3W}")
    if ch == 0:
        a(f"s_lshl_b32 s{sT1}, s{sDSK}, 16")
    else:
        a(f"s_and_b32 s{sT1}, s{sDSK}, 0xffff0000")
    m = Asm()
    sh = list(shadow)
    for k in range(16):
        m(f"v_mfma_f32_32x32x16_bf16 {V(vD,16)}, {A(aX+4*k,4)}, {A(aY+4*k,4)}, {'0' if k == 0 else V(vD,16)}")
        if k < 12:
            m(f"ds_read_b128 {A(aX+4*k+16,4)}, v{vKGA} offset:{32*k+128}")
        if k in (12, 13, 14):
            m(f"ds_write_b128 v{vT0}, {V(vZ,4)} offset:{(k-12)*1024}")
        n = -(-len(sh) // (16 - k))
        dd, sh = take(sh, n); m.ext(dd)
    a.ext(m)
    prof(a, 14 + 5 * ch)
    hook(a, ch, 55)
    a(f"s_mov_b32 exec_hi, 0\nds_write_b128 v{vT0}, {V(vZ,4)} offset:3072\ns_mov_b64 exec, 1")
    a(f"v_add_f32 v{vD}, s{sT1}, v{vD}\ns_mov_b64 exec, -1")
    t = vACC
    d = vD
    a(f"v_cvt_pk_bf16_f32 v{t}, v{d+3}, v{d+2}\nv_cvt_pk_bf16_f32 v{t+1}, v{d+1}, v{d}")
    a(f"v_cvt_pk_bf16_f32 v{t+2}, v{d+4}, v{d+3}\nv_cvt_pk_bf16_f32 v{t+3}, v{d+2}, v{d+1}")
    a(f"ds_write_b64 v{vT1}, {V(t,2)} offset:{KO+512}\nds_write_b64 v{vT1}, {V(t+2,2)} offset:{KE+512}")
    a(f"v_cvt_pk_bf16_f32 v{t+4}, v{d+7}, v{d+6}\nv_cvt_pk_bf16_f32 v{t+5}, v{d+5}, v{d+5}")
    a(f"v_cvt_pk_bf16_f32 v{t+6}, v{d+7}, v{d+7}\nv_cvt_pk_bf16_f32 v{t+7}, v{d+6}, v{d+5}")
    a(f"ds_write_b64 v{vT1}, {V(t+4,2)} offset:{KO}\nds_write_b64 v{vT1}, {V(t+6,2)} offset:{KE}")
    a(f"v_cvt_pk_bf16_f32 v{t+8}, v{d+8}, v{d+9}\nv_cvt_pk_bf16_f32 v{t+9}, v{d+10}, v{d+11}")
    a(f"ds_write_b16 v{vT2}, v{t+8} offset:{K2+256}\nds_write_b16_d16_hi v{vT2}, v{t+8} offset:{K2}")
    a(f"ds_write_b16 v{vT3}, v{t+9} offset:{K3+32}\nds_write_b16 v{vT3}, v{t+9} offset:{K3+32+190}")
    a(f"ds_write_b16_d16_hi v{vT3}, v{t+9} offset:{K3}\nds_write_b16_d16_hi v{vT3}, v{t+9} offset:{K3+190}")
    a(f"v_and_b32 v{t+10}, 0xffff0000, v{t+6}\nv_mov_b32 v{t+11}, v{t+6}\nv_lshrrev_b32 v{t+12}, 16, v{t+1}")
    a(f"v_mov_b32 v{t+13}, s{sT2}")
    a(f"s_mov_b32 exec_lo, 0\ns_mov_b32 exec_hi, 0x80000000")
    a(f"ds_write_b32 v{t+13}, v{t+6} offset:{KE+60}\nds_write_b64 v{t+13}, {V(t+10,2)} offset:{KO+56}")
    a(f"s_mov_b64 exec, 1\nds_write_b32 v{t+13}, v{t+12} offset:{KE+1088}\ns_mov_b64 exec, -1")
    a(f"v_readlane_b32 s{82+ch}, v{t+8}, 63")
    hook(a, ch, 57)


def conv_addr():
    a = Asm()
    for ch in range(2):
        if ch == 0:
            a(f"s_mul_i32 s34, s{sW}, {KASZ}\ns_add_u32 s34, s34, {KA0}")
        else:
            a(f"s_mul_i32 s34, s{sW}, {KGW}")
        kfa, kfb, hk2, hk3, uf, a2, a3, yw = range(vKA + 8 * ch, vKA + 8 * ch + 8)
        a(f"v_add_u32 v{kfa}, s34, v{vKFA}\nv_add_u32 v{kfb}, s34, v{vKFB}\nv_add_u32 v{hk2}, s34, v{vHK2}\nv_add_u32 v{hk3}, s34, v{vHK3}")
        a(f"s_lshl_b32 s34, s{sW}, 1\ns_add_u32 s34, s34, {ch}\ns_mul_i32 s35, s34, {SY}\ns_mul_i32 s34, s34, {SU}")
        a(f"v_add_u32 v{uf}, s34, v{vUF}\nv_add_u32 v{a2}, s34, v{vA2}\nv_add_u32 v{a3}, s34, v{vA3}\nv_add_u32 v{yw}, s35, v{vYW}")
    return a


def rd_kf(ch, s):
    r = aKFS[ch] + 4 * s
    ad, o = (vKA + 8 * ch + 1, 0) if s == 0 else (vKA + 8 * ch, 16 * (16 - s))
    return [f"ds_read2_b32 {A(r,2)}, v{ad} offset0:{o} offset1:{o+1}", f"ds_read2_b32 {A(r+2,2)}, v{ad} offset0:{o+2} offset1:{o+3}"]


def kfx(ch):
    o = [f"s_lshr_b32 s34, s{82+ch}, 16", f"s_and_b32 s35, s{82+ch}, 0xffff0000", "s_or_b32 s34, s34, s35"]
    return o + [f"v_and_b32 v{vKFX+k}, s34, v{vMASK+k}" for k in range(4)]


def conv(a, ch, prof):
    kfa, kfb, hk2, hk3, uf, a2, a3, yw = range(vKA + 8 * ch, vKA + 8 * ch + 8)
    aKF = aKFS[ch]

    def rd_hk2(pi, dl):
        r = aHK2 + 4 * (3 * pi + dl); o = 16 * (2 - dl) + 64 * pi
        return [f"ds_read2_b32 {A(r,2)}, v{hk2} offset0:{o} offset1:{o+1}", f"ds_read2_b32 {A(r+2,2)}, v{hk2} offset0:{o+2} offset1:{o+3}"]

    def rd_hk3(pi, q):
        r = aHK3 + 4 * (4 * pi + q); o = (48 - 16 * q) // 2 + 96 * pi
        return [f"ds_read2_b32 {A(r,2)}, v{hk3} offset0:{o} offset1:{o+1}", f"ds_read2_b32 {A(r+2,2)}, v{hk3} offset0:{o+2} offset1:{o+3}"]
    NR = 7
    rd_uf = lambda n: f"ds_read_b128 {A(aUF+4*(n % NR),4)}, v{uf} offset:{64*n}"
    touched = set()

    def mm(t, x, y):
        c = V(vACC + 4 * t, 4) if t in touched else "0"
        touched.add(t)
        return f"v_mfma_f32_16x16x32_bf16 {V(vACC+4*t,4)}, {x}, {y}, {c}"
    NS = 64
    pre = [[] for _ in range(NS + 8)]
    extra = [[] for _ in range(NS + 8)]
    blk = [[] for _ in range(NS + 8)]
    last = [8 * t + 7 for t in range(8)]
    LA = 5
    head = [rd_uf(n) for n in range(LA)]
    for n in range(NS - LA):
        pre[n].append(rd_uf(n + LA))
    pre[0] += kfx(ch)[:4]; pre[1] += kfx(ch)[4:]
    hk = sum([rd_hk2(pi, dl) for pi in range(2) for dl in range(3)], []) + sum([rd_hk3(pi, q) for pi in range(2) for q in range(4)], [])
    for i, x in enumerate(hk):
        pre[i // 2 if i < 12 else i - 6].append(x)
    if ch == 0:
        for i, x in enumerate(sum([rd_kf(1, s) for s in range(17)], [])):
            pre[24 + i].append(x)
    jobs = [("2", 0), ("2", 1), ("3", 0, 0), ("3", 0, 1), ("2", 2), ("2", 3), ("3", 1, 0), ("3", 1, 1), ("2", 4), ("2", 5)]
    n0 = 7
    for ji, jb in enumerate(jobs):
        ap = aAP + 8 * (ji & 1); bx = vBX + 8 * (ji & 1)
        F = jb[1]
        if jb[0] == "2":
            for om in range(2):
                pre[n0].append(f"ds_read_b128 {A(ap+4*om,4)}, v{a2} offset:{512*F+64*om}")
            for pi in range(2):
                for om in range(2):
                    extra[n0 + 2].append(f"v_mfma_f32_16x16x32_bf16 {V(vBXD+8*pi+4*om,4)}, {A(ap+4*om,4)}, {A(aBAND+4*pi,4)}, 0")
            for pi in range(2):
                for q in range(4):
                    pre[n0 + 4 + pi].append(f"v_cvt_pk_bf16_f32 v{bx+4*pi+q}, v{vBXD+8*pi+2*q}, v{vBXD+8*pi+2*q+1}")
                for dl in range(3):
                    t = F + dl + 2
                    if t < 8:
                        extra[n0 + 5 + pi].append((t, V(bx + 4 * pi, 4), A(aHK2 + 4 * (3 * pi + dl), 4)))
                        last[t] = max(last[t], n0 + 5 + pi)
            n0 += 5
        else:
            pi = jb[2]
            for om in range(2):
                pre[n0].append(f"ds_read_b128 {A(ap+4*om,4)}, v{a3} offset:{1024*F+128*om+16*pi}")
                extra[n0 + 2].append(f"v_mfma_f32_16x16x32_bf16 {V(vBXD+4*om,4)}, {A(ap+4*om,4)}, {A(aBAND+8+4*pi,4)}, 0")
            for q in range(4):
                pre[n0 + 4].append(f"v_cvt_pk_bf16_f32 v{bx+q}, v{vBXD+2*q}, v{vBXD+2*q+1}")
            for a2_ in range(4):
                q = a2_ - 2 * F
                if q >= 0:
                    extra[n0 + 5].append((a2_ + 4, V(bx, 4), A(aHK3 + 4 * (4 * pi + q), 4)))
                    last[a2_ + 4] = max(last[a2_ + 4], n0 + 5)
            n0 += 5
    for t in range(8):
        n = last[t] + 3
        e = vEP + 2 * (t & 1)
        pre[n] += [f"v_cvt_pk_bf16_f32 v{e}, v{vACC+4*t}, v{vACC+4*t+1}", f"v_cvt_pk_bf16_f32 v{e+1}, v{vACC+4*t+2}, v{vACC+4*t+3}",
                   I(f"ds_write_b64 v{yw}, {V(e,2)} offset:{512*t}", tag=f"y{ch}{t}")]
        if ch == 1:
            w = Asm(); w.wait(f"y1{t}"); w("s_barrier")
            tb = vTB + 4 * (t & 1)
            w(f"ds_read_b64_tr_b16 {V(tb,2)}, v{vOR} offset:{512*t}\nds_read_b64_tr_b16 {V(tb+2,2)}, v{vOR} offset:{512*t+4*SY}", tag=f"yr{t}")
            pre[n + 1] += w.ins
            pre[n + 3] += [f"s_mov_b32 s{sT0}, {256*2304*t}", f"buffer_store_dwordx4 {V(tb,4)}, v{vOS}, s[20:23], s{sT0} offen {Y_FLAGS}"]
    emit = lambda x: a(x) if isinstance(x, str) else a.ins.append(x)
    for s in head:
        a(s)
    for n in range(NS + 8):
        ms = []
        if ch == 0 and n % 8 == 0: prof(a, 20 + n // 8)
        if n < NS:
            phi = n - 7
            for s in list(range(17)) + [32]:
                if (phi + s) % 8 == 0 and 0 <= (phi + s) // 8 < 8:
                    ms.append(((phi + s) // 8, V(vKFX, 4) if s == 32 else A(aKF + 4 * s, 4), A(aUF + 4 * (n % NR), 4)))
        ms += extra[n]
        fill = list(pre[n])
        per = -(-len(fill) // max(1, len(ms)))
        for m in ms:
            a(m if isinstance(m, str) else mm(*m))
            for _ in range(per):
                if fill:
                    emit(fill.pop(0))
        for f in fill + blk[n]:
            emit(f)


def gen_a(prof):
    a = Asm()
    a("L_A:")
    a("s_load_dwordx16 s[52:67], s[0:1], 0")
    a(f"s_mov_b32 s{sJJ}, s{sJ}\ns_lshr_b32 s{sT0}, s{sX}, 2\ns_sub_u32 s{sAG}, s{sX}, s{sT0}\ns_lshl_b32 s{sAG}, s{sAG}, 3")
    a(f"s_mul_i32 s{sT1}, s{sT0}, 12\ns_add_u32 s{sT1}, s{sT1}, 48\ns_cmp_eq_u32 s{sNA}, 16\ns_cselect_b32 s{sAG}, s{sT1}, s{sAG}\ns_add_u32 s{sAG}, s{sAG}, s{sJJ}")
    a(f"s_lshl_b32 s{sIDX}, s{sT0}, 2\ns_add_u32 s{sIDX}, s{sIDX}, s{sJJ}\ns_sub_u32 s{sIDX}, s{sIDX}, 12")
    a(f"v_lshrrev_b32 v{vT0}, 6, v0\nv_and_b32 v{vLANE}, 63, v0\nv_readfirstlane_b32 s{sW}, v{vT0}")
    a(f"s_lshl_b32 s{sT0}, s{sAG}, 11\ns_lshl_b32 s{sT1}, s{sW}, 9\ns_add_u32 s{sT0}, s{sT0}, s{sT1}")
    a(f"v_lshl_add_u32 v{vT1}, v{vLANE}, 2, s{sT0}")
    a(f"v_lshlrev_b32 v{vT2}, 4, v{vLANE}")
    a(f"s_add_u32 s6, s4, L_TABA-L_PC\ns_addc_u32 s7, s5, 0")
    prof(a, 30)
    a("s_waitcnt lgkmcnt(0)")
    prof(a, 31)
    a(f"s_cmp_ge_u32 s{sJJ}, 12\ns_cbranch_scc1 L_SPARE")
    a(f"s_lshl_b32 s{sT0}, s{sAG}, 4\ns_lshl_b32 s{sT1}, s{sW}, 2\ns_add_u32 s{sT0}, s{sT0}, s{sT1}")
    a(f"s_load_dword s{sLDT}, s[{pLOGDT}:{pLOGDT+1}], s{sT0}\ns_load_dword s{sDSK}, s[{pDSKIP}:{pDSKIP+1}], s{sT0}")
    for ch in range(2):
        for k in range(6):
            a(f"global_load_dword v{vP+6*ch+k}, v{vT1}, s[{54+2*k}:{55+2*k}] offset:{256*ch}")
    a(f"global_load_dwordx4 {V(vTAB5,4)}, v{vT2}, s[6:7]")
    a(f"global_load_dwordx4 {V(vMASK,4)}, v{vT2}, s[6:7] offset:1024")
    a(f"s_add_u32 s6, s6, 2048\ns_addc_u32 s7, s7, 0")
    for k in range(4):
        a(f"global_load_dwordx4 {A(aBAND+4*k,4)}, v{vT2}, s[6:7] offset:{1024*k}")
    prof(a, 32)
    if "nopf" not in EXP:
        srd(a, 12, pW, 576 * 3456)
        t, ln, blk = 34, 35, sEX
        a(f"s_lshl_b32 s{t}, s{sJ}, 2\ns_add_u32 s{t}, s{t}, s{sW}\nv_mul_u32_u24 v{vW}, 3456, v{vLANE}")
        a(f"s_and_b32 s{ln}, s{t}, 1\ns_mul_i32 s{ln}, s{ln}, 9\ns_add_u32 s{ln}, s{ln}, 9\ns_lshr_b32 s{blk}, s{t}, 1")
        a(f"s_sub_u32 s{sT0}, s{blk}, 9\ns_mul_i32 s{sT0}, s{sT0}, 3\ns_add_u32 s{sT0}, s{sT0}, 2\ns_and_b32 s{sT1}, s{sX}, 4\ns_lshl_b32 s{sT1}, s{sT1}, 1")
        a(f"s_cmp_lt_u32 s{t}, 18\ns_cselect_b32 s{blk}, s{blk}, s{sT0}\ns_cselect_b32 s{sT1}, 4, s{sT1}\ns_add_u32 s{ln}, s{ln}, s{sT1}")
        a(f"s_sub_u32 s{sT0}, s{t}, 24\ns_cmp_ge_u32 s{t}, 24\ns_cselect_b32 s{blk}, s{sT0}, s{blk}\ns_cselect_b32 s{ln}, 4, s{ln}")
        a(f"s_mul_i32 s{blk}, s{blk}, {64*27}\ns_add_u32 s{ln}, s{ln}, s{blk}\ns_lshl_b32 s{ln}, s{ln}, 7")
        pf_load(a, vW, 12, ln)
    prof(a, 0)
    srd(a, 16, 52, 2048 * 1152)
    srd(a, 20, pOUT, 2048 * 2304)
    L = vLANE
    t0, t1, t2, t3 = vW, vW + 1, vW + 2, vW + 3
    r16, g = vW + 4, vW + 5
    a(f"v_and_b32 v{r16}, 15, v{L}\nv_lshrrev_b32 v{g}, 4, v{L}")
    a(f"s_mul_i32 s{sT0}, s{sW}, {KGW}\ns_mov_b32 s{sKG}, s{sT0}\ns_mov_b32 m0, s{sT0}")
    a(f"v_and_b32 v{t0}, 31, v{L}\nv_lshrrev_b32 v{t1}, 5, v{L}")
    a(f"v_mul_u32_u24 v{t2}, 528, v{t0}\nv_lshl_add_u32 v{t2}, v{t1}, 4, v{t2}\nv_add_u32 v{vKGB}, s{sT0}, v{t2}")
    a(f"v_lshlrev_b32 v{t2}, 4, v{t0}\nv_lshl_add_u32 v{t2}, v{t1}, 3, v{t2}\nv_sub_u32 v{vKW}, 568, v{t2}")
    a(f"v_lshlrev_b32 v{t2}, 1, v{L}\nv_sub_u32 v{vK2W}, 190, v{t2}")
    a(f"v_and_b32 v{t2}, 1, v{t0}\nv_mul_u32_u24 v{t2}, 384, v{t2}\nv_and_b32 v{t3}, 30, v{t0}\nv_add_u32 v{t2}, v{t2}, v{t3}")
    a(f"v_lshl_add_u32 v{t2}, v{t1}, 6, v{t2}\nv_sub_u32 v{vK3W}, {384+96}, v{t2}")
    a(f"v_and_b32 v{t0}, 1, v{r16}\nv_add_u32 v{t1}, v{r16}, v{t0}\nv_lshlrev_b32 v{t2}, 3, v{g}\nv_sub_u32 v{t1}, v{t2}, v{t1}")
    a(f"v_lshlrev_b32 v{t1}, 1, v{t1}")
    a(f"v_mul_u32_u24 v{t2}, {KO-KE}, v{t0}\nv_add3_u32 v{vKFA}, v{t1}, v{t2}, 32\nv_add_u32 v{vKFB}, 1024, v{vKFA}")
    a(f"v_mul_u32_u24 v{t2}, 192, v{t0}\nv_add_u32 v{t2}, {K3+32}, v{t2}\nv_add_u32 v{vHK3}, v{t1}, v{t2}")
    a(f"v_lshlrev_b32 v{t1}, 4, v{g}\nv_lshlrev_b32 v{t2}, 2, v{r16}\nv_sub_u32 v{t2}, v{t1}, v{t2}\nv_add_u32 v{vHK2}, {K2+60}, v{t2}")
    a(f"v_lshl_add_u32 v{t2}, v{r16}, 5, v{t1}\nv_add_u32 v{vUF}, {UT+32}, v{t2}")
    a(f"v_lshrrev_b32 v{t2}, 2, v{r16}\nv_and_b32 v{t3}, 3, v{r16}\nv_lshl_add_u32 v{t0}, v{t2}, 3, v{t3}")
    a(f"v_lshl_add_u32 v{vA2}, v{t0}, 4, v{t1}\nv_add_u32 v{vA2}, {UT+464}, v{vA2}")
    a(f"v_lshl_add_u32 v{vA3}, v{t0}, 5, v{t1}\nv_add_u32 v{vA3}, {UT+464}, v{vA3}")
    a(f"v_lshlrev_b32 v{t0}, 3, v{g}\nv_lshl_add_u32 v{t0}, v{r16}, 5, v{t0}\nv_add_u32 v{vYW}, {YT}, v{t0}")
    a(f"v_lshrrev_b32 v{t0}, 2, v{L}\nv_and_b32 v{t0}, 4, v{t0}\nv_xor_b32 v{t0}, v{t0}, v{L}\nv_mul_u32_u24 v{t0}, 1152, v{t0}")
    a(f"s_mul_i32 s{sT0}, s{sW}, {512*1152}\ns_lshl_b32 s{sT1}, s{sAG}, 4\ns_add_u32 s{sT0}, s{sT0}, s{sT1}\nv_add_u32 v{vDMA}, s{sT0}, v{t0}")
    a(f"v_lshrrev_b32 v{t0}, 1, v{g}\nv_lshlrev_b32 v{t0}, 5, v{t0}\nv_lshl_add_u32 v{t0}, v{t3}, 3, v{t0}\nv_add_u32 v{t0}, v{t0}, v{t2}")
    a(f"v_and_b32 v{t1}, 2, v{t3}\nv_lshlrev_b32 v{t1}, 1, v{t1}")
    a(f"v_xor_b32 v{vTR0}, v{t0}, v{t1}\nv_xor_b32 v{vTR1}, 4, v{vTR0}")
    a(f"s_lshl_b32 s{sT0}, s{sW}, 13\ns_add_u32 s{sT0}, s{sT0}, {U0}")
    a(f"v_and_b32 v{t1}, 1, v{g}\nv_lshl_add_u32 v{t0}, v{t1}, 3, s{sT0}")
    a(f"v_lshl_add_u32 v{vTR0}, v{vTR0}, 4, v{t0}\nv_lshl_add_u32 v{vTR1}, v{vTR1}, 4, v{t0}")
    a(f"v_lshl_add_u32 v{t1}, v{t1}, 2, v{t3}\nv_mul_u32_u24 v{t1}, {SU}, v{t1}")
    a(f"v_lshrrev_b32 v{t0}, 1, v{g}\nv_lshlrev_b32 v{t0}, 6, v{t0}\nv_lshl_add_u32 v{t0}, v{t2}, 4, v{t0}")
    a(f"s_lshl_b32 s{sT0}, s{sW}, 10\ns_add_u32 s{sT0}, s{sT0}, {UT+512}\nv_add3_u32 v{vTW}, v{t0}, v{t1}, s{sT0}")
    a(f"v_mul_u32_u24 v{t0}, {SY}, v{t2}\nv_lshl_add_u32 v{t0}, v{g}, 5, v{t0}\nv_lshl_add_u32 v{t0}, v{t3}, 3, v{t0}")
    a(f"s_lshl_b32 s{sT0}, s{sW}, 7\ns_add_u32 s{sT0}, s{sT0}, {YT}\nv_add_u32 v{vOR}, s{sT0}, v{t0}")
    a(f"s_mul_i32 s{sT0}, s{sW}, {64*2304}\ns_lshl_b32 s{sT1}, s{sAG}, 4\ns_add_u32 s{sT0}, s{sT0}, s{sT1}")
    a(f"v_mul_u32_u24 v{t0}, 2304, v{L}\nv_add_u32 v{vOS}, s{sT0}, v{t0}")
    a(f"v_mov_b32 v{vZ}, 0\nv_mov_b32 v{vZ+1}, 0\nv_mov_b32 v{vZ+2}, 0\nv_mov_b32 v{vZ+3}, 0")
    a(f"v_lshrrev_b32 v{t0}, 5, v{L}\nv_mul_u32_u24 v{t0}, {SU}, v{t0}\nv_and_b32 v{t1}, 31, v{L}\nv_lshl_add_u32 v{t0}, v{t1}, 4, v{t0}")
    a(f"s_mul_i32 s{sT0}, s{sW}, {2*SU}\nv_add_u32 v{t0}, s{sT0}, v{t0}\nv_add_u32 v{t0}, {UT}, v{t0}\nds_write_b128 v{t0}, {V(vZ,4)}")
    a(f"s_mul_i32 s{sT0}, s{sW}, {KGW}\ns_add_u32 s{sT0}, s{sT0}, {KG}\nv_add_u32 v{vKGA}, s{sT0}, v{vTAB5}")
    a("s_waitcnt lgkmcnt(0)")
    prof(a, 1)

    a(f"s_lshl_b32 s{sU0}, s{sW}, 13\ns_add_u32 s{sU0}, s{sU0}, {U0}")
    a(f"s_and_b32 s{sUB}, s{sJJ}, 7\ns_mov_b32 s{sTB}, s{sUB}\ns_lshl_b32 s34, s{sUB}, 7\nv_add_u32 v{vTW}, s34, v{vTW}")
    DMA_AT = DMA_PLAN
    TR_AT = TR_PLAN
    kf0 = sum([rd_kf(0, s_) for s_ in range(17)], [])

    def hook(a, ch, n):
        if (ch, n) in DMA_AT:
            i = DMA_AT.index((ch, n))
            a(f"s_add_u32 m0, s{sU0}, {1024*i}\ns_mul_i32 s34, s{sUB}, {64*1152}")
            a(f"buffer_load_dwordx4 v{vDMA}, s[16:19], s34 offen lds", tag=f"u{i}")
            a(f"s_mov_b32 m0, s{sKG}\ns_add_u32 s{sUB}, s{sUB}, 1\ns_and_b32 s{sUB}, s{sUB}, 7")
        if (ch, n) in TR_AT:
            i = TR_AT.index((ch, n)); a.wait(f"u{i}")
            a(f"ds_read_b64_tr_b16 {V(vTB,2)}, v{vTR0} offset:{1024*i}\nds_read_b64_tr_b16 {V(vTB+2,2)}, v{vTR1} offset:{1024*i}")
        if (ch, n - 2) in TR_AT:
            a(f"ds_write_b128 v{vTW}, {V(vTB,4)}")
            a(f"s_cmp_eq_u32 s{sTB}, 7\ns_cselect_b32 s34, 0x400, 0\ns_sub_u32 s34, 0x80, s34\ns_add_u32 s{sTB}, s{sTB}, 1\nv_add_u32 v{vTW}, s34, v{vTW}")
        if ch == 1 and kf0 and n < 55:
            a(kf0.pop(0))
    a.ext(ksetup(0))
    kgen(a, 0, prof, hook, ksetup(1).ins)
    a.ext(conv_addr())
    prof(a, 2)
    kgen(a, 1, prof, hook, [])
    assert not kf0
    prof(a, 3)
    a("s_waitcnt lgkmcnt(0)\ns_barrier")
    prof(a, 4)
    conv(a, 0, prof)
    prof(a, 5)
    conv(a, 1, prof)
    prof(a, 7, final=True)
    a("s_endpgm")
    main = finish(a)
    b = Asm()
    b("L_SPARE:")
    srd(b, 16, pWS, S2_OFF)
    srd(b, 20, pWS, SENT_SIZE)
    srd(b, 24, pDBG, 256)
    b(f"v_mov_b32 v{vZ}, -1\nv_mov_b32 v{vZ+1}, -1\nv_mov_b32 v{vZ+2}, -1\nv_mov_b32 v{vZ+3}, -1\nv_mov_b32 v{vT0}, 1\nv_mov_b32 v{vT1}, 0")
    b(f"s_lshl_b32 s{sT2}, s{sIDX}, 2\ns_add_u32 s{sT2}, s{sT2}, s{sW}")
    for part, (r, n, base) in enumerate(((16, 17, 0), (20, 72, S2_OFF))):
        b(f"s_mul_i32 s{sT0}, s{sT2}, {n*1024}\ns_add_u32 s{sT0}, s{sT0}, {base}\ns_add_u32 s{sT1}, s{sT0}, {n*1024}")
        b(f"L_FILL{part}:\nbuffer_store_dwordx4 {V(vZ,4)}, v{vT2}, s[{r}:{r+3}], s{sT0} offen sc1")
        b(f"s_add_u32 s{sT0}, s{sT0}, 1024\ns_cmp_lt_u32 s{sT0}, s{sT1}\ns_cbranch_scc1 L_FILL{part}")
        b(f"s_waitcnt vmcnt(0)\ns_barrier\ns_cmp_lg_u32 s{sW}, 0\ns_cbranch_scc1 L_FILLED{part}")
        b(f"s_mov_b64 exec, 1\nbuffer_atomic_add v{vT0}, v{vT1}, s[24:27], 0 offen offset:{64*part} sc1\ns_mov_b64 exec, -1\nL_FILLED{part}:")
    b("s_endpgm")
    return main + finish(b)
```

```python
from asmlib import *
from gen_common import *
import numpy as np

XR = 0
WQ = 0
WR = 73728
EX = WR + 16384
WO = WR
FM = 147456
FDUMMY = FM + 4608
NX, NW = 3, 4
PAIRS = [[(0, 2), (0, 3)], [(0, 4), (1, 4)], [(1, 2), (1, 3)], [(2, 3), (2, 4)]]


def head_of(e):
    return 0 if (e < 18 or e == 36) else 1


def table_b():
    T = np.zeros((256, 4), np.uint32)
    T[:, 0] = OOB; T[:, 1] = OOB
    cons = []
    for w in range(4):
        for q in range(2):
            kt, vt = PAIRS[w][q]
            for l in range(64):
                c, g = l % 16, l // 16
                e, ch = 16 * vt + c - 36, 4 * kt + g
                if 0 <= e < 38 and 4 * head_of(e) <= ch <= 4 * head_of(e) + 4:
                    T[64 * w + l, q] = 16 * len(cons)
                    cons.append((e, ch))
    assert len(cons) == 190
    for t in range(256):
        if t < 190:
            e, ch = cons[t]
            fl = 3 if ch != 4 else (1 if head_of(e) == 0 else 2)
            T[t, 2] = FM + 96 * e + 8 * ch; T[t, 3] = fl
        else:
            T[t, 2] = FDUMMY + 8 * (t - 190); T[t, 3] = 0
    return T


vQD = 1
vRO = 2
vOL, vOLT, vOUT, vCK = 6, 7, 8, 9
vL, vI, vG, vX = 10, 11, 12, 13
vDQ = 16
vXR = 17
vXD = 176
vDK = 182
vRK = 22
vRQ = 27
vEW, vGA = 30, 31
vTAB = 32
vT = 36
vONE = 42
vER = 44
vDO = 48
vFR, vFD, vS2, vS2T, vDBG, vDBA = 50, 51, 52, 53, 54, 55
vACC = 56
vFB = 116
vPH = 156
vPK = 172
vKD = 104
vAQ = 186
vFQ = 116
vGAT = 56
vPQ = 222
vFA = 156
vON = 56
vOF = 104
vR = 124
vEPS = 240
vA2 = 12
vWV = 44
vOM = 76
sW, sRB, sP, sRB2, sCB, sG2 = 52, 53, 54, 55, 56, 57
sT = 58
sB, sMX = 64, 65
sM0 = 66
sMK4, sMK89, sMG0 = 68, 70, 72
sLOG, sEPS = 74, 76
sRETRY = 78
sSO = 79
sSX, sSK, sMW = 80, 81, 82
sPC, sPQ, sQK = 83, 84, 85
sWB, sOB = 86, 64


OL_START, OL_PER, OL_AHEAD = 96, 0.3, 2
GS = 12
import os
OUT_FLAGS = os.environ.get("OUTF", "")
EXP = os.environ.get('EXP', '').split(',')


def xreg(s, tau):
    return (3 * s + tau) * 4


def mneed(s):
    return -(-(5 * s + 5) // 4)


def phi4(a, src, dst, tmp, keep=None, pk=False):
    e = tmp
    if pk:
        a(f"v_pk_mul_f32 {V(e,2)}, {V(src,2)}, {S(sLOG,2)}\nv_pk_mul_f32 {V(e+2,2)}, {V(src+2,2)}, {S(sLOG,2)}")
    else:
        for i in range(4):
            a(f"v_mul_f32 v{e+i}, s{sLOG}, v{src+i}")
    m = src if keep is None else tmp + 4
    for i in range(4):
        a(f"v_exp_f32_e64 v{e+i}, v{e+i} clamp\nv_max_f32 v{m+i}, s{sEPS}, v{src+i}")
    if pk:
        a(f"v_pk_add_f32 {V(e,2)}, {V(e,2)}, {V(m,2)}\nv_pk_add_f32 {V(e+2,2)}, {V(e+2,2)}, {V(m+2,2)}")
    else:
        for i in range(4):
            a(f"v_add_f32 v{e+i}, v{e+i}, v{m+i}")
    if keep is not None:
        for i in range(4):
            a(f"v_cndmask_b32 v{e+i}, v{src+i}, v{e+i}, {S(keep,2)}")
    a(f"v_cvt_pk_bf16_f32 v{dst}, v{e}, v{e+1}\nv_cvt_pk_bf16_f32 v{dst+1}, v{e+2}, v{e+3}")


def spread(fg, bg):
    fg = fg.ins if isinstance(fg, Asm) else fg
    out, k = [], 0
    for n, i in enumerate(fg):
        out.append(i)
        while k < len(bg) and (k + 1) * len(fg) <= (n + 1) * len(bg):
            out.append(bg[k]); k += 1
    return out + bg[k:]


def gen_b(prof):
    a = Asm()
    slow = Asm()
    t0, t1, t2, t3, t4, t5 = range(vT, vT + 6)
    a(f"s_mul_i32 s{sRB}, s6, 3\ns_lshr_b32 s{sT}, s{sJ}, 3\ns_add_u32 s{sRB}, s{sRB}, s{sT}")
    a(f"s_and_b32 s{sT}, s{sJ}, 7\ns_lshr_b32 s{sP}, s{sX}, 2\ns_lshl_b32 s{sP}, s{sP}, 3\ns_add_u32 s{sP}, s{sP}, s{sT}")
    a(f"v_lshrrev_b32 v{t0}, 6, v0\nv_bfe_u32 v{vG}, v0, 4, 2\nv_bfe_u32 v{t1}, v0, 3, 3\nv_readfirstlane_b32 s{sW}, v{t0}")
    a(f"s_mul_i32 s{sT}, s{sRB}, 192\nv_lshl_add_u32 v{t1}, v{t0}, 4, v{t1}\nv_add_u32 v{t1}, s{sT}, v{t1}\nv_mul_u32_u24 v{t1}, 1152, v{t1}")
    a(f"v_and_b32 v{t2}, 7, v0\nv_xor_b32 v{t2}, v{t2}, v{vG}\nv_lshl_add_u32 v{vXD}, v{t2}, 4, v{t1}")
    a(f"v_xor_b32 v{t2}, 4, v{t2}\nv_lshl_add_u32 v{vXD+1}, v{t2}, 4, v{t1}\nv_add_u32 v{vXD+1}, {8*1152-1024}, v{vXD+1}")
    a(f"v_add_u32 v{vXD+2}, {64*1152-2048}, v{vXD}\nv_add_u32 v{vXD+3}, {64*1152-2048}, v{vXD+1}")
    a(f"v_add_u32 v{vXD+4}, {128*1152}, v{vXD}\nv_add_u32 v{vXD+5}, {128*1152}, v{vXD+1}")
    a(f"s_mul_i32 s{sMX}, s{sW}, 6144\ns_lshl_b32 s{sMW}, s{sW}, 12")
    a(f"s_and_b32 s{sT}, s{sP}, 1\ns_lshl_b32 s{sT}, s{sT}, 3\ns_mul_i32 s{sT+1}, s{sP}, 72\ns_sub_u32 s{sT+1}, s{sT+1}, s{sT}")
    a(f"s_and_b32 s{sB}, s{sT+1}, 127\ns_sub_u32 s{sB}, 128, s{sB}\ns_lshr_b32 s{sB}, s{sB}, 4\ns_min_u32 s{sB}, s{sB}, 4")
    a(f"s_sub_u32 s{sT+2}, 5, s{sB}\ns_mov_b32 s{sT+3}, 3456")
    a(f"s_lshr_b32 s{sPC}, s{sJ}, 3\ns_mul_i32 s{sPC}, s{sPC}, 3\ns_and_b32 s{sPQ}, s{sJ}, 7\ns_add_u32 s{sPC}, s{sPC}, s{sPQ}")
    a(f"s_sub_u32 s{sPQ}, s{sPC}, 9\ns_cmp_ge_u32 s{sPC}, 9\ns_cselect_b32 s{sPC}, s{sPQ}, s{sPC}\ns_mov_b32 s{sPQ}, s{sPC}")
    a(f"s_lshl_b32 s{sSX}, s{sPC}, 7\ns_mul_i32 s{sSK}, s{sPC}, {64*3456}")
    prof(a, 30)
    a("s_waitcnt lgkmcnt(0)")
    prof(a, 31)
    srd(a, 8, pX, 2048 * 1152)
    srd(a, 12, pW, 576 * 3456)

    def dx(P):
        o = []
        for n in range(6):
            x = Asm()
            if n % 4 == 0:
                x(f"s_add_u32 m0, s{sMX}, {XR + (P % NX) * 24576 + 1024 * n}")
            if n == 0 and P:
                x(f"s_add_u32 s{sPC}, s{sPC}, 1\ns_cmp_eq_u32 s{sPC}, 9\ns_cselect_b32 s{sPC}, 0, s{sPC}\ns_lshl_b32 s{sSX}, s{sPC}, 7")
            x(f"buffer_load_dwordx4 v{vXD+n}, s[8:11], s{sSX} offen offset:{1024*(n % 4)} lds", tag=f"x{P}")
            o.append(x.ins)
        return o

    def dk(P):
        o = []
        for m in range(4):
            x = Asm()
            if m == 0:
                x(f"s_add_u32 m0, s{sMW}, {WR + (P % NW) * 16384}")
                if P:
                    x(f"s_mul_i32 s{sSK}, s{sPC}, {64*3456}")
            x(f"buffer_load_dwordx4 v{vDK+m}, s[12:15], s{sSK} offen offset:{1024*m} lds", tag=f"k{P}")
            o.append(x.ins)
        return o

    def dquad(srdreg, vaddr, pre, sbase, so, ldsbase, k, tag):
        x = Asm()
        if k == 16:
            x(f"s_lshr_b32 s{sSO}, s{sMW}, 1\ns_add_u32 m0, s{sSO}, {ldsbase + 65536}")
        elif k % 4 == 0:
            x(f"s_add_u32 m0, s{sMW}, {ldsbase + 4096 * k}")
        x(pre)
        so -= 1024 * (k % 4)
        if sbase is None:
            x(f"s_mov_b32 s{sSO}, {so}")
        elif so:
            x(f"s_add_u32 s{sSO}, s{sbase}, {so & 0xffffffff}")
        x(f"buffer_load_dwordx4 v{vaddr}, s[{srdreg}:{srdreg+3}], s{sSO if so or sbase is None else sbase} offen offset:{1024*(k % 4)} lds", tag=tag)
        return x.ins

    def dq(k):
        pre = ""
        if k % 2 == 0:
            if k:
                pre = f"s_add_u32 s{sPQ}, s{sPQ}, 1\ns_cmp_eq_u32 s{sPQ}, 9\ns_cselect_b32 s{sPQ}, 0, s{sPQ}\n"
            pre += f"s_mul_i32 s{sQK}, s{sPQ}, {64*3456}\ns_add_u32 s{sQK}, s{sQK}, 2048"
        return dquad(92, vDQ, pre, sQK, 32 * 3456 * (k & 1), WQ, k, f"q{k}")
    qoff = lambda k, rd: 16384 * (k >> 2) + 8192 * rd + 1024 * (k & 3) if k < 16 else 4096 * rd + 1024 * (k & 1)

    def slot_to_col(dst, q, e, tmp):
        a(f"v_mov_b32 v{tmp}, s{sB}\nv_mul_u32_u24 v{dst}, v{q}, v{tmp}\nv_add_u32 v{dst}, v{dst}, v{e}")
        a(f"v_cmp_eq_u32 vcc, 0, v{q}\nv_mov_b32 v{q}, s{sT+2}\nv_cndmask_b32 v{tmp}, v{q}, v{tmp}, vcc\nv_cmp_lt_u32 vcc, v{e}, v{tmp}")
    for x in dx(0):
        a.ext(x)
    prof(a, 32)
    a(f"v_bfe_u32 v{t1}, v0, 2, 2\nv_xor_b32 v{t1}, v{t1}, v{vG}")
    a(f"v_and_b32 v{t2}, 3, v0\nv_bfe_u32 v{t3}, v0, 6, 1\nv_lshlrev_b32 v{t3}, 1, v{t3}\nv_xor_b32 v{t2}, v{t2}, v{t3}")
    a(f"v_lshrrev_b32 v{t3}, 1, v{t1}\nv_and_b32 v{t1}, 1, v{t1}\nv_mul_u32_u24 v{t3}, 1152, v{t3}")
    slot_to_col(t4, t1, t2, t5)
    a(f"v_lshl_add_u32 v{t3}, v{t4}, 4, v{t3}\nv_lshl_add_u32 v{t0}, v{t0}, 3, v{vG}\nv_mad_u32_u24 v{t3}, v{t0}, s{sT+3}, v{t3}")
    a(f"s_add_u32 s{sT+4}, s{sT+1}, 1152\nv_add_u32 v{t3}, s{sT+4}, v{t3}\nv_mov_b32 v{t4}, {OOB}\nv_cndmask_b32 v{vDK}, v{t4}, v{t3}, vcc")
    for m in range(1, 4):
        a(f"v_add_u32 v{vDK+m}, {(32*(m >> 1)+4*(m & 1))*3456-1024*m}, v{vDK}")
    prof(a, 33)
    for x in dk(0):
        a.ext(x)
    prof(a, 34)
    main, a = a, Asm()
    a(f"v_and_b32 v{vL}, 63, v0\nv_and_b32 v{vI}, 15, v0")
    a(f"v_lshrrev_b32 v{t0}, 1, v{vI}\nv_xor_b32 v{t0}, v{t0}, v{vG}\nv_lshl_add_u32 v{t1}, v{vI}, 7, s{sMX}")
    a(f"v_lshl_add_u32 v{vXR}, v{t0}, 4, v{t1}\nv_xor_b32 v{vXR+1}, 64, v{vXR}")
    a(f"v_lshrrev_b32 v{t0}, 2, v{vL}\nv_and_b32 v{t1}, 3, v{vL}")
    u0, u1, u2, u3, u4, u5, u6 = range(vPH, vPH + 7)
    a(f"v_and_b32 v{u0}, 3, v{t0}\nv_and_b32 v{u1}, 1, v{vG}\nv_lshlrev_b32 v{u1}, 1, v{u1}\nv_bfe_u32 v{u5}, v{t0}, 1, 1")

    def col_to_slot(cc):
        a(f"v_lshl_add_u32 v{u2}, v{cc}, 3, s{sT}\nv_and_b32 v{u4}, 8, v{u2}\nv_lshrrev_b32 v{u3}, 4, v{u2}")
        a(f"v_cmp_le_u32 vcc, s{sB}, v{u3}\nv_subrev_u32 v{u2}, s{sB}, v{u3}\nv_cndmask_b32 v{u3}, v{u3}, v{u2}, vcc\nv_cndmask_b32 v{u2}, 0, 1, vcc")
        a(f"v_xor_b32 v{u3}, v{u3}, v{u1}\nv_lshl_add_u32 v{u3}, v{u3}, 4, v{u4}")
    for T in range(5):
        if T < 2:
            a(f"v_add_u32 v{t3}, {4*T}, v{t1}\nv_mov_b32 v{t4}, 0")
        elif T == 2:
            a(f"v_cmp_eq_u32 vcc, 0, v{t1}\nv_add_u32 v{t3}, -1, v{t1}\nv_cndmask_b32 v{t3}, v{t3}, 8, vcc\nv_cndmask_b32 v{t4}, 2, 0, vcc")
        else:
            a(f"v_add_u32 v{t3}, {4*T-9}, v{t1}\nv_min_u32 v{t3}, 8, v{t3}\nv_mov_b32 v{t4}, 2")
        col_to_slot(t3)
        a(f"v_or_b32 v{u2}, v{u2}, v{t4}\nv_xor_b32 v{u2}, v{u2}, v{u0}\nv_lshl_add_u32 v{u3}, v{u2}, 6, v{u3}")
        a(f"v_lshl_add_u32 v{u3}, v{u0}, 8, v{u3}\nv_lshl_add_u32 v{u3}, v{vG}, 12, v{u3}\nv_add_u32 v{vRK+T}, {WR}, v{u3}")
    a(f"v_and_b32 v{u6}, 7, v{t0}\nv_lshlrev_b32 v{u6}, 7, v{u6}\nv_lshrrev_b32 v{u2}, 1, v{vG}\nv_lshl_add_u32 v{u6}, v{u2}, 12, v{u6}")
    a(f"v_lshlrev_b32 v{u2}, 11, v{u2}\nv_sub_u32 v{vQD}, 0x10000, v{u2}")
    a(f"s_cmp_eq_u32 s{sB}, 1\ns_cselect_b32 s{sT+4}, 0, 1")
    for dl in range(3):
        a(f"v_add_u32 v{t3}, {4*dl}, v{t1}")
        col_to_slot(t3)
        if dl == 2:
            a(f"v_cmp_eq_u32 vcc, 0, v{t1}\nv_mov_b32 v{t4}, s{sT+4}\nv_xor_b32 v{t5}, 3, v{u1}\nv_lshlrev_b32 v{t5}, 4, v{t5}")
            a(f"v_cndmask_b32 v{u2}, v{t4}, v{u2}, vcc\nv_cndmask_b32 v{u3}, v{t5}, v{u3}, vcc")
        a(f"v_xor_b32 v{u2}, v{u2}, v{u5}\nv_lshl_add_u32 v{u3}, v{u2}, 6, v{u3}\nv_add_u32 v{vRQ+dl}, v{u6}, v{u3}")
    a(f"v_and_b32 v{t2}, 6, v{t0}\nv_lshrrev_b32 v{t3}, 1, v{t1}\nv_and_b32 v{t4}, 1, v{t1}")
    a(f"v_lshlrev_b32 v{t4}, 3, v{t4}\nv_add_u32 v{t4}, v{u6}, v{t4}\nv_lshl_add_u32 v{t4}, v{t3}, 4, v{t4}")
    for T in range(4):
        a(f"v_xor_b32 v{t3}, {2*T}, v{t2}\nv_lshl_add_u32 v{vRO+T}, v{t3}, 4, v{t4}\nv_add_u32 v{vRO+T}, {WO}, v{vRO+T}")
    a(f"v_lshrrev_b32 v{t0}, 3, v0\nv_bfe_u32 v{t1}, v0, 2, 1\nv_bfe_u32 v{t2}, v0, 4, 1\nv_xor_b32 v{t1}, v{t1}, v{t2}")
    a(f"v_and_b32 v{t2}, 3, v0\nv_bfe_u32 v{t3}, v0, 5, 1\nv_lshlrev_b32 v{t3}, 1, v{t3}\nv_xor_b32 v{t2}, v{t2}, v{t3}")
    slot_to_col(t4, t1, t2, t5)
    a(f"v_and_b32 v{t1}, 3, v{t0}\nv_and_b32 v{t2}, 12, v{t0}\nv_lshl_or_b32 v{t1}, v{t2}, 1, v{t1}\nv_lshrrev_b32 v{t2}, 4, v{t0}\nv_lshl_or_b32 v{t1}, v{t2}, 2, v{t1}")
    a(f"v_lshl_add_u32 v{t4}, v{t4}, 4, s{sT+1}\nv_mad_u32_u24 v{t4}, v{t1}, s{sT+3}, v{t4}\nv_mov_b32 v{t1}, {OOB}\nv_cndmask_b32 v{vDQ}, v{t1}, v{t4}, vcc")
    a(f"s_and_b32 s{sT+4}, s{sX}, 3\ns_cmp_eq_u32 s{sT+4}, 2\ns_cselect_b32 s{sT+4}, 20, 18\ns_cmp_lt_u32 s{sJ}, s{sT+4}")
    a(f"s_cselect_b32 s{sG2}, 1, 0\ns_cselect_b32 s18, {576*1152}, 0")
    a(f"s_cmp_ge_u32 s{sJ}, 18\ns_cselect_b32 s{sT+4}, 16, 0\ns_mul_i32 s{sT+5}, s{sX}, 18\ns_add_u32 s{sT+5}, s{sT+5}, s{sJ}\ns_add_u32 s{sT+5}, s{sT+5}, s{sT+4}")
    a(f"s_mul_i32 s{sRB2}, s{sT+5}, 7282\ns_lshr_b32 s{sRB2}, s{sRB2}, 16\ns_mul_i32 s{sT+4}, s{sRB2}, 9\ns_sub_u32 s{sCB}, s{sT+5}, s{sT+4}")
    a(f"s_mov_b32 s16, s{pWO}\ns_mov_b32 s17, s{pWO+1}\ns_mov_b32 s19, 0x20000")
    a(f"s_sub_u32 s92, s{pW}, 2048\ns_subb_u32 s93, s{pW+1}, 0\ns_mov_b32 s94, {576*3456+2048}\ns_mov_b32 s95, 0x20000")
    srd(a, 20, pWS, SENT_SIZE)
    srd(a, 24, pDBG, 256)
    srd(a, 28, pOUT, 2048 * 2304)
    a(f"v_lshrrev_b32 v{t0}, 3, v0\nv_and_b32 v{t1}, 7, v0\nv_and_b32 v{t2}, 6, v{t0}\nv_xor_b32 v{t1}, v{t1}, v{t2}")
    a(f"s_lshl_b32 s{sT+4}, s{sCB}, 7\nv_lshl_add_u32 v{t1}, v{t1}, 4, s{sT+4}")
    a(f"v_mul_u32_u24 v{t2}, 1152, v{t0}\nv_add_u32 v{vDO}, v{t1}, v{t2}")
    a(f"v_bfe_u32 v{t2}, v{t0}, 2, 2\nv_lshrrev_b32 v{t3}, 4, v{t0}\nv_lshl_add_u32 v{t2}, v{t2}, 1, v{t3}\nv_mul_u32_u24 v{t2}, 36, v{t2}")
    a(f"v_and_b32 v{t3}, 3, v{t0}\nv_add3_u32 v{t2}, v{t2}, v{t3}, 32\nv_mul_u32_u24 v{t2}, 1152, v{t2}\nv_add_u32 v{vDO+1}, v{t1}, v{t2}")
    a(f"s_lshr_b32 s{sT+4}, s{sW}, 1\ns_mul_i32 s{sT+4}, s{sT+4}, 5120\ns_and_b32 s{sT+5}, s{sW}, 1\ns_lshl_b32 s{sT+5}, s{sT+5}, 3\ns_add_u32 s{sT+4}, s{sT+4}, s{sT+5}\ns_add_u32 s{sT+4}, s{sT+4}, {EX}")
    a(f"v_lshl_add_u32 v{vEW}, v{vL}, 4, s{sT+4}")
    a(f"s_lshl_b32 s{sT+5}, s{sW}, 2")
    for q in range(4):
        pk = sum(PAIRS[w][q // 2][q % 2] << (4 * w) for w in range(4))
        a(f"s_lshr_b32 s{sT+4}, {pk}, s{sT+5}\ns_and_b32 s{sT+4}, s{sT+4}, 15\ns_lshl_b32 s{sT+4}, s{sT+4}, 10\ns_add_u32 s{sT+4}, s{sT+4}, {EX}\nv_lshl_add_u32 v{vER+q}, v{vL}, 4, s{sT+4}")
    a(f"v_cmp_gt_u32 {S(sMK4,2)}, 4, v{vI}\nv_and_b32 v{t0}, 14, v{vI}\nv_cmp_eq_u32 {S(sMK89,2)}, 8, v{t0}\nv_cmp_eq_u32 {S(sMG0,2)}, 0, v{vG}")
    a(f"s_mov_b32 s{sLOG}, 0x3fb8aa3b\ns_mov_b32 s{sLOG+1}, 0x3fb8aa3b\ns_mov_b32 s{sEPS}, 0x358637bd\ns_mov_b32 s{sEPS+1}, 0x358637bd")
    for i in range(4):
        a(f"v_mov_b32 v{vEPS+i}, s{sEPS}\nv_cndmask_b32 v{vEPS+4+i}, 0, v{vEPS+i}, {S(sMK4,2)}")
    a(f"s_cmp_lt_u32 s{sRB}, 10\ns_cselect_b32 s{sT+4}, 0x3f803f80, 0\nv_mov_b32 v{vONE}, 0x3f803f80\nv_mov_b32 v{vONE+1}, s{sT+4}")
    a(f"s_mul_i32 s{sT+4}, s{sP}, {11*S1_SLOT}\nv_lshl_add_u32 v{t0}, v0, 4, s{sT+4}\nv_mov_b32 v{t1}, {OOB}")
    a(f"v_cmp_gt_u32 vcc, 190, v0\nv_cndmask_b32 v{vGA}, v{t1}, v{t0}, vcc")
    a(f"v_mul_u32_u24 v{t0}, 96, v{vI}\nv_lshl_add_u32 v{t0}, v{vG}, 3, v{t0}\nv_add_u32 v{vFR}, {FM}, v{t0}")
    a(f"v_and_b32 v{t0}, 1, v{vI}\nv_mul_u32_u24 v{t0}, 96, v{t0}\nv_lshl_add_u32 v{t0}, v{vG}, 3, v{t0}\nv_add_u32 v{vFD}, {FM+36*96}, v{t0}")
    a(f"s_mul_i32 s{sT+4}, s{sRB}, 12\ns_add_u32 s{sT+4}, s{sT+4}, s{sW}\ns_lshl_b32 s{sT+4}, s{sT+4}, 4\ns_add_u32 s{sT+4}, s{sT+4}, s{sP}")
    a(f"s_lshl_b32 s{sT+5}, s{sT+4}, 10\ns_add_u32 s{sT+5}, s{sT+5}, {S2_OFF}\nv_lshl_add_u32 v{vS2}, v{vL}, 4, s{sT+5}")
    a(f"s_lshl_b32 s{sT+5}, s{sT+4}, 7\ns_add_u32 s{sT+5}, s{sT+5}, {S2T_OFF}\nv_lshl_add_u32 v{t0}, v{vI}, 3, s{sT+5}")
    a(f"v_cndmask_b32 v{vS2T}, v{t1}, v{t0}, {S(sMG0,2)}")
    a(f"s_lshl_b32 s{sT+4}, s{sRB2}, 2\ns_add_u32 s{sT+4}, s{sT+4}, s{sW}")
    a(f"s_lshl_b32 s{sT+5}, s{sT+4}, 15\ns_add_u32 s{sT+5}, s{sT+5}, {S2_OFF}\nv_lshl_add_u32 v{vOL}, v{vL}, 4, s{sT+5}")
    a(f"s_lshl_b32 s{sT+5}, s{sT+4}, 12\ns_add_u32 s{sT+5}, s{sT+5}, {S2T_OFF}\nv_lshl_add_u32 v{t0}, v{vI}, 3, s{sT+5}\nv_lshl_add_u32 v{vOLT}, v{vG}, 8, v{t0}")
    a(f"s_lshl_b32 s{sT+4}, s{sT+4}, 5\nv_add_u32 v{t0}, s{sT+4}, v{vI}\nv_mul_u32_u24 v{t0}, 2304, v{t0}")
    a(f"v_and_b32 v{t1}, 1, v{vG}\nv_lshl_add_u32 v{t0}, v{t1}, 5, v{t0}\nv_lshrrev_b32 v{t1}, 1, v{vG}\nv_lshl_add_u32 v{t0}, v{t1}, 4, v{t0}")
    a(f"s_lshl_b32 s{sT+4}, s{sCB}, 7\ns_add_u32 s{sT+4}, s{sT+4}, 1152\nv_add_u32 v{vOUT}, s{sT+4}, v{t0}")
    a(f"v_mov_b32 v{vDBA}, 0")
    for q in range(4):
        a(f"s_add_u32 s{sT+4}, s{sCB}, {q}\ns_and_b32 s{sT+4}, s{sT+4}, 3\ns_mul_i32 s{sWB+q}, s{sT+4}, {4*36*1152}")
    a(f"s_add_u32 s6, s4, L_TABB-L_PC\ns_addc_u32 s7, s5, 0\ns_mov_b32 s{sRETRY}, 0")
    a(f"v_mov_b32 v{t2}, 0\nv_mov_b32 v{t3}, 0\nv_mov_b32 v{t4}, 0\nv_mov_b32 v{t5}, 0\nv_lshlrev_b32 v{t0}, 4, v0\nv_add_u32 v{t1}, {FM}, v{t0}")
    a(f"ds_write_b128 v{t1}, {V(t2,4)}\nds_write_b128 v{t1}, {V(t2,4)} offset:4096")
    deferred, a = a.ins, main
    a.ext(deferred); deferred = []
    prof(a, 0)
    for x in dx(1) + dk(1):
        a.ext(x)

    def rd_kv(s):
        o = Asm()
        fb = vFB + 20 * (s & 1)
        base = ((s >> 1) % NW) * 16384 + (s & 1) * 2048
        for T in range(5):
            for rd in range(2):
                o(f"ds_read_b64_tr_b16 {V(fb+4*T+2*rd,2)}, v{vRK+T} offset:{base+1024*rd}", tag=f"wr{s}")
        return o.ins

    def rd_x(P):
        o = Asm()
        for h in range(2):
            for tau in range(3):
                o(f"ds_read_b128 {A(xreg(2*P+h,tau),4)}, v{vXR+h} offset:{XR+(P % NX)*24576+tau*2048}", tag=f"xr{P}")
        return o.ins

    def mm_kv(s):
        o = Asm()
        o.wait(f"wr{s}")
        fb = vFB + 20 * (s & 1)
        for T in range(5):
            for tau in range(3):
                d = V(vACC + 4 * (5 * tau + T), 4)
                c = d if s else (V(vEPS, 4) if T < 2 else V(vEPS + 4, 4) if T == 2 else "0")
                o(f"v_mfma_f32_16x16x32_bf16 {d}, {A(xreg(s,tau),4)}, {V(fb+4*T,4)}, {c}")
        return o

    def rd_q(s):
        o = Asm()
        if s == 16:
            for dl in range(3):
                o(f"v_add_u32 v{vRQ+dl}, v{vQD}, v{vRQ+dl}")
        for dl in range(3):
            for rd in range(2):
                o(f"ds_read_b64_tr_b16 {V(vFQ+12*(s % 3)+4*dl+2*rd,2)}, v{vRQ+dl} offset:{qoff(s, rd)}", tag=f"qr{s}")
        return o.ins if s < 18 else []

    def mm_q(s):
        o = Asm()
        o.wait(f"qr{s}")
        for dl in range(3):
            for tau in range(3):
                d = V(vAQ + 4 * (3 * tau + dl), 4)
                o(f"v_mfma_f32_16x16x32_bf16 {d}, {V(vFQ+12*(s % 3)+4*dl,4)}, {A(xreg(s,tau),4)}, {d if s else V(vEPS,4)}")
        return o.ins
    flat = lambda L: [i for x in L for i in x]
    a.wait("x0", "k0"); prof(a, 36); a("s_barrier")
    rx = rd_x(0)
    a.ext(rx[:3] + rd_kv(0) + rx[3:])
    for P in range(9):
        w = Asm(); w.wait(f"xr{P}")
        if P == 0:
            ld = flat(dx(2) + dk(2))
        elif P < 6:
            ld = w.ins + flat(dx(P + 3))
        elif P == 7:
            ld = Asm()(f"v_lshlrev_b32 v{t0}, 4, v0\nglobal_load_dwordx4 {V(vTAB,4)}, v{t0}, s[6:7]").ins
        else:
            ld = []
        a.ext(interleave(interleave(mm_kv(2 * P), ld, per=len(ld) / 14.0), rd_kv(2 * P + 1), per=1))
        fill, ld = [], []
        if P < 8:
            a.wait(f"x{P+1}", f"k{P+1}")
        if P >= 6:
            a.wait(f"xr{P}")
        if P == 8:
            a.wait("q3")
        a("s_barrier")
        if P < 8:
            rx = rd_x(P + 1)
            fill = rx[:3] + rd_kv(2 * P + 2) + rx[3:]
        else:
            fill = rd_q(0)
        if P == 0:
            ld = w.ins + flat(dx(3))
        if P < 6:
            ld += flat(dk(P + 3))
        else:
            ld += flat([dq(k) for k in range([0, 4, 12][P - 6], [4, 12, 18][P - 6])])
        if P == 8:
            ld += Asm()(f"buffer_load_dword v{vDBG}, v{vDBA}, s[24:27], 0 offen sc1").ins
        a.ext(interleave(interleave(mm_kv(2 * P + 1), ld, per=len(ld) / 14.0), fill, per=1.2))
        if P in (0, 2, 4, 6):
            prof(a, 20 + P // 2)
    assert not deferred
    prof(a, 2)
    qstep = lambda s: spread(mm_q(s), rd_q(s + 1))
    fg = Asm()
    n = 0
    for tau in range(3):
        for T in (3, 4, 0, 1, 2):
            src = vACC + 4 * (5 * tau + T)
            pk = vPK + 2 * (n & 1)
            if T >= 3:
                fg(f"v_cvt_pk_bf16_f32 v{pk}, v{src}, v{src+1}\nv_cvt_pk_bf16_f32 v{pk+1}, v{src+2}, v{src+3}")
                if T == 4:
                    one = vONE + (1 if tau == 2 else 0)
                    fg(f"v_cndmask_b32 v{pk}, v{pk}, v{one}, {S(sMK89,2)}\nv_cndmask_b32 v{pk+1}, v{pk+1}, v{one}, {S(sMK89,2)}")
            else:
                phi4(fg, src, pk, vPH + 8 * (n & 1), keep=sMK4 if T == 2 else None)
            fg(f"ds_write_b64 v{vEW}, {V(pk,2)} offset:{10240*tau+1024*T}")
            n += 1
    a.ext(spread(fg, qstep(0) + qstep(1) + qstep(2) + mm_q(3)))
    a.wait("q17")
    a("s_waitcnt lgkmcnt(0)\ns_barrier")
    prof(a, 3)
    ef = lambda j, q: A(216 + 16 * j + 4 * q, 4) if j < 2 else V(56 + 16 * (j - 2) + 4 * q, 4) if j < 5 else V(156 + 4 * q, 4)
    a.ext(rd_q(4))
    er = Asm()
    for j in range(6):
        for q in range(4):
            er(f"ds_read_b128 {ef(j,q)}, v{vER+q} offset:{5120*j}")
    a.ext(er.ins[:8])
    a.ext(spread(mm_q(4), er.ins[8:]))
    a(f"s_mul_i32 s{sT}, s{sP}, 11\ns_add_u32 s{sT}, s{sT}, s{sRB}\ns_mul_i32 s{sT}, s{sT}, {S1_SLOT}")
    km = Asm()
    for j in range(6):
        for q in range(2):
            d = V(vKD + 4 * q, 4)
            km(f"v_mfma_f32_16x16x32_bf16 {d}, {ef(j,2*q)}, {ef(j,2*q+1)}, {'0' if j == 0 else d}")
    a.ext(spread(km, rd_q(5) + rd_q(6)))
    a(f"v_cmp_gt_u32 vcc, 8, v{vDBG}")
    m5 = mm_q(5)
    a.ext(m5[:5])
    a(f"s_cbranch_vccnz L_B_INIT\nL_B_INIT_OK:")
    slow("L_B_INIT:")
    slow(f"buffer_load_dword v{vDBG}, v{vDBA}, s[24:27], 0 offen sc1\ns_add_u32 s{sRETRY}, s{sRETRY}, 1\ns_cmp_gt_u32 s{sRETRY}, 0x100000")
    slow(f"s_waitcnt vmcnt(0)\ns_cbranch_scc1 L_B_INIT_OK\nv_cmp_gt_u32 vcc, 8, v{vDBG}\ns_nop 1\ns_cbranch_vccnz L_B_INIT\ns_branch L_B_INIT_OK")
    st = Asm()
    for q in range(2):
        for i in range(4):
            st(f"v_min_u32 v{vKD+4*q+i}, -2, v{vKD+4*q+i}")
        st(f"buffer_store_dwordx4 {V(vKD+4*q,4)}, v{vTAB+q}, s[20:23], s{sT} offen sc1")
    a.ext(spread(st, m5[5:]))
    a("s_barrier")
    prof(a, 4)

    def gather():
        o = Asm()
        for r in range(11):
            if r:
                o(f"s_mov_b32 s{sSO}, {r*S1_SLOT}")
            o(f"buffer_load_dwordx4 {V(vGAT+4*r,4)}, v{vGA}, s[20:23], {'s%d' % sSO if r else '0'} offen sc1")
        return o.ins
    ld = []
    for k in range(18):
        ld.append(dquad(16, vDO, "", sWB + (k >> 2), 36 * 1152 * (k & 3), WO, k, f"o{k}") if k < 16 else
                  dquad(16, vDO + 1, "", None, 288 * 1152 * (k - 16), WO, k, f"o{k}"))
    ga = gather()
    for s in range(6, 18):
        ex = []
        if GS <= s < GS + 3:
            ex += ga[:7]; ga = ga[7:]
        else:
            ex += flat(ld[:2]); ld = ld[2:]
        if s == 17:
            ex += Asm()(f"buffer_load_dword v{vDBG}, v{vDBA}, s[24:27], 0 offen offset:64 sc1").ins
        a.ext(spread(spread(mm_q(s), ex), rd_q(s + 1)))
    assert not ld and not ga
    prof(a, 5)
    for tau in range(3):
        for dl in range(3):
            phi4(a, vAQ + 4 * (3 * tau + dl), vPQ + 6 * tau + 2 * dl, 128 + 4 * (dl & 1), pk=True)
    prof(a, 6)

    def check(o, regs, label):
        r = list(regs)
        o(f"v_max3_u32 v{vCK}, v{r[0]}, v{r[1]}, v{r[2]}")
        r = r[3:]
        while len(r) >= 2:
            o(f"v_max3_u32 v{vCK}, v{r[0]}, v{r[1]}, v{vCK}"); r = r[2:]
        if r:
            o(f"v_max_u32 v{vCK}, v{r[0]}, v{vCK}")
        o(f"v_cmp_eq_u32 vcc, -1, v{vCK}\ns_cbranch_vccnz {label}")

    def slow_path(name, loads, regs):
        slow(f"{name}:")
        slow.ext(loads)
        slow(f"s_add_u32 s{sRETRY}, s{sRETRY}, 1\ns_cmp_gt_u32 s{sRETRY}, 0x100000\ns_waitcnt vmcnt(0)\ns_cbranch_scc1 {name}_OK")
        check(slow, regs, name)
        slow(f"s_branch {name}_OK")
    check(a, range(vGAT, vGAT + 44), "L_B_GA")
    a("L_B_GA_OK:")
    slow_path("L_B_GA", gather(), range(vGAT, vGAT + 44))
    step = 1
    while step < 11:
        for r in range(0, 11 - step, 2 * step):
            for h in range(2):
                a(f"v_pk_add_f32 {V(vGAT+4*r+2*h,2)}, {V(vGAT+4*r+2*h,2)}, {V(vGAT+4*(r+step)+2*h,2)}")
        step *= 2
    a(f"v_bfe_i32 v{t0}, v{vTAB+3}, 0, 1\nv_bfe_i32 v{t1}, v{vTAB+3}, 1, 1")
    a(f"v_cvt_pk_bf16_f32 v{t2}, v{vGAT}, v{vGAT+1}\nv_cvt_pk_bf16_f32 v{t3}, v{vGAT+2}, v{vGAT+3}")
    a(f"v_and_b32 v{t2}, v{t2}, v{t0}\nv_and_b32 v{t3}, v{t3}, v{t1}\nds_write_b64 v{vTAB+2}, {V(t2,2)}")
    a.wait("o17")
    a("s_waitcnt lgkmcnt(0)\ns_barrier")
    prof(a, 7)
    for h in range(2):
        a(f"ds_read_b64 {V(vFA+12+2*h,2)}, v{vFD} offset:{32*h}")
    a(f"ds_read_b64 {V(vFA+20,2)}, v{vFD} offset:64")
    for ep in range(3):
        for h in range(2):
            a(f"ds_read_b64 {V(vFA+4*ep+2*h,2)}, v{vFR} offset:{1536*ep+32*h}")
        if ep:
            a(f"ds_read_b64 {V(vFA+14+2*ep,2)}, v{vFR} offset:{1536*ep+64}")
    om_ = []
    for tau in range(3):
        o = Asm()
        b1, b2 = V(vPQ + 6 * tau, 4), V(vPQ + 6 * tau + 4, 2)
        for ep in (3, 0, 1, 2):
            d = V(vON + 16 * tau + 4 * ep, 4)
            o(f"v_mfma_f32_16x16x32_bf16 {d}, {V(vFA+4*ep,4)}, {b1}, {V(vEPS,4) if ep == 3 else '0'}")
        for ep in (3, 1, 2):
            d = V(vON + 16 * tau + 4 * ep, 4)
            o(f"v_mfma_f32_16x16x16_bf16 {d}, {V(vFA+14+2*ep,2)}, {b2}, {d}")
        om_.append(o.ins)
    a.ext(om_[0] + om_[1][:4])
    a(f"v_cmp_gt_u32 vcc, 8, v{vDBG}\ns_cbranch_vccnz L_B_INI2\nL_B_INI2_OK:")
    slow("L_B_INI2:")
    slow(f"buffer_load_dword v{vDBG}, v{vDBA}, s[24:27], 0 offen offset:64 sc1\ns_add_u32 s{sRETRY}, s{sRETRY}, 1\ns_cmp_gt_u32 s{sRETRY}, 0x100000")
    slow(f"s_waitcnt vmcnt(0)\ns_cbranch_scc1 L_B_INI2_OK\nv_cmp_gt_u32 vcc, 8, v{vDBG}\ns_nop 1\ns_cbranch_vccnz L_B_INI2\ns_branch L_B_INI2_OK")
    for tau in range(3):
        n0 = vON + 16 * tau; of = vOF + 6 * tau; r = vR
        o = Asm()
        o(f"v_rcp_f32 v{r}, v{n0+12}\nv_rcp_f32 v{r+1}, v{n0+13}")
        if tau == 2:
            o(f"s_cmp_lt_u32 s{sRB}, 10\ns_cselect_b32 s{sT}, {2*65536}, {OOB}\ns_cselect_b32 s{sT+1}, {2*8192}, {OOB}") if False else None
            o(f"s_cmp_lt_u32 s{sRB}, 10\ns_cselect_b32 s{sT}, 0, {OOB}\ns_add_u32 s{sT+1}, s{sT}, {2*8192}\ns_add_u32 s{sT}, s{sT}, {2*65536}")
        else:
            o(f"s_mov_b32 s{sT}, {65536*tau}\ns_mov_b32 s{sT+1}, {8192*tau}")
        o(f"v_cndmask_b32 v{r+2}, v{r+1}, v{r}, {S(sMG0,2)}")
        if tau == 0:
            for q in range(12):
                o(f"v_mul_f32 v{n0+q}, v{r + (0 if q < 4 else 2 if q < 6 else 1)}, v{n0+q}")
        else:
            o(f"v_pk_mul_f32 {V(n0,2)}, {V(n0,2)}, {V(r,2)} op_sel_hi:[1,0]\nv_pk_mul_f32 {V(n0+2,2)}, {V(n0+2,2)}, {V(r,2)} op_sel_hi:[1,0]")
            o(f"v_pk_mul_f32 {V(n0+4,2)}, {V(n0+4,2)}, {V(r+2,2)} op_sel_hi:[1,0]")
            for q in (6, 8, 10):
                o(f"v_pk_mul_f32 {V(n0+q,2)}, {V(n0+q,2)}, {V(r,2)} op_sel:[0,1] op_sel_hi:[1,1]")
        for q in range(6):
            o(f"v_cvt_pk_bf16_f32 v{of+q}, v{n0+2*q}, v{n0+2*q+1}")
        for q in range(4):
            o(f"v_min_u32 v{of+q}, -2, v{of+q}")
        o(f"buffer_store_dwordx4 {V(of,4)}, v{vS2}, s[20:23], s{sT} offen sc1")
        o(f"v_min_u32 v{of+4}, -2, v{of+4}\nv_min_u32 v{of+5}, -2, v{of+5}")
        o(f"buffer_store_dwordx2 {V(of+4,2)}, v{vS2T}, s[20:23], s{sT+1} offen sc1")
        a.ext(spread(o, om_[1][4:] + om_[2]) if tau == 0 else o.ins)
    if prof.on:
        a(f"s_cmp_eq_u32 s{sG2}, 0\ns_cbranch_scc1 L_B_EXIT")
        pv = prof.prev
        slow("L_B_EXIT:"); prof(slow, 8, final=True); slow("s_endpgm")
        prof.prev = pv
    else:
        a(f"s_cmp_eq_u32 s{sG2}, 0\ns_cbranch_scc1 L_END")
    prof(a, 8)

    def wreg(k, T, n=4, o=0):
        return A(16 * k + 4 * T + o, n) if k < 16 else V(vWV + 16 * (k - 16) + 4 * T + o, n)
    om = lambda k, rt: vOM + 4 * (2 * k + rt)

    def oloads(ks):
        o = Asm()
        cur = None
        for k in ks:
            for rt in range(2):
                if k < 16:
                    o(f"buffer_load_dwordx4 {V(om(k,rt),4)}, v{vOL}, s[20:23], s{(sWB if rt else sOB) + (k >> 2)} offen offset:{1024*(k & 3)} sc1")
                else:
                    for hf in range(2):
                        o(f"buffer_load_dwordx2 {V(om(k,rt)+2*hf,2)}, v{vOLT}, s[20:23], 0 offen offset:{2048*rt+1024*(k-16)+128*hf} sc1")
        return o.ins
    rd = Asm()
    for k in range(18):
        if k == 16:
            for T in range(4):
                rd(f"v_add_u32 v{vRO+T}, v{vQD}, v{vRO+T}")
        for T in range(4):
            for h in range(2):
                rd(f"ds_read_b64_tr_b16 {wreg(k,T,2,2*h)}, v{vRO+T} offset:{qoff(k, h)}")
    for q in range(4):
        a(f"s_add_u32 s{sT+4}, s{sCB}, {q}\ns_and_b32 s{sT+4}, s{sT+4}, 3\ns_lshl_b32 s{sOB+q}, s{sT+4}, 12\ns_add_u32 s{sWB+q}, s{sOB+q}, 16384")
    a.ext(interleave(rd, oloads(range(3 * OL_AHEAD)), per=OL_PER, start=OL_START, pred=lambda i: i.kind == "ds"))
    prof(a, 9)
    groups = [list(range(3 * gidx, 3 * gidx + 3)) for gidx in range(6)]
    gregs = lambda ks: [om(k, rt) + i for k in ks for rt in range(2) for i in range(4)]

    def mm_o(ks):
        o = Asm()
        for k in ks:
            for rt in range(2):
                for T in range(4):
                    d = V(vA2 + 4 * (4 * rt + T), 4)
                    o(f"v_mfma_f32_16x16x32_bf16 {d}, {wreg(k,T)}, {V(om(k,rt),4)}, {'0' if k == 0 else d}")
        return o
    check(a, gregs(groups[0]), "L_B_O0")
    a("L_B_O0_OK:")
    slow_path("L_B_O0", oloads(groups[0]), gregs(groups[0]))
    for gi, ks in enumerate(groups):
        if gi < 5:
            c = Asm(); check(c, gregs(groups[gi + 1]), f"L_B_O{gi+1}")
            m = mm_o(ks).ins
            if gi + OL_AHEAD < 6:
                m = interleave(m, oloads(groups[gi + OL_AHEAD]), per=0.3)
            a.ext(interleave(m, c.ins[:-1], per=1, start=10))
            a.ext(c.ins[-1:])
            a(f"L_B_O{gi+1}_OK:")
            slow_path(f"L_B_O{gi+1}", oloads(groups[gi + 1]), gregs(groups[gi + 1]))
        else:
            a.ext(mm_o(ks))
        prof(a, 10 + gi)
    a(f"s_mov_b32 s{sT}, {16*2304}")
    for rt in range(2):
        for u in range(2):
            p0 = vOM + 4 * (2 * rt + u)
            for h in range(2):
                n0 = vA2 + 4 * (4 * rt + 2 * u + h)
                a(f"v_cvt_pk_bf16_f32 v{p0+2*h}, v{n0}, v{n0+1}\nv_cvt_pk_bf16_f32 v{p0+2*h+1}, v{n0+2}, v{n0+3}")
            a(f"v_permlane16_swap_b32 v{p0}, v{p0+2}\nv_permlane16_swap_b32 v{p0+1}, v{p0+3}")
            a(f"buffer_store_dwordx4 {V(p0,4)}, v{vOUT}, s[28:31], {'s%d' % sT if rt else '0'} offen offset:{64*u} {OUT_FLAGS}")
    prof(a, 16, final=True)
    a("s_endpgm")
    return finish(a) + finish(slow)
```

```python
from asmlib import *
NAME = "concat_heads__ssm_conv_s4__linear_attn_block__prompt_kernel"
pLOGDT, pDSKIP, pX, pW, pWO, pOUT, pDBG, pWS = 36, 38, 40, 42, 44, 46, 48, 50
sX, sJ, sNA = 3, 33, 32
S1_SLOT = 3072
S1_OFF = 0
S2_OFF = 16 * 11 * S1_SLOT
S2T_OFF = S2_OFF + 128 * 16 * 1024
SENT_SIZE = S2T_OFF + 128 * 16 * 128
PROF_OFF = 4 << 20
OOB = 0x40000000

def srd(a, r, p, size):
    a(f"s_mov_b32 s{r}, s{p}\ns_mov_b32 s{r+1}, s{p+1}\ns_mov_b32 s{r+2}, {size}\ns_mov_b32 s{r+3}, 0x20000")

class Prof:
    def __init__(self, on): self.on = on; self.prev = None
    def start(self, a):
        if self.on: a("s_memrealtime s[96:97]\ns_memtime s[100:101]\nv_mov_b32 v255, 0")
    def reset(self): self.prev = None
    def __call__(self, a, k, final=False):
        if not self.on: return
        if self.prev is not None: a(f"v_writelane_b32 v255, s98, {self.prev}")
        a("s_memtime s[98:99]"); a.ins[-1].kind = "other"; a.ins[-1].dst = []
        self.prev = k
        if final:
            a(f"s_waitcnt vmcnt(0) lgkmcnt(0)\nv_writelane_b32 v255, s98, {k}\ns_memtime s[98:99]\ns_memrealtime s[90:91]\ns_waitcnt lgkmcnt(0)")
            a("v_writelane_b32 v255, s98, 60\nv_writelane_b32 v255, s90, 61\nv_writelane_b32 v255, s96, 62\nv_writelane_b32 v255, s100, 63")
            a(f"s_mov_b32 s92, s{pWS}\ns_mov_b32 s93, s{pWS+1}\ns_mov_b32 s94, {PROF_OFF + (1 << 20)}\ns_mov_b32 s95, 0x20000")
            a(f"s_lshl_b32 s98, s2, 10\ns_add_u32 s98, s98, {PROF_OFF}\nv_lshl_add_u32 v254, v0, 2, s98")
            a("buffer_store_dword v255, v254, s[92:95], 0 offen\ns_waitcnt vmcnt(0)")
            self.prev = None


def pf_load(a, vaddr, srdreg, so):
    a(f"buffer_load_dword v252, v{vaddr}, s[{srdreg}:{srdreg+3}], s{so} offen")
    a.ins[-1].dst = []


def take(lst, n):
    n = min(n, len(lst))
    while 0 < n < len(lst) and (lst[n].op.startswith(("s_cselect", "s_addc", "s_subb", "s_cbranch")) or lst[n - 1].op.startswith(("s_cmp", "s_bitcmp"))):
        n += 1
    return lst[:n], lst[n:]
```

```python
import sys
from asmlib import *
from gen_common import *
import gen_a
def build(prof_on=False, with_b=True):
    prof = Prof(prof_on)
    e = Asm()
    prof.start(e)
    e("s_load_dwordx16 s[36:51], s[0:1], 56")
    e("s_cmp_ge_u32 s2, 256\ns_cbranch_scc1 L_END")
    e("s_getpc_b64 s[4:5]\nL_PC:")
    e(f"s_lshr_b32 s{sJ}, s2, 3\ns_and_b32 s{sX}, s2, 7\ns_cmp_ge_u32 s{sJ}, 2\ns_cbranch_scc1 L_NOPF")
    e(f"s_lshl_b32 s6, s{sJ}, 15\nv_lshl_add_u32 v1, v0, 7, s6\nv_min_u32 v1, L_LAST-L_PC, v1\nglobal_load_dword v253, v1, s[4:5]")
    e("L_NOPF:")
    e(f"s_and_b32 s6, s{sX}, 3\ns_cmp_eq_u32 s6, 3\ns_cselect_b32 s{sNA}, 16, 8\ns_cmp_lt_u32 s{sJ}, s{sNA}\ns_cbranch_scc1 L_A\ns_sub_u32 s{sJ}, s{sJ}, s{sNA}")
    ins = e.ins
    tabs = []
    if with_b:
        import gen_b
        ins = ins + gen_b.gen_b(prof)
        tabs.append(("L_TABB", gen_b.table_b()))
    else:
        ins = ins + Asm()("s_endpgm").ins
    ins = ins + gen_a.gen_a(prof)
    tabs.append(("L_TABA", gen_a.table_a()[[5, 4, 0, 1, 2, 3]]))
    head = open("concat_heads__ssm_conv_s4__linear_attn_block__prompt.s.ref").read().split("\n")
    hdr = [l for l in head if l.startswith(";") and "@launch" not in l and "Override" not in l and "grid=ceil" not in l]
    hdr = hdr[:17]
    out = hdr + ["; @launch grid=(256,1,1) block=(256,1,1) lds=163840", '.amdgcn_target "amdgcn-amd-amdhsa--gfx950"', ".text",
                 f".globl {NAME}", ".p2align 8", f".type {NAME},@function", f"{NAME}:"]
    out.append(text_of(ins))
    out.append("L_END:\ns_endpgm")
    for lab, T in tabs:
        out.append(f".p2align 7\n.type {lab},@object\n{lab}:")
        fl = T.reshape(-1)
        for i in range(0, len(fl), 8):
            out.append(".long " + ", ".join(hex(int(x)) for x in fl[i:i+8]))
        out.append(f".size {lab}, {4*len(fl)}")
    out.append(".type L_LAST,@object\nL_LAST:\n.long 0\n.size L_LAST, 4")
    out.append(f'.section .rodata,"a"\n.p2align 6\n.amdhsa_kernel {NAME}\n  .amdhsa_next_free_vgpr 512\n  .amdhsa_next_free_sgpr 102\n  .amdhsa_accum_offset 256\n  .amdhsa_group_segment_fixed_size 0\n  .amdhsa_kernarg_size 120\n  .amdhsa_user_sgpr_count 2\n  .amdhsa_user_sgpr_kernarg_segment_ptr 1\n  .amdhsa_system_sgpr_workgroup_id_x 1\n.end_amdhsa_kernel')
    return "\n".join(out) + "\n"
if __name__ == "__main__":
    path = sys.argv[1]
    s = build(prof_on="prof" in sys.argv, with_b="noB" not in sys.argv)
    open(path, "w").write(s)
    print("wrote", path, len(s), "bytes")
```

```python
from asmlib import *
from gen_common import *
import numpy as np

SU = 4640
SY = 4160
KGW = 32 * 528
KG = 0
UT = 4 * KGW
U0 = UT + 8 * SU
YT = U0
KA0 = U0 + 8 * SY
KASZ = 3584
A_LDS_END = KA0 + 4 * KASZ
KE, KO, K2, K3 = 0, 1120, 2240, 2752
XC = list(range(9)) + [256, 258, 260, 262, 264, 516, 520, 772, 776, 1032, 1288, 1544, 1800]


def table_a():
    T = np.zeros((6, 64, 4), np.uint32)
    one = 0x3F80
    for l in range(64):
        r, g = l % 16, l // 16
        for bi, (ctr, w) in enumerate([(8, 2), (12, 1), (8, 4), (8, 3)]):
            for dw in range(4):
                v = 0
                for hf in range(2):
                    k = 8 * g + 2 * dw + hf
                    if abs(k - (r + ctr)) <= w:
                        v |= one << (16 * hf)
                T[bi, l, dw] = v
        for dw in range(4):
            v = 0
            for hf in range(2):
                if 8 * g + 2 * dw + hf - r in (12, 13):
                    v |= 0xFFFF << (16 * hf)
            T[4, l, dw] = v
        io, hh = l % 32, l // 32
        rho, h = 4 * (io // 8) + io % 4, (io // 4) % 2
        if rho < 5:
            c = 4 * h + rho
        elif rho < 8:
            c = 256 + 4 * h + 2 * (rho - 5)
        elif rho < 12:
            c = [(516, 772), (520, 776), (1032, 1544), (1288, 1800)][rho - 8][h]
        else:
            c = 0
        T[5, l, 0] = XC.index(c) * 528 + 16 * hh
    return T


vLANE = 1
vP = 2
vTAB5 = 14
vMASK = 18
vKGW, vKGB, vKGA = 22, 23, 24
vT0, vT1, vT2, vT3 = 25, 26, 27, 28
vKW, vK2W, vK3W = 29, 30, 31
vW = 32
vD = 96
vKFA, vKFB, vHK2, vHK3, vUF, vA2, vA3, vYW = 112, 113, 114, 115, 116, 117, 118, 119
vACC = 120
vBXD = 152
vBX = 168
vKFX = 184
vEP = 188
vZ = 192
vDMA, vTR0, vTR1, vTW, vOR, vOS = 196, 197, 198, 199, 200, 201
vTB = 204
vKA = 228
aBAND = 0
aY = 16
aX = 80
aKFS = (184, 16)
aHK2 = 84
aHK3 = 108
aUF = 140
aAP = 168
sW, sAG, sIDX, sJJ, sWI = 68, 69, 70, 71, 77
sLDT, sDSK = 72, 73
sT0, sT1, sT2 = 74, 75, 76
sKG, sU0 = 78, 79
sEX = 80


import os
Y_FLAGS = os.environ.get("YF", "")
EXP = os.environ.get("EXP", "").split(",")
sUB, sTB = 84, 85
DMA_PLAN = [(0, 2), (0, 30), (0, 42), (0, 54), (1, 6), (1, 18), (1, 30), (1, 42)]
TR_PLAN = [(0, 36), (0, 48), (1, 2), (1, 12), (1, 24), (1, 36), (1, 48), (1, 55)]


def cmul(a, z, x, y, t, conj=False):
    n = "neg_hi:[1,0,0]" if conj else "neg_lo:[1,0,0]"
    return [f"v_pk_mul_f32 {V(t,2)}, {V(x,2)}, {V(y,2)} op_sel_hi:[1,0]",
            f"v_pk_fma_f32 {V(z,2)}, {V(x,2)}, {V(y,2)}, {V(t,2)} op_sel:[1,1,0] op_sel_hi:[0,1,1] {n}"]


base = [vW, vW + 30]
AB, E1, E8, G, X, T, S0, S1, U = 0, 2, 4, 6, 8, 10, 12, 14, 16
CC, BB = 18, 20
PK = vW + 60


def ksetup(ch):
    a = Asm()
    p = vP + 6 * ch
    dt = vW + 24
    if ch == 0:
        a(f"s_lshl_b32 s{sT0}, s{sLDT}, 16")
    else:
        a(f"s_and_b32 s{sT0}, s{sLDT}, 0xffff0000")
    a(f"v_mov_b32 v{dt}, s{sT0}\nv_mul_f32 v{dt}, 0x3fb8aa3b, v{dt}\nv_exp_f32 v{dt}, v{dt}")
    for n in range(2):
        b = base[n]
        un = (lambda d, s: f"v_lshlrev_b32 v{d}, 16, v{s}") if n == 0 else (lambda d, s: f"v_and_b32 v{d}, 0xffff0000, v{s}")
        a(un(b + AB, p + 0)); a(un(b + AB + 1, p + 1))
        if n == 0:
            a(f"v_cvt_pk_bf16_f32 v{dt}, v{dt}, v{dt}\nv_lshlrev_b32 v{dt}, 16, v{dt}")
        a(un(b + BB, p + 2)); a(un(b + BB + 1, p + 3))
        a(un(b + CC, p + 4)); a(un(b + CC + 1, p + 5))
    for n in range(2):
        b = base[n]
        a(f"v_mul_f32 v{b+AB}, v{dt}, v{b+AB}\nv_mul_f32 v{b+AB+1}, v{dt}, v{b+AB+1}")
        a(f"v_mul_f32 v{b+AB}, 0x3fb8aa3b, v{b+AB}\nv_mul_f32 v{b+AB+1}, 0x3e22f983, v{b+AB+1}")
    for dst, mul in ((E8, "0x41000000"), (E1, None), (G, "0x43800000")):
        for n in range(2):
            b = base[n]
            if mul is None:
                a(f"v_exp_f32 v{b+U}, v{b+AB}\nv_fract_f32 v{b+T}, v{b+AB+1}")
            else:
                a(f"v_mul_f32 v{b+U}, {mul}, v{b+AB}\nv_mul_f32 v{b+T}, {mul}, v{b+AB+1}")
                a(f"v_exp_f32 v{b+U}, v{b+U}\nv_fract_f32 v{b+T}, v{b+T}")
        for n in range(2):
            b = base[n]
            a(f"v_cos_f32 v{b+dst}, v{b+T}\nv_sin_f32 v{b+dst+1}, v{b+T}")
        if dst == E8:
            for n in range(2):
                b = base[n]
                a(f"v_mul_f32 v{b+BB}, v{dt}, v{b+BB}\nv_mul_f32 v{b+BB+1}, v{dt}, v{b+BB+1}")
                a(f"v_mul_f32 v{b+X}, v{b+CC}, v{b+BB}\nv_mul_f32 v{b+X+1}, v{b+CC}, v{b+BB+1}")
                a(f"v_fma_f32 v{b+X}, -v{b+CC+1}, v{b+BB+1}, v{b+X}\nv_fma_f32 v{b+X+1}, -v{b+CC+1}, v{b+BB}, -v{b+X+1}")
        for n in range(2):
            b = base[n]
            a(f"v_mul_f32 v{b+dst}, v{b+dst}, v{b+U}\nv_mul_f32 v{b+dst+1}, v{b+dst+1}, v{b+U}")
    return a


def kgen(a, ch, prof, hook, shadow):
    cnt = [0]

    def put(reg, row):
        pk = PK + 2 * (cnt[0] & 1); cnt[0] += 1
        a(f"v_cvt_pk_bf16_f32 v{pk}, v{base[0]+reg}, v{base[0]+reg+1}")
        a(f"v_cvt_pk_bf16_f32 v{pk+1}, v{base[1]+reg}, v{base[1]+reg+1}")
        a(f"ds_write_addtid_b32 v{pk} offset:{row*528}\nds_write_addtid_b32 v{pk+1} offset:{row*528+256}")
        hook(a, ch, cnt[0])

    def mul2(z, x, y, conj):
        m = [cmul(a, base[n] + z, base[n] + x, base[n] + y, base[n] + T, conj) for n in range(2)]
        a(m[0][0]); a(m[1][0]); a(m[0][1]); a(m[1][1])
    prof(a, 10 + 5 * ch)
    a(f"v_mov_b32 v{PK}, 0x3f80\nds_write_addtid_b32 v{PK}\nds_write_addtid_b32 v{PK} offset:256")
    cnt[0] = 1
    put(E8, 1)
    mul2(S0, E8, E8, False); put(S0, 2)
    for j in range(3, 32):
        mul2(S0, S0, E8, False); put(S0, j)
    prof(a, 11 + 5 * ch)
    for k in range(16):
        a(f"ds_read_b128 {A(aY+4*k,4)}, v{vKGB} offset:{32*k}")
        if k == 7:
            mul2(U, X, G, True)
    prof(a, 12 + 5 * ch)
    for c in range(9):
        if c:
            mul2(X, X, E1, True)
        put(X, c)
        if c % 2 == 0:
            d = S0 if c == 4 else (S1 if c == 8 else U)
            if c:
                mul2(d, X, G, True)
            put(d, XC.index(256 + c))
    for c in (516, 772):
        mul2(S0, S0, G, True); put(S0, XC.index(c))
        mul2(S1, S1, G, True); put(S1, XC.index(c + 4))
    for c in (1032, 1288, 1544, 1800):
        mul2(S1, S1, G, True); put(S1, XC.index(c))
    prof(a, 13 + 5 * ch)
    for k in range(4):
        a(f"ds_read_b128 {A(aX+4*k,4)}, v{vKGA} offset:{32*k}")
    if ch == 0:
        a(f"s_mul_i32 s{sT2}, s{sW}, {KASZ}\ns_add_u32 s{sT2}, s{sT2}, {KA0}")
    else:
        a(f"s_mul_i32 s{sT2}, s{sW}, {KGW}\ns_add_u32 s{sT2}, s{sT2}, {KG}")
    a(f"v_lshl_add_u32 v{vT0}, v{vLANE}, 4, s{sT2}")
    a(f"v_add_u32 v{vT1}, s{sT2}, v{vKW}\nv_add_u32 v{vT2}, s{sT2}, v{vK2W}\nv_add_u32 v{vT3}, s{sT2}, v{vK3W}")
    if ch == 0:
        a(f"s_lshl_b32 s{sT1}, s{sDSK}, 16")
    else:
        a(f"s_and_b32 s{sT1}, s{sDSK}, 0xffff0000")
    m = Asm()
    sh = list(shadow)
    for k in range(16):
        m(f"v_mfma_f32_32x32x16_bf16 {V(vD,16)}, {A(aX+4*k,4)}, {A(aY+4*k,4)}, {'0' if k == 0 else V(vD,16)}")
        if k < 12:
            m(f"ds_read_b128 {A(aX+4*k+16,4)}, v{vKGA} offset:{32*k+128}")
        if k in (12, 13, 14):
            m(f"ds_write_b128 v{vT0}, {V(vZ,4)} offset:{(k-12)*1024}")
        n = -(-len(sh) // (16 - k))
        dd, sh = take(sh, n); m.ext(dd)
    a.ext(m)
    prof(a, 14 + 5 * ch)
    hook(a, ch, 55)
    a(f"s_mov_b32 exec_hi, 0\nds_write_b128 v{vT0}, {V(vZ,4)} offset:3072\ns_mov_b64 exec, 1")
    a(f"v_add_f32 v{vD}, s{sT1}, v{vD}\ns_mov_b64 exec, -1")
    t = vACC
    d = vD
    a(f"v_cvt_pk_bf16_f32 v{t}, v{d+3}, v{d+2}\nv_cvt_pk_bf16_f32 v{t+1}, v{d+1}, v{d}")
    a(f"v_cvt_pk_bf16_f32 v{t+2}, v{d+4}, v{d+3}\nv_cvt_pk_bf16_f32 v{t+3}, v{d+2}, v{d+1}")
    a(f"ds_write_b64 v{vT1}, {V(t,2)} offset:{KO+512}\nds_write_b64 v{vT1}, {V(t+2,2)} offset:{KE+512}")
    a(f"v_cvt_pk_bf16_f32 v{t+4}, v{d+7}, v{d+6}\nv_cvt_pk_bf16_f32 v{t+5}, v{d+5}, v{d+5}")
    a(f"v_cvt_pk_bf16_f32 v{t+6}, v{d+7}, v{d+7}\nv_cvt_pk_bf16_f32 v{t+7}, v{d+6}, v{d+5}")
    a(f"ds_write_b64 v{vT1}, {V(t+4,2)} offset:{KO}\nds_write_b64 v{vT1}, {V(t+6,2)} offset:{KE}")
    a(f"v_cvt_pk_bf16_f32 v{t+8}, v{d+8}, v{d+9}\nv_cvt_pk_bf16_f32 v{t+9}, v{d+10}, v{d+11}")
    a(f"ds_write_b16 v{vT2}, v{t+8} offset:{K2+256}\nds_write_b16_d16_hi v{vT2}, v{t+8} offset:{K2}")
    a(f"ds_write_b16 v{vT3}, v{t+9} offset:{K3+32}\nds_write_b16 v{vT3}, v{t+9} offset:{K3+32+190}")
    a(f"ds_write_b16_d16_hi v{vT3}, v{t+9} offset:{K3}\nds_write_b16_d16_hi v{vT3}, v{t+9} offset:{K3+190}")
    a(f"v_and_b32 v{t+10}, 0xffff0000, v{t+6}\nv_mov_b32 v{t+11}, v{t+6}\nv_lshrrev_b32 v{t+12}, 16, v{t+1}")
    a(f"v_mov_b32 v{t+13}, s{sT2}")
    a(f"s_mov_b32 exec_lo, 0\ns_mov_b32 exec_hi, 0x80000000")
    a(f"ds_write_b32 v{t+13}, v{t+6} offset:{KE+60}\nds_write_b64 v{t+13}, {V(t+10,2)} offset:{KO+56}")
    a(f"s_mov_b64 exec, 1\nds_write_b32 v{t+13}, v{t+12} offset:{KE+1088}\ns_mov_b64 exec, -1")
    a(f"v_readlane_b32 s{82+ch}, v{t+8}, 63")
    hook(a, ch, 57)


def conv_addr():
    a = Asm()
    for ch in range(2):
        if ch == 0:
            a(f"s_mul_i32 s34, s{sW}, {KASZ}\ns_add_u32 s34, s34, {KA0}")
        else:
            a(f"s_mul_i32 s34, s{sW}, {KGW}")
        kfa, kfb, hk2, hk3, uf, a2, a3, yw = range(vKA + 8 * ch, vKA + 8 * ch + 8)
        a(f"v_add_u32 v{kfa}, s34, v{vKFA}\nv_add_u32 v{kfb}, s34, v{vKFB}\nv_add_u32 v{hk2}, s34, v{vHK2}\nv_add_u32 v{hk3}, s34, v{vHK3}")
        a(f"s_lshl_b32 s34, s{sW}, 1\ns_add_u32 s34, s34, {ch}\ns_mul_i32 s35, s34, {SY}\ns_mul_i32 s34, s34, {SU}")
        a(f"v_add_u32 v{uf}, s34, v{vUF}\nv_add_u32 v{a2}, s34, v{vA2}\nv_add_u32 v{a3}, s34, v{vA3}\nv_add_u32 v{yw}, s35, v{vYW}")
    return a


def rd_kf(ch, s):
    r = aKFS[ch] + 4 * s
    ad, o = (vKA + 8 * ch + 1, 0) if s == 0 else (vKA + 8 * ch, 16 * (16 - s))
    return [f"ds_read2_b32 {A(r,2)}, v{ad} offset0:{o} offset1:{o+1}", f"ds_read2_b32 {A(r+2,2)}, v{ad} offset0:{o+2} offset1:{o+3}"]


def kfx(ch):
    o = [f"s_lshr_b32 s34, s{82+ch}, 16", f"s_and_b32 s35, s{82+ch}, 0xffff0000", "s_or_b32 s34, s34, s35"]
    return o + [f"v_and_b32 v{vKFX+k}, s34, v{vMASK+k}" for k in range(4)]


def conv(a, ch, prof):
    kfa, kfb, hk2, hk3, uf, a2, a3, yw = range(vKA + 8 * ch, vKA + 8 * ch + 8)
    aKF = aKFS[ch]

    def rd_hk2(pi, dl):
        r = aHK2 + 4 * (3 * pi + dl); o = 16 * (2 - dl) + 64 * pi
        return [f"ds_read2_b32 {A(r,2)}, v{hk2} offset0:{o} offset1:{o+1}", f"ds_read2_b32 {A(r+2,2)}, v{hk2} offset0:{o+2} offset1:{o+3}"]

    def rd_hk3(pi, q):
        r = aHK3 + 4 * (4 * pi + q); o = (48 - 16 * q) // 2 + 96 * pi
        return [f"ds_read2_b32 {A(r,2)}, v{hk3} offset0:{o} offset1:{o+1}", f"ds_read2_b32 {A(r+2,2)}, v{hk3} offset0:{o+2} offset1:{o+3}"]
    NR = 7
    rd_uf = lambda n: f"ds_read_b128 {A(aUF+4*(n % NR),4)}, v{uf} offset:{64*n}"
    touched = set()

    def mm(t, x, y):
        c = V(vACC + 4 * t, 4) if t in touched else "0"
        touched.add(t)
        return f"v_mfma_f32_16x16x32_bf16 {V(vACC+4*t,4)}, {x}, {y}, {c}"
    NS = 64
    pre = [[] for _ in range(NS + 8)]
    extra = [[] for _ in range(NS + 8)]
    blk = [[] for _ in range(NS + 8)]
    last = [8 * t + 7 for t in range(8)]
    LA = 5
    head = [rd_uf(n) for n in range(LA)]
    for n in range(NS - LA):
        pre[n].append(rd_uf(n + LA))
    pre[0] += kfx(ch)[:4]; pre[1] += kfx(ch)[4:]
    hk = sum([rd_hk2(pi, dl) for pi in range(2) for dl in range(3)], []) + sum([rd_hk3(pi, q) for pi in range(2) for q in range(4)], [])
    for i, x in enumerate(hk):
        pre[i // 2 if i < 12 else i - 6].append(x)
    if ch == 0:
        for i, x in enumerate(sum([rd_kf(1, s) for s in range(17)], [])):
            pre[24 + i].append(x)
    jobs = [("2", 0), ("2", 1), ("3", 0, 0), ("3", 0, 1), ("2", 2), ("2", 3), ("3", 1, 0), ("3", 1, 1), ("2", 4), ("2", 5)]
    n0 = 7
    for ji, jb in enumerate(jobs):
        ap = aAP + 8 * (ji & 1); bx = vBX + 8 * (ji & 1)
        F = jb[1]
        if jb[0] == "2":
            for om in range(2):
                pre[n0].append(f"ds_read_b128 {A(ap+4*om,4)}, v{a2} offset:{512*F+64*om}")
            for pi in range(2):
                for om in range(2):
                    extra[n0 + 2].append(f"v_mfma_f32_16x16x32_bf16 {V(vBXD+8*pi+4*om,4)}, {A(ap+4*om,4)}, {A(aBAND+4*pi,4)}, 0")
            for pi in range(2):
                for q in range(4):
                    pre[n0 + 4 + pi].append(f"v_cvt_pk_bf16_f32 v{bx+4*pi+q}, v{vBXD+8*pi+2*q}, v{vBXD+8*pi+2*q+1}")
                for dl in range(3):
                    t = F + dl + 2
                    if t < 8:
                        extra[n0 + 5 + pi].append((t, V(bx + 4 * pi, 4), A(aHK2 + 4 * (3 * pi + dl), 4)))
                        last[t] = max(last[t], n0 + 5 + pi)
            n0 += 5
        else:
            pi = jb[2]
            for om in range(2):
                pre[n0].append(f"ds_read_b128 {A(ap+4*om,4)}, v{a3} offset:{1024*F+128*om+16*pi}")
                extra[n0 + 2].append(f"v_mfma_f32_16x16x32_bf16 {V(vBXD+4*om,4)}, {A(ap+4*om,4)}, {A(aBAND+8+4*pi,4)}, 0")
            for q in range(4):
                pre[n0 + 4].append(f"v_cvt_pk_bf16_f32 v{bx+q}, v{vBXD+2*q}, v{vBXD+2*q+1}")
            for a2_ in range(4):
                q = a2_ - 2 * F
                if q >= 0:
                    extra[n0 + 5].append((a2_ + 4, V(bx, 4), A(aHK3 + 4 * (4 * pi + q), 4)))
                    last[a2_ + 4] = max(last[a2_ + 4], n0 + 5)
            n0 += 5
    for t in range(8):
        n = last[t] + 3
        e = vEP + 2 * (t & 1)
        pre[n] += [f"v_cvt_pk_bf16_f32 v{e}, v{vACC+4*t}, v{vACC+4*t+1}", f"v_cvt_pk_bf16_f32 v{e+1}, v{vACC+4*t+2}, v{vACC+4*t+3}",
                   I(f"ds_write_b64 v{yw}, {V(e,2)} offset:{512*t}", tag=f"y{ch}{t}")]
        if ch == 1:
            w = Asm(); w.wait(f"y1{t}"); w("s_barrier")
            tb = vTB + 4 * (t & 1)
            w(f"ds_read_b64_tr_b16 {V(tb,2)}, v{vOR} offset:{512*t}\nds_read_b64_tr_b16 {V(tb+2,2)}, v{vOR} offset:{512*t+4*SY}", tag=f"yr{t}")
            pre[n + 1] += w.ins
            pre[n + 3] += [f"s_mov_b32 s{sT0}, {256*2304*t}", f"buffer_store_dwordx4 {V(tb,4)}, v{vOS}, s[20:23], s{sT0} offen {Y_FLAGS}"]
    emit = lambda x: a(x) if isinstance(x, str) else a.ins.append(x)
    for s in head:
        a(s)
    for n in range(NS + 8):
        ms = []
        if ch == 0 and n % 8 == 0: prof(a, 20 + n // 8)
        if n < NS:
            phi = n - 7
            for s in list(range(17)) + [32]:
                if (phi + s) % 8 == 0 and 0 <= (phi + s) // 8 < 8:
                    ms.append(((phi + s) // 8, V(vKFX, 4) if s == 32 else A(aKF + 4 * s, 4), A(aUF + 4 * (n % NR), 4)))
        ms += extra[n]
        fill = list(pre[n])
        per = -(-len(fill) // max(1, len(ms)))
        for m in ms:
            a(m if isinstance(m, str) else mm(*m))
            for _ in range(per):
                if fill:
                    emit(fill.pop(0))
        for f in fill + blk[n]:
            emit(f)


def gen_a(prof):
    a = Asm()
    a("L_A:")
    a("s_load_dwordx16 s[52:67], s[0:1], 0")
    a(f"s_mov_b32 s{sJJ}, s{sJ}\ns_lshr_b32 s{sT0}, s{sX}, 2\ns_sub_u32 s{sAG}, s{sX}, s{sT0}\ns_lshl_b32 s{sAG}, s{sAG}, 3")
    a(f"s_mul_i32 s{sT1}, s{sT0}, 12\ns_add_u32 s{sT1}, s{sT1}, 48\ns_cmp_eq_u32 s{sNA}, 16\ns_cselect_b32 s{sAG}, s{sT1}, s{sAG}\ns_add_u32 s{sAG}, s{sAG}, s{sJJ}")
    a(f"s_lshl_b32 s{sIDX}, s{sT0}, 2\ns_add_u32 s{sIDX}, s{sIDX}, s{sJJ}\ns_sub_u32 s{sIDX}, s{sIDX}, 12")
    a(f"v_lshrrev_b32 v{vT0}, 6, v0\nv_and_b32 v{vLANE}, 63, v0\nv_readfirstlane_b32 s{sW}, v{vT0}")
    a(f"s_lshl_b32 s{sT0}, s{sAG}, 11\ns_lshl_b32 s{sT1}, s{sW}, 9\ns_add_u32 s{sT0}, s{sT0}, s{sT1}")
    a(f"v_lshl_add_u32 v{vT1}, v{vLANE}, 2, s{sT0}")
    a(f"v_lshlrev_b32 v{vT2}, 4, v{vLANE}")
    a(f"s_add_u32 s6, s4, L_TABA-L_PC\ns_addc_u32 s7, s5, 0")
    prof(a, 30)
    a("s_waitcnt lgkmcnt(0)")
    prof(a, 31)
    a(f"s_cmp_ge_u32 s{sJJ}, 12\ns_cbranch_scc1 L_SPARE")
    a(f"s_lshl_b32 s{sT0}, s{sAG}, 4\ns_lshl_b32 s{sT1}, s{sW}, 2\ns_add_u32 s{sT0}, s{sT0}, s{sT1}")
    a(f"s_load_dword s{sLDT}, s[{pLOGDT}:{pLOGDT+1}], s{sT0}\ns_load_dword s{sDSK}, s[{pDSKIP}:{pDSKIP+1}], s{sT0}")
    for ch in range(2):
        for k in range(6):
            a(f"global_load_dword v{vP+6*ch+k}, v{vT1}, s[{54+2*k}:{55+2*k}] offset:{256*ch}")
    a(f"global_load_dwordx4 {V(vTAB5,4)}, v{vT2}, s[6:7]")
    a(f"global_load_dwordx4 {V(vMASK,4)}, v{vT2}, s[6:7] offset:1024")
    a(f"s_add_u32 s6, s6, 2048\ns_addc_u32 s7, s7, 0")
    for k in range(4):
        a(f"global_load_dwordx4 {A(aBAND+4*k,4)}, v{vT2}, s[6:7] offset:{1024*k}")
    prof(a, 32)
    if "nopf" not in EXP:
        srd(a, 12, pW, 576 * 3456)
        t, ln, blk = 34, 35, sEX
        a(f"s_lshl_b32 s{t}, s{sJ}, 2\ns_add_u32 s{t}, s{t}, s{sW}\nv_mul_u32_u24 v{vW}, 3456, v{vLANE}")
        a(f"s_and_b32 s{ln}, s{t}, 1\ns_mul_i32 s{ln}, s{ln}, 9\ns_add_u32 s{ln}, s{ln}, 9\ns_lshr_b32 s{blk}, s{t}, 1")
        a(f"s_sub_u32 s{sT0}, s{blk}, 9\ns_mul_i32 s{sT0}, s{sT0}, 3\ns_add_u32 s{sT0}, s{sT0}, 2\ns_and_b32 s{sT1}, s{sX}, 4\ns_lshl_b32 s{sT1}, s{sT1}, 1")
        a(f"s_cmp_lt_u32 s{t}, 18\ns_cselect_b32 s{blk}, s{blk}, s{sT0}\ns_cselect_b32 s{sT1}, 4, s{sT1}\ns_add_u32 s{ln}, s{ln}, s{sT1}")
        a(f"s_sub_u32 s{sT0}, s{t}, 24\ns_cmp_ge_u32 s{t}, 24\ns_cselect_b32 s{blk}, s{sT0}, s{blk}\ns_cselect_b32 s{ln}, 4, s{ln}")
        a(f"s_mul_i32 s{blk}, s{blk}, {64*27}\ns_add_u32 s{ln}, s{ln}, s{blk}\ns_lshl_b32 s{ln}, s{ln}, 7")
        pf_load(a, vW, 12, ln)
    prof(a, 0)
    srd(a, 16, 52, 2048 * 1152)
    srd(a, 20, pOUT, 2048 * 2304)
    L = vLANE
    t0, t1, t2, t3 = vW, vW + 1, vW + 2, vW + 3
    r16, g = vW + 4, vW + 5
    a(f"v_and_b32 v{r16}, 15, v{L}\nv_lshrrev_b32 v{g}, 4, v{L}")
    a(f"s_mul_i32 s{sT0}, s{sW}, {KGW}\ns_mov_b32 s{sKG}, s{sT0}\ns_mov_b32 m0, s{sT0}")
    a(f"v_and_b32 v{t0}, 31, v{L}\nv_lshrrev_b32 v{t1}, 5, v{L}")
    a(f"v_mul_u32_u24 v{t2}, 528, v{t0}\nv_lshl_add_u32 v{t2}, v{t1}, 4, v{t2}\nv_add_u32 v{vKGB}, s{sT0}, v{t2}")
    a(f"v_lshlrev_b32 v{t2}, 4, v{t0}\nv_lshl_add_u32 v{t2}, v{t1}, 3, v{t2}\nv_sub_u32 v{vKW}, 568, v{t2}")
    a(f"v_lshlrev_b32 v{t2}, 1, v{L}\nv_sub_u32 v{vK2W}, 190, v{t2}")
    a(f"v_and_b32 v{t2}, 1, v{t0}\nv_mul_u32_u24 v{t2}, 384, v{t2}\nv_and_b32 v{t3}, 30, v{t0}\nv_add_u32 v{t2}, v{t2}, v{t3}")
    a(f"v_lshl_add_u32 v{t2}, v{t1}, 6, v{t2}\nv_sub_u32 v{vK3W}, {384+96}, v{t2}")
    a(f"v_and_b32 v{t0}, 1, v{r16}\nv_add_u32 v{t1}, v{r16}, v{t0}\nv_lshlrev_b32 v{t2}, 3, v{g}\nv_sub_u32 v{t1}, v{t2}, v{t1}")
    a(f"v_lshlrev_b32 v{t1}, 1, v{t1}")
    a(f"v_mul_u32_u24 v{t2}, {KO-KE}, v{t0}\nv_add3_u32 v{vKFA}, v{t1}, v{t2}, 32\nv_add_u32 v{vKFB}, 1024, v{vKFA}")
    a(f"v_mul_u32_u24 v{t2}, 192, v{t0}\nv_add_u32 v{t2}, {K3+32}, v{t2}\nv_add_u32 v{vHK3}, v{t1}, v{t2}")
    a(f"v_lshlrev_b32 v{t1}, 4, v{g}\nv_lshlrev_b32 v{t2}, 2, v{r16}\nv_sub_u32 v{t2}, v{t1}, v{t2}\nv_add_u32 v{vHK2}, {K2+60}, v{t2}")
    a(f"v_lshl_add_u32 v{t2}, v{r16}, 5, v{t1}\nv_add_u32 v{vUF}, {UT+32}, v{t2}")
    a(f"v_lshrrev_b32 v{t2}, 2, v{r16}\nv_and_b32 v{t3}, 3, v{r16}\nv_lshl_add_u32 v{t0}, v{t2}, 3, v{t3}")
    a(f"v_lshl_add_u32 v{vA2}, v{t0}, 4, v{t1}\nv_add_u32 v{vA2}, {UT+464}, v{vA2}")
    a(f"v_lshl_add_u32 v{vA3}, v{t0}, 5, v{t1}\nv_add_u32 v{vA3}, {UT+464}, v{vA3}")
    a(f"v_lshlrev_b32 v{t0}, 3, v{g}\nv_lshl_add_u32 v{t0}, v{r16}, 5, v{t0}\nv_add_u32 v{vYW}, {YT}, v{t0}")
    a(f"v_lshrrev_b32 v{t0}, 2, v{L}\nv_and_b32 v{t0}, 4, v{t0}\nv_xor_b32 v{t0}, v{t0}, v{L}\nv_mul_u32_u24 v{t0}, 1152, v{t0}")
    a(f"s_mul_i32 s{sT0}, s{sW}, {512*1152}\ns_lshl_b32 s{sT1}, s{sAG}, 4\ns_add_u32 s{sT0}, s{sT0}, s{sT1}\nv_add_u32 v{vDMA}, s{sT0}, v{t0}")
    a(f"v_lshrrev_b32 v{t0}, 1, v{g}\nv_lshlrev_b32 v{t0}, 5, v{t0}\nv_lshl_add_u32 v{t0}, v{t3}, 3, v{t0}\nv_add_u32 v{t0}, v{t0}, v{t2}")
    a(f"v_and_b32 v{t1}, 2, v{t3}\nv_lshlrev_b32 v{t1}, 1, v{t1}")
    a(f"v_xor_b32 v{vTR0}, v{t0}, v{t1}\nv_xor_b32 v{vTR1}, 4, v{vTR0}")
    a(f"s_lshl_b32 s{sT0}, s{sW}, 13\ns_add_u32 s{sT0}, s{sT0}, {U0}")
    a(f"v_and_b32 v{t1}, 1, v{g}\nv_lshl_add_u32 v{t0}, v{t1}, 3, s{sT0}")
    a(f"v_lshl_add_u32 v{vTR0}, v{vTR0}, 4, v{t0}\nv_lshl_add_u32 v{vTR1}, v{vTR1}, 4, v{t0}")
    a(f"v_lshl_add_u32 v{t1}, v{t1}, 2, v{t3}\nv_mul_u32_u24 v{t1}, {SU}, v{t1}")
    a(f"v_lshrrev_b32 v{t0}, 1, v{g}\nv_lshlrev_b32 v{t0}, 6, v{t0}\nv_lshl_add_u32 v{t0}, v{t2}, 4, v{t0}")
    a(f"s_lshl_b32 s{sT0}, s{sW}, 10\ns_add_u32 s{sT0}, s{sT0}, {UT+512}\nv_add3_u32 v{vTW}, v{t0}, v{t1}, s{sT0}")
    a(f"v_mul_u32_u24 v{t0}, {SY}, v{t2}\nv_lshl_add_u32 v{t0}, v{g}, 5, v{t0}\nv_lshl_add_u32 v{t0}, v{t3}, 3, v{t0}")
    a(f"s_lshl_b32 s{sT0}, s{sW}, 7\ns_add_u32 s{sT0}, s{sT0}, {YT}\nv_add_u32 v{vOR}, s{sT0}, v{t0}")
    a(f"s_mul_i32 s{sT0}, s{sW}, {64*2304}\ns_lshl_b32 s{sT1}, s{sAG}, 4\ns_add_u32 s{sT0}, s{sT0}, s{sT1}")
    a(f"v_mul_u32_u24 v{t0}, 2304, v{L}\nv_add_u32 v{vOS}, s{sT0}, v{t0}")
    a(f"v_mov_b32 v{vZ}, 0\nv_mov_b32 v{vZ+1}, 0\nv_mov_b32 v{vZ+2}, 0\nv_mov_b32 v{vZ+3}, 0")
    a(f"v_lshrrev_b32 v{t0}, 5, v{L}\nv_mul_u32_u24 v{t0}, {SU}, v{t0}\nv_and_b32 v{t1}, 31, v{L}\nv_lshl_add_u32 v{t0}, v{t1}, 4, v{t0}")
    a(f"s_mul_i32 s{sT0}, s{sW}, {2*SU}\nv_add_u32 v{t0}, s{sT0}, v{t0}\nv_add_u32 v{t0}, {UT}, v{t0}\nds_write_b128 v{t0}, {V(vZ,4)}")
    a(f"s_mul_i32 s{sT0}, s{sW}, {KGW}\ns_add_u32 s{sT0}, s{sT0}, {KG}\nv_add_u32 v{vKGA}, s{sT0}, v{vTAB5}")
    a("s_waitcnt lgkmcnt(0)")
    prof(a, 1)

    a(f"s_lshl_b32 s{sU0}, s{sW}, 13\ns_add_u32 s{sU0}, s{sU0}, {U0}")
    a(f"s_and_b32 s{sUB}, s{sJJ}, 7\ns_mov_b32 s{sTB}, s{sUB}\ns_lshl_b32 s34, s{sUB}, 7\nv_add_u32 v{vTW}, s34, v{vTW}")
    DMA_AT = DMA_PLAN
    TR_AT = TR_PLAN
    kf0 = sum([rd_kf(0, s_) for s_ in range(17)], [])

    def hook(a, ch, n):
        if (ch, n) in DMA_AT:
            i = DMA_AT.index((ch, n))
            a(f"s_add_u32 m0, s{sU0}, {1024*i}\ns_mul_i32 s34, s{sUB}, {64*1152}")
            a(f"buffer_load_dwordx4 v{vDMA}, s[16:19], s34 offen lds", tag=f"u{i}")
            a(f"s_mov_b32 m0, s{sKG}\ns_add_u32 s{sUB}, s{sUB}, 1\ns_and_b32 s{sUB}, s{sUB}, 7")
        if (ch, n) in TR_AT:
            i = TR_AT.index((ch, n)); a.wait(f"u{i}")
            a(f"ds_read_b64_tr_b16 {V(vTB,2)}, v{vTR0} offset:{1024*i}\nds_read_b64_tr_b16 {V(vTB+2,2)}, v{vTR1} offset:{1024*i}")
        if (ch, n - 2) in TR_AT:
            a(f"ds_write_b128 v{vTW}, {V(vTB,4)}")
            a(f"s_cmp_eq_u32 s{sTB}, 7\ns_cselect_b32 s34, 0x400, 0\ns_sub_u32 s34, 0x80, s34\ns_add_u32 s{sTB}, s{sTB}, 1\nv_add_u32 v{vTW}, s34, v{vTW}")
        if ch == 1 and kf0 and n < 55:
            a(kf0.pop(0))
    a.ext(ksetup(0))
    kgen(a, 0, prof, hook, ksetup(1).ins)
    a.ext(conv_addr())
    prof(a, 2)
    kgen(a, 1, prof, hook, [])
    assert not kf0
    prof(a, 3)
    a("s_waitcnt lgkmcnt(0)\ns_barrier")
    prof(a, 4)
    conv(a, 0, prof)
    prof(a, 5)
    conv(a, 1, prof)
    if "wb1" in EXP:
        a(f"s_waitcnt vmcnt(0)\ns_barrier\ns_cmp_lg_u32 s{sW}, 0\ns_cbranch_scc1 L_END\nbuffer_wbl2 sc1")
    if "wb2" in EXP:
        a(f"s_waitcnt vmcnt(0)\ns_barrier\ns_cmp_lg_u32 s{sW}, 0\ns_cbranch_scc1 L_END\ns_and_b32 s34, s{sJJ}, 3\ns_cmp_lg_u32 s34, 3\ns_cbranch_scc1 L_END\nbuffer_wbl2 sc1")
    prof(a, 7, final=True)
    a("s_endpgm")
    main = finish(a)
    b = Asm()
    b("L_SPARE:")
    srd(b, 16, pWS, S2_OFF)
    srd(b, 20, pWS, SENT_SIZE)
    srd(b, 24, pDBG, 256)
    b(f"v_mov_b32 v{vZ}, -1\nv_mov_b32 v{vZ+1}, -1\nv_mov_b32 v{vZ+2}, -1\nv_mov_b32 v{vZ+3}, -1\nv_mov_b32 v{vT0}, 1\nv_mov_b32 v{vT1}, 0")
    b(f"s_lshl_b32 s{sT2}, s{sIDX}, 2\ns_add_u32 s{sT2}, s{sT2}, s{sW}")
    for part, (r, n, base) in enumerate(((16, 17, 0), (20, 72, S2_OFF))):
        b(f"s_mul_i32 s{sT0}, s{sT2}, {n*1024}\ns_add_u32 s{sT0}, s{sT0}, {base}\ns_add_u32 s{sT1}, s{sT0}, {n*1024}")
        b(f"L_FILL{part}:\nbuffer_store_dwordx4 {V(vZ,4)}, v{vT2}, s[{r}:{r+3}], s{sT0} offen sc1")
        b(f"s_add_u32 s{sT0}, s{sT0}, 1024\ns_cmp_lt_u32 s{sT0}, s{sT1}\ns_cbranch_scc1 L_FILL{part}")
        b(f"s_waitcnt vmcnt(0)\ns_barrier\ns_cmp_lg_u32 s{sW}, 0\ns_cbranch_scc1 L_FILLED{part}")
        b(f"s_mov_b64 exec, 1\nbuffer_atomic_add v{vT0}, v{vT1}, s[24:27], 0 offen offset:{64*part} sc1\ns_mov_b64 exec, -1\nL_FILLED{part}:")
    b("s_endpgm")
    return main + finish(b)
```

```python
from asmlib import *
from gen_common import *
import numpy as np

SU = 4640
SY = 4160
KGW = 32 * 528
KG = 0
UT = 4 * KGW
U0 = UT + 8 * SU
YT = U0
KA0 = U0 + 8 * SY
KASZ = 3584
A_LDS_END = KA0 + 4 * KASZ
KE, KO, K2, K3 = 0, 1120, 2240, 2752
XC = list(range(9)) + [256, 258, 260, 262, 264, 516, 520, 772, 776, 1032, 1288, 1544, 1800]


def table_a():
    T = np.zeros((6, 64, 4), np.uint32)
    one = 0x3F80
    for l in range(64):
        r, g = l % 16, l // 16
        for bi, (ctr, w) in enumerate([(8, 2), (12, 1), (8, 4), (8, 3)]):
            for dw in range(4):
                v = 0
                for hf in range(2):
                    k = 8 * g + 2 * dw + hf
                    if abs(k - (r + ctr)) <= w:
                        v |= one << (16 * hf)
                T[bi, l, dw] = v
        for dw in range(4):
            v = 0
            for hf in range(2):
                if 8 * g + 2 * dw + hf - r in (12, 13):
                    v |= 0xFFFF << (16 * hf)
            T[4, l, dw] = v
        io, hh = l % 32, l // 32
        rho, h = 4 * (io // 8) + io % 4, (io // 4) % 2
        if rho < 5:
            c = 4 * h + rho
        elif rho < 8:
            c = 256 + 4 * h + 2 * (rho - 5)
        elif rho < 12:
            c = [(516, 772), (520, 776), (1032, 1544), (1288, 1800)][rho - 8][h]
        else:
            c = 0
        T[5, l, 0] = XC.index(c) * 528 + 16 * hh
    return T


vLANE = 1
vP = 2
vTAB5 = 14
vMASK = 18
vKGW, vKGB, vKGA = 22, 23, 24
vT0, vT1, vT2, vT3 = 25, 26, 27, 28
vKW, vK2W, vK3W = 29, 30, 31
vW = 32
vD = 96
vKFA, vKFB, vHK2, vHK3, vUF, vA2, vA3, vYW = 112, 113, 114, 115, 116, 117, 118, 119
vACC = 120
vBXD = 152
vBX = 168
vKFX = 184
vEP = 188
vZ = 192
vDMA, vTR0, vTR1, vTW, vOR, vOS = 196, 197, 198, 199, 200, 201
vTB = 204
vKA = 228
aBAND = 0
aY = 16
aX = 80
aKFS = (184, 16)
aHK2 = 84
aHK3 = 108
aUF = 140
aAP = 168
sW, sAG, sIDX, sJJ, sWI = 68, 69, 70, 71, 77
sLDT, sDSK = 72, 73
sT0, sT1, sT2 = 74, 75, 76
sKG, sU0 = 78, 79
sEX = 80


import os
Y_FLAGS = os.environ.get("YF", "")
EXP = os.environ.get("EXP", "").split(",")
sUB, sTB = 84, 85
DMA_PLAN = [(0, 2), (0, 36), (0, 46), (0, 55), (1, 8), (1, 19), (1, 30), (1, 41)]
TR_PLAN = [(0, 50), (0, 55), (1, 3), (1, 13), (1, 24), (1, 35), (1, 46), (1, 55)]


def cmul(a, z, x, y, t, conj=False):
    n = "neg_hi:[1,0,0]" if conj else "neg_lo:[1,0,0]"
    return [f"v_pk_mul_f32 {V(t,2)}, {V(x,2)}, {V(y,2)} op_sel_hi:[1,0]",
            f"v_pk_fma_f32 {V(z,2)}, {V(x,2)}, {V(y,2)}, {V(t,2)} op_sel:[1,1,0] op_sel_hi:[0,1,1] {n}"]


base = [vW, vW + 30]
AB, E1, E8, G, X, T, S0, S1, U = 0, 2, 4, 6, 8, 10, 12, 14, 16
CC, BB = 18, 20
PK = vW + 60


def ksetup(ch):
    a = Asm()
    p = vP + 6 * ch
    dt = vW + 24
    if ch == 0:
        a(f"s_lshl_b32 s{sT0}, s{sLDT}, 16")
    else:
        a(f"s_and_b32 s{sT0}, s{sLDT}, 0xffff0000")
    a(f"v_mov_b32 v{dt}, s{sT0}\nv_mul_f32 v{dt}, 0x3fb8aa3b, v{dt}\nv_exp_f32 v{dt}, v{dt}")
    for n in range(2):
        b = base[n]
        un = (lambda d, s: f"v_lshlrev_b32 v{d}, 16, v{s}") if n == 0 else (lambda d, s: f"v_and_b32 v{d}, 0xffff0000, v{s}")
        a(un(b + AB, p + 0)); a(un(b + AB + 1, p + 1))
        if n == 0:
            a(f"v_cvt_pk_bf16_f32 v{dt}, v{dt}, v{dt}\nv_lshlrev_b32 v{dt}, 16, v{dt}")
        a(un(b + BB, p + 2)); a(un(b + BB + 1, p + 3))
        a(un(b + CC, p + 4)); a(un(b + CC + 1, p + 5))
    for n in range(2):
        b = base[n]
        a(f"v_mul_f32 v{b+AB}, v{dt}, v{b+AB}\nv_mul_f32 v{b+AB+1}, v{dt}, v{b+AB+1}")
        a(f"v_mul_f32 v{b+AB}, 0x3fb8aa3b, v{b+AB}\nv_mul_f32 v{b+AB+1}, 0x3e22f983, v{b+AB+1}")
    for dst, mul in ((E8, "0x41000000"), (E1, None), (G, "0x43800000")):
        for n in range(2):
            b = base[n]
            if mul is None:
                a(f"v_exp_f32 v{b+U}, v{b+AB}\nv_fract_f32 v{b+T}, v{b+AB+1}")
            else:
                a(f"v_mul_f32 v{b+U}, {mul}, v{b+AB}\nv_mul_f32 v{b+T}, {mul}, v{b+AB+1}")
                a(f"v_exp_f32 v{b+U}, v{b+U}\nv_fract_f32 v{b+T}, v{b+T}")
        for n in range(2):
            b = base[n]
            a(f"v_cos_f32 v{b+dst}, v{b+T}\nv_sin_f32 v{b+dst+1}, v{b+T}")
        if dst == E8:
            for n in range(2):
                b = base[n]
                a(f"v_mul_f32 v{b+BB}, v{dt}, v{b+BB}\nv_mul_f32 v{b+BB+1}, v{dt}, v{b+BB+1}")
                a(f"v_mul_f32 v{b+X}, v{b+CC}, v{b+BB}\nv_mul_f32 v{b+X+1}, v{b+CC}, v{b+BB+1}")
                a(f"v_fma_f32 v{b+X}, -v{b+CC+1}, v{b+BB+1}, v{b+X}\nv_fma_f32 v{b+X+1}, -v{b+CC+1}, v{b+BB}, -v{b+X+1}")
        for n in range(2):
            b = base[n]
            a(f"v_mul_f32 v{b+dst}, v{b+dst}, v{b+U}\nv_mul_f32 v{b+dst+1}, v{b+dst+1}, v{b+U}")
    return a


def kgen(a, ch, prof, hook, shadow):
    cnt = [0]

    def put(reg, row):
        pk = PK + 2 * (cnt[0] & 1); cnt[0] += 1
        a(f"v_cvt_pk_bf16_f32 v{pk}, v{base[0]+reg}, v{base[0]+reg+1}")
        a(f"v_cvt_pk_bf16_f32 v{pk+1}, v{base[1]+reg}, v{base[1]+reg+1}")
        a(f"ds_write_addtid_b32 v{pk} offset:{row*528}\nds_write_addtid_b32 v{pk+1} offset:{row*528+256}")
        hook(a, ch, cnt[0])

    def mul2(z, x, y, conj):
        m = [cmul(a, base[n] + z, base[n] + x, base[n] + y, base[n] + T, conj) for n in range(2)]
        a(m[0][0]); a(m[1][0]); a(m[0][1]); a(m[1][1])
    prof(a, 10 + 5 * ch)
    a(f"v_mov_b32 v{PK}, 0x3f80\nds_write_addtid_b32 v{PK}\nds_write_addtid_b32 v{PK} offset:256")
    cnt[0] = 1
    put(E8, 1)
    mul2(S0, E8, E8, False); put(S0, 2)
    for j in range(3, 32):
        mul2(S0, S0, E8, False); put(S0, j)
    prof(a, 11 + 5 * ch)
    for k in range(16):
        a(f"ds_read_b128 {A(aY+4*k,4)}, v{vKGB} offset:{32*k}")
        if k == 7:
            mul2(U, X, G, True)
    prof(a, 12 + 5 * ch)
    for c in range(9):
        if c:
            mul2(X, X, E1, True)
        put(X, c)
        if c % 2 == 0:
            d = S0 if c == 4 else (S1 if c == 8 else U)
            if c:
                mul2(d, X, G, True)
            put(d, XC.index(256 + c))
    for c in (516, 772):
        mul2(S0, S0, G, True); put(S0, XC.index(c))
        mul2(S1, S1, G, True); put(S1, XC.index(c + 4))
    for c in (1032, 1288, 1544, 1800):
        mul2(S1, S1, G, True); put(S1, XC.index(c))
    prof(a, 13 + 5 * ch)
    for k in range(4):
        a(f"ds_read_b128 {A(aX+4*k,4)}, v{vKGA} offset:{32*k}")
    if ch == 0:
        a(f"s_mul_i32 s{sT2}, s{sW}, {KASZ}\ns_add_u32 s{sT2}, s{sT2}, {KA0}")
    else:
        a(f"s_mul_i32 s{sT2}, s{sW}, {KGW}\ns_add_u32 s{sT2}, s{sT2}, {KG}")
    a(f"v_lshl_add_u32 v{vT0}, v{vLANE}, 4, s{sT2}")
    a(f"v_add_u32 v{vT1}, s{sT2}, v{vKW}\nv_add_u32 v{vT2}, s{sT2}, v{vK2W}\nv_add_u32 v{vT3}, s{sT2}, v{vK3W}")
    if ch == 0:
        a(f"s_lshl_b32 s{sT1}, s{sDSK}, 16")
    else:
        a(f"s_and_b32 s{sT1}, s{sDSK}, 0xffff0000")
    m = Asm()
    sh = list(shadow)
    for k in range(16):
        m(f"v_mfma_f32_32x32x16_bf16 {V(vD,16)}, {A(aX+4*k,4)}, {A(aY+4*k,4)}, {'0' if k == 0 else V(vD,16)}")
        if k < 12:
            m(f"ds_read_b128 {A(aX+4*k+16,4)}, v{vKGA} offset:{32*k+128}")
        if k in (12, 13, 14):
            m(f"ds_write_b128 v{vT0}, {V(vZ,4)} offset:{(k-12)*1024}")
        n = -(-len(sh) // (16 - k))
        dd, sh = take(sh, n); m.ext(dd)
    a.ext(m)
    prof(a, 14 + 5 * ch)
    hook(a, ch, 55)
    a(f"s_mov_b32 exec_hi, 0\nds_write_b128 v{vT0}, {V(vZ,4)} offset:3072\ns_mov_b64 exec, 1")
    a(f"v_add_f32 v{vD}, s{sT1}, v{vD}\ns_mov_b64 exec, -1")
    t = vACC
    d = vD
    a(f"v_cvt_pk_bf16_f32 v{t}, v{d+3}, v{d+2}\nv_cvt_pk_bf16_f32 v{t+1}, v{d+1}, v{d}")
    a(f"v_cvt_pk_bf16_f32 v{t+2}, v{d+4}, v{d+3}\nv_cvt_pk_bf16_f32 v{t+3}, v{d+2}, v{d+1}")
    a(f"ds_write_b64 v{vT1}, {V(t,2)} offset:{KO+512}\nds_write_b64 v{vT1}, {V(t+2,2)} offset:{KE+512}")
    a(f"v_cvt_pk_bf16_f32 v{t+4}, v{d+7}, v{d+6}\nv_cvt_pk_bf16_f32 v{t+5}, v{d+5}, v{d+5}")
    a(f"v_cvt_pk_bf16_f32 v{t+6}, v{d+7}, v{d+7}\nv_cvt_pk_bf16_f32 v{t+7}, v{d+6}, v{d+5}")
    a(f"ds_write_b64 v{vT1}, {V(t+4,2)} offset:{KO}\nds_write_b64 v{vT1}, {V(t+6,2)} offset:{KE}")
    a(f"v_cvt_pk_bf16_f32 v{t+8}, v{d+8}, v{d+9}\nv_cvt_pk_bf16_f32 v{t+9}, v{d+10}, v{d+11}")
    a(f"ds_write_b16 v{vT2}, v{t+8} offset:{K2+256}\nds_write_b16_d16_hi v{vT2}, v{t+8} offset:{K2}")
    a(f"ds_write_b16 v{vT3}, v{t+9} offset:{K3+32}\nds_write_b16 v{vT3}, v{t+9} offset:{K3+32+190}")
    a(f"ds_write_b16_d16_hi v{vT3}, v{t+9} offset:{K3}\nds_write_b16_d16_hi v{vT3}, v{t+9} offset:{K3+190}")
    a(f"v_and_b32 v{t+10}, 0xffff0000, v{t+6}\nv_mov_b32 v{t+11}, v{t+6}\nv_lshrrev_b32 v{t+12}, 16, v{t+1}")
    a(f"v_mov_b32 v{t+13}, s{sT2}")
    a(f"s_mov_b32 exec_lo, 0\ns_mov_b32 exec_hi, 0x80000000")
    a(f"ds_write_b32 v{t+13}, v{t+6} offset:{KE+60}\nds_write_b64 v{t+13}, {V(t+10,2)} offset:{KO+56}")
    a(f"s_mov_b64 exec, 1\nds_write_b32 v{t+13}, v{t+12} offset:{KE+1088}\ns_mov_b64 exec, -1")
    a(f"v_readlane_b32 s{82+ch}, v{t+8}, 63")
    hook(a, ch, 57)


def conv_addr():
    a = Asm()
    for ch in range(2):
        if ch == 0:
            a(f"s_mul_i32 s34, s{sW}, {KASZ}\ns_add_u32 s34, s34, {KA0}")
        else:
            a(f"s_mul_i32 s34, s{sW}, {KGW}")
        kfa, kfb, hk2, hk3, uf, a2, a3, yw = range(vKA + 8 * ch, vKA + 8 * ch + 8)
        a(f"v_add_u32 v{kfa}, s34, v{vKFA}\nv_add_u32 v{kfb}, s34, v{vKFB}\nv_add_u32 v{hk2}, s34, v{vHK2}\nv_add_u32 v{hk3}, s34, v{vHK3}")
        a(f"s_lshl_b32 s34, s{sW}, 1\ns_add_u32 s34, s34, {ch}\ns_mul_i32 s35, s34, {SY}\ns_mul_i32 s34, s34, {SU}")
        a(f"v_add_u32 v{uf}, s34, v{vUF}\nv_add_u32 v{a2}, s34, v{vA2}\nv_add_u32 v{a3}, s34, v{vA3}\nv_add_u32 v{yw}, s35, v{vYW}")
    return a


def rd_kf(ch, s):
    r = aKFS[ch] + 4 * s
    ad, o = (vKA + 8 * ch + 1, 0) if s == 0 else (vKA + 8 * ch, 16 * (16 - s))
    return [f"ds_read2_b32 {A(r,2)}, v{ad} offset0:{o} offset1:{o+1}", f"ds_read2_b32 {A(r+2,2)}, v{ad} offset0:{o+2} offset1:{o+3}"]


def kfx(ch):
    o = [f"s_lshr_b32 s34, s{82+ch}, 16", f"s_and_b32 s35, s{82+ch}, 0xffff0000", "s_or_b32 s34, s34, s35"]
    return o + [f"v_and_b32 v{vKFX+k}, s34, v{vMASK+k}" for k in range(4)]


def conv(a, ch, prof):
    kfa, kfb, hk2, hk3, uf, a2, a3, yw = range(vKA + 8 * ch, vKA + 8 * ch + 8)
    aKF = aKFS[ch]

    def rd_hk2(pi, dl):
        r = aHK2 + 4 * (3 * pi + dl); o = 16 * (2 - dl) + 64 * pi
        return [f"ds_read2_b32 {A(r,2)}, v{hk2} offset0:{o} offset1:{o+1}", f"ds_read2_b32 {A(r+2,2)}, v{hk2} offset0:{o+2} offset1:{o+3}"]

    def rd_hk3(pi, q):
        r = aHK3 + 4 * (4 * pi + q); o = (48 - 16 * q) // 2 + 96 * pi
        return [f"ds_read2_b32 {A(r,2)}, v{hk3} offset0:{o} offset1:{o+1}", f"ds_read2_b32 {A(r+2,2)}, v{hk3} offset0:{o+2} offset1:{o+3}"]
    NR = 7
    rd_uf = lambda n: f"ds_read_b128 {A(aUF+4*(n % NR),4)}, v{uf} offset:{64*n}"
    touched = set()

    def mm(t, x, y):
        c = V(vACC + 4 * t, 4) if t in touched else "0"
        touched.add(t)
        return f"v_mfma_f32_16x16x32_bf16 {V(vACC+4*t,4)}, {x}, {y}, {c}"
    NS = 64
    pre = [[] for _ in range(NS + 8)]
    extra = [[] for _ in range(NS + 8)]
    blk = [[] for _ in range(NS + 8)]
    last = [8 * t + 7 for t in range(8)]
    LA = 5
    head = [rd_uf(n) for n in range(LA)]
    for n in range(NS - LA):
        pre[n].append(rd_uf(n + LA))
    pre[0] += kfx(ch)[:4]; pre[1] += kfx(ch)[4:]
    hk = sum([rd_hk2(pi, dl) for pi in range(2) for dl in range(3)], []) + sum([rd_hk3(pi, q) for pi in range(2) for q in range(4)], [])
    for i, x in enumerate(hk):
        pre[i // 2 if i < 12 else i - 6].append(x)
    if ch == 0:
        for i, x in enumerate(sum([rd_kf(1, s) for s in range(17)], [])):
            pre[24 + i].append(x)
    jobs = [("2", 0), ("2", 1), ("3", 0, 0), ("3", 0, 1), ("2", 2), ("2", 3), ("3", 1, 0), ("3", 1, 1), ("2", 4), ("2", 5)]
    n0 = 7
    for ji, jb in enumerate(jobs):
        ap = aAP + 8 * (ji & 1); bx = vBX + 8 * (ji & 1)
        F = jb[1]
        if jb[0] == "2":
            for om in range(2):
                pre[n0].append(f"ds_read_b128 {A(ap+4*om,4)}, v{a2} offset:{512*F+64*om}")
            for pi in range(2):
                for om in range(2):
                    extra[n0 + 2].append(f"v_mfma_f32_16x16x32_bf16 {V(vBXD+8*pi+4*om,4)}, {A(ap+4*om,4)}, {A(aBAND+4*pi,4)}, 0")
            for pi in range(2):
                for q in range(4):
                    pre[n0 + 4 + pi].append(f"v_cvt_pk_bf16_f32 v{bx+4*pi+q}, v{vBXD+8*pi+2*q}, v{vBXD+8*pi+2*q+1}")
                for dl in range(3):
                    t = F + dl + 2
                    if t < 8:
                        extra[n0 + 5 + pi].append((t, V(bx + 4 * pi, 4), A(aHK2 + 4 * (3 * pi + dl), 4)))
                        last[t] = max(last[t], n0 + 5 + pi)
            n0 += 5
        else:
            pi = jb[2]
            for om in range(2):
                pre[n0].append(f"ds_read_b128 {A(ap+4*om,4)}, v{a3} offset:{1024*F+128*om+16*pi}")
                extra[n0 + 2].append(f"v_mfma_f32_16x16x32_bf16 {V(vBXD+4*om,4)}, {A(ap+4*om,4)}, {A(aBAND+8+4*pi,4)}, 0")
            for q in range(4):
                pre[n0 + 4].append(f"v_cvt_pk_bf16_f32 v{bx+q}, v{vBXD+2*q}, v{vBXD+2*q+1}")
            for a2_ in range(4):
                q = a2_ - 2 * F
                if q >= 0:
                    extra[n0 + 5].append((a2_ + 4, V(bx, 4), A(aHK3 + 4 * (4 * pi + q), 4)))
                    last[a2_ + 4] = max(last[a2_ + 4], n0 + 5)
            n0 += 5
    for t in range(8):
        n = last[t] + 3
        e = vEP + 2 * (t & 1)
        pre[n] += [f"v_cvt_pk_bf16_f32 v{e}, v{vACC+4*t}, v{vACC+4*t+1}", f"v_cvt_pk_bf16_f32 v{e+1}, v{vACC+4*t+2}, v{vACC+4*t+3}",
                   I(f"ds_write_b64 v{yw}, {V(e,2)} offset:{512*t}", tag=f"y{ch}{t}")]
        if ch == 1:
            w = Asm(); w.wait(f"y1{t}"); w("s_barrier")
            tb = vTB + 4 * (t & 1)
            w(f"ds_read_b64_tr_b16 {V(tb,2)}, v{vOR} offset:{512*t}\nds_read_b64_tr_b16 {V(tb+2,2)}, v{vOR} offset:{512*t+4*SY}", tag=f"yr{t}")
            pre[n + 1] += w.ins
            pre[n + 3] += [f"s_mov_b32 s{sT0}, {256*2304*t}", f"buffer_store_dwordx4 {V(tb,4)}, v{vOS}, s[20:23], s{sT0} offen {Y_FLAGS}"]
    emit = lambda x: a(x) if isinstance(x, str) else a.ins.append(x)
    for s in head:
        a(s)
    for n in range(NS + 8):
        ms = []
        if ch == 0 and n % 8 == 0: prof(a, 20 + n // 8)
        if n < NS:
            phi = n - 7
            for s in list(range(17)) + [32]:
                if (phi + s) % 8 == 0 and 0 <= (phi + s) // 8 < 8:
                    ms.append(((phi + s) // 8, V(vKFX, 4) if s == 32 else A(aKF + 4 * s, 4), A(aUF + 4 * (n % NR), 4)))
        ms += extra[n]
        fill = list(pre[n])
        per = -(-len(fill) // max(1, len(ms)))
        for m in ms:
            a(m if isinstance(m, str) else mm(*m))
            for _ in range(per):
                if fill:
                    emit(fill.pop(0))
        for f in fill + blk[n]:
            emit(f)


def gen_a(prof):
    a = Asm()
    a("s_load_dwordx16 s[52:67], s[0:1], 0")
    a(f"v_lshrrev_b32 v{vT0}, 6, v0\nv_and_b32 v{vLANE}, 63, v0\ns_lshr_b32 s{sT0}, s{sX}, 2\nv_readfirstlane_b32 s{sW}, v{vT0}")
    a(f"s_sub_u32 s{sAG}, s{sX}, s{sT0}\ns_lshl_b32 s{sAG}, s{sAG}, 3\ns_mul_i32 s{sT1}, s{sT0}, 12\ns_add_u32 s{sT1}, s{sT1}, 48")
    a(f"s_cmp_eq_u32 s{sNA}, 16\ns_cselect_b32 s{sAG}, s{sT1}, s{sAG}\ns_add_u32 s{sAG}, s{sAG}, s{sJ}")
    a(f"s_lshl_b32 s{sT1}, s{sAG}, 2\ns_add_u32 s{sT1}, s{sT1}, s{sW}\ns_lshl_b32 s{sT2}, s{sT1}, 2\ns_lshl_b32 s{sT1}, s{sT1}, 9")
    a(f"v_lshl_add_u32 v{vT1}, v{vLANE}, 2, s{sT1}\nv_lshlrev_b32 v{vT2}, 4, v{vLANE}")
    a(f"s_cmp_ge_u32 s{sJ}, 12")
    prof(a, 30)
    a("s_waitcnt lgkmcnt(0)\ns_cbranch_scc1 L_SPARE")
    a(f"s_load_dword s{sLDT}, s[{pLOGDT}:{pLOGDT+1}], s{sT2}\ns_load_dword s{sDSK}, s[{pDSKIP}:{pDSKIP+1}], s{sT2}")
    for k in range(6):
        a(f"global_load_dword v{vP+k}, v{vT1}, s[{54+2*k}:{55+2*k}]")
    a("s_branch L_A\nL_A:")
    prof(a, 31)
    a(f"s_mov_b32 s{sJJ}, s{sJ}\ns_add_u32 s6, s4, L_TABA-L_PC\ns_addc_u32 s7, s5, 0")
    a(f"global_load_dwordx4 {V(vTAB5,4)}, v{vT2}, s[6:7]")
    for k in range(6):
        a(f"global_load_dword v{vP+6+k}, v{vT1}, s[{54+2*k}:{55+2*k}] offset:256")
    a(f"global_load_dwordx4 {V(vMASK,4)}, v{vT2}, s[6:7] offset:1024")
    a(f"s_add_u32 s6, s6, 2048\ns_addc_u32 s7, s7, 0")
    for k in range(4):
        a(f"global_load_dwordx4 {A(aBAND+4*k,4)}, v{vT2}, s[6:7] offset:{1024*k}")
    prof(a, 32)
    if "pf" in EXP:
        srd(a, 12, pW, 576 * 3456)
        t, ln, blk = 34, 35, sEX
        a(f"s_lshl_b32 s{t}, s{sJ}, 2\ns_add_u32 s{t}, s{t}, s{sW}\nv_mul_u32_u24 v{vW}, 3456, v{vLANE}")
        a(f"s_and_b32 s{ln}, s{t}, 1\ns_mul_i32 s{ln}, s{ln}, 9\ns_add_u32 s{ln}, s{ln}, 9\ns_lshr_b32 s{blk}, s{t}, 1")
        a(f"s_sub_u32 s{sT0}, s{blk}, 9\ns_mul_i32 s{sT0}, s{sT0}, 3\ns_add_u32 s{sT0}, s{sT0}, 2\ns_and_b32 s{sT1}, s{sX}, 4\ns_lshl_b32 s{sT1}, s{sT1}, 1")
        a(f"s_cmp_lt_u32 s{t}, 18\ns_cselect_b32 s{blk}, s{blk}, s{sT0}\ns_cselect_b32 s{sT1}, 4, s{sT1}\ns_add_u32 s{ln}, s{ln}, s{sT1}")
        a(f"s_sub_u32 s{sT0}, s{t}, 24\ns_cmp_ge_u32 s{t}, 24\ns_cselect_b32 s{blk}, s{sT0}, s{blk}\ns_cselect_b32 s{ln}, 4, s{ln}")
        a(f"s_mul_i32 s{blk}, s{blk}, {64*27}\ns_add_u32 s{ln}, s{ln}, s{blk}\ns_lshl_b32 s{ln}, s{ln}, 7")
        pf_load(a, vW, 12, ln)
    prof(a, 0)
    srd(a, 16, 52, 2048 * 1152)
    srd(a, 20, pOUT, 2048 * 2304)
    L = vLANE
    t0, t1, t2, t3 = vW, vW + 1, vW + 2, vW + 3
    r16, g = vW + 4, vW + 5
    a(f"v_and_b32 v{r16}, 15, v{L}\nv_lshrrev_b32 v{g}, 4, v{L}")
    a(f"s_mul_i32 s{sT0}, s{sW}, {KGW}\ns_mov_b32 s{sKG}, s{sT0}\ns_mov_b32 m0, s{sT0}")
    a(f"v_and_b32 v{t0}, 31, v{L}\nv_lshrrev_b32 v{t1}, 5, v{L}")
    a(f"v_mul_u32_u24 v{t2}, 528, v{t0}\nv_lshl_add_u32 v{t2}, v{t1}, 4, v{t2}\nv_add_u32 v{vKGB}, s{sT0}, v{t2}")
    a(f"v_lshlrev_b32 v{t2}, 4, v{t0}\nv_lshl_add_u32 v{t2}, v{t1}, 3, v{t2}\nv_sub_u32 v{vKW}, 568, v{t2}")
    a(f"v_lshlrev_b32 v{t2}, 1, v{L}\nv_sub_u32 v{vK2W}, 190, v{t2}")
    a(f"v_and_b32 v{t2}, 1, v{t0}\nv_mul_u32_u24 v{t2}, 384, v{t2}\nv_and_b32 v{t3}, 30, v{t0}\nv_add_u32 v{t2}, v{t2}, v{t3}")
    a(f"v_lshl_add_u32 v{t2}, v{t1}, 6, v{t2}\nv_sub_u32 v{vK3W}, {384+96}, v{t2}")
    a(f"v_and_b32 v{t0}, 1, v{r16}\nv_add_u32 v{t1}, v{r16}, v{t0}\nv_lshlrev_b32 v{t2}, 3, v{g}\nv_sub_u32 v{t1}, v{t2}, v{t1}")
    a(f"v_lshlrev_b32 v{t1}, 1, v{t1}")
    a(f"v_mul_u32_u24 v{t2}, {KO-KE}, v{t0}\nv_add3_u32 v{vKFA}, v{t1}, v{t2}, 32\nv_add_u32 v{vKFB}, 1024, v{vKFA}")
    a(f"v_mul_u32_u24 v{t2}, 192, v{t0}\nv_add_u32 v{t2}, {K3+32}, v{t2}\nv_add_u32 v{vHK3}, v{t1}, v{t2}")
    a(f"v_lshlrev_b32 v{t1}, 4, v{g}\nv_lshlrev_b32 v{t2}, 2, v{r16}\nv_sub_u32 v{t2}, v{t1}, v{t2}\nv_add_u32 v{vHK2}, {K2+60}, v{t2}")
    a(f"v_lshl_add_u32 v{t2}, v{r16}, 5, v{t1}\nv_add_u32 v{vUF}, {UT+32}, v{t2}")
    a(f"v_lshrrev_b32 v{t2}, 2, v{r16}\nv_and_b32 v{t3}, 3, v{r16}\nv_lshl_add_u32 v{t0}, v{t2}, 3, v{t3}")
    a(f"v_lshl_add_u32 v{vA2}, v{t0}, 4, v{t1}\nv_add_u32 v{vA2}, {UT+464}, v{vA2}")
    a(f"v_lshl_add_u32 v{vA3}, v{t0}, 5, v{t1}\nv_add_u32 v{vA3}, {UT+464}, v{vA3}")
    a(f"v_lshlrev_b32 v{t0}, 3, v{g}\nv_lshl_add_u32 v{t0}, v{r16}, 5, v{t0}\nv_add_u32 v{vYW}, {YT}, v{t0}")
    a(f"v_lshrrev_b32 v{t0}, 2, v{L}\nv_and_b32 v{t0}, 4, v{t0}\nv_xor_b32 v{t0}, v{t0}, v{L}\nv_mul_u32_u24 v{t0}, 1152, v{t0}")
    a(f"s_mul_i32 s{sT0}, s{sW}, {512*1152}\ns_lshl_b32 s{sT1}, s{sAG}, 4\ns_add_u32 s{sT0}, s{sT0}, s{sT1}\nv_add_u32 v{vDMA}, s{sT0}, v{t0}")
    a(f"v_lshrrev_b32 v{t0}, 1, v{g}\nv_lshlrev_b32 v{t0}, 5, v{t0}\nv_lshl_add_u32 v{t0}, v{t3}, 3, v{t0}\nv_add_u32 v{t0}, v{t0}, v{t2}")
    a(f"v_and_b32 v{t1}, 2, v{t3}\nv_lshlrev_b32 v{t1}, 1, v{t1}")
    a(f"v_xor_b32 v{vTR0}, v{t0}, v{t1}\nv_xor_b32 v{vTR1}, 4, v{vTR0}")
    a(f"s_lshl_b32 s{sT0}, s{sW}, 13\ns_add_u32 s{sT0}, s{sT0}, {U0}")
    a(f"v_and_b32 v{t1}, 1, v{g}\nv_lshl_add_u32 v{t0}, v{t1}, 3, s{sT0}")
    a(f"v_lshl_add_u32 v{vTR0}, v{vTR0}, 4, v{t0}\nv_lshl_add_u32 v{vTR1}, v{vTR1}, 4, v{t0}")
    a(f"v_lshl_add_u32 v{t1}, v{t1}, 2, v{t3}\nv_mul_u32_u24 v{t1}, {SU}, v{t1}")
    a(f"v_lshrrev_b32 v{t0}, 1, v{g}\nv_lshlrev_b32 v{t0}, 6, v{t0}\nv_lshl_add_u32 v{t0}, v{t2}, 4, v{t0}")
    a(f"s_lshl_b32 s{sT0}, s{sW}, 10\ns_add_u32 s{sT0}, s{sT0}, {UT+512}\nv_add3_u32 v{vTW}, v{t0}, v{t1}, s{sT0}")
    a(f"v_mul_u32_u24 v{t0}, {SY}, v{t2}\nv_lshl_add_u32 v{t0}, v{g}, 5, v{t0}\nv_lshl_add_u32 v{t0}, v{t3}, 3, v{t0}")
    a(f"s_lshl_b32 s{sT0}, s{sW}, 7\ns_add_u32 s{sT0}, s{sT0}, {YT}\nv_add_u32 v{vOR}, s{sT0}, v{t0}")
    a(f"s_mul_i32 s{sT0}, s{sW}, {64*2304}\ns_lshl_b32 s{sT1}, s{sAG}, 4\ns_add_u32 s{sT0}, s{sT0}, s{sT1}")
    a(f"v_mul_u32_u24 v{t0}, 2304, v{L}\nv_add_u32 v{vOS}, s{sT0}, v{t0}")
    a(f"v_mov_b32 v{vZ}, 0\nv_mov_b32 v{vZ+1}, 0\nv_mov_b32 v{vZ+2}, 0\nv_mov_b32 v{vZ+3}, 0")
    a(f"v_lshrrev_b32 v{t0}, 5, v{L}\nv_mul_u32_u24 v{t0}, {SU}, v{t0}\nv_and_b32 v{t1}, 31, v{L}\nv_lshl_add_u32 v{t0}, v{t1}, 4, v{t0}")
    a(f"s_mul_i32 s{sT0}, s{sW}, {2*SU}\nv_add_u32 v{t0}, s{sT0}, v{t0}\nv_add_u32 v{t0}, {UT}, v{t0}\nds_write_b128 v{t0}, {V(vZ,4)}")
    a(f"s_mul_i32 s{sT0}, s{sW}, {KGW}\ns_add_u32 s{sT0}, s{sT0}, {KG}\nv_add_u32 v{vKGA}, s{sT0}, v{vTAB5}")
    a("s_waitcnt lgkmcnt(0)")
    prof(a, 1)

    a(f"s_lshl_b32 s{sU0}, s{sW}, 13\ns_add_u32 s{sU0}, s{sU0}, {U0}")
    a(f"s_and_b32 s{sUB}, s{sJJ}, 7\ns_mov_b32 s{sTB}, s{sUB}\ns_lshl_b32 s34, s{sUB}, 7\nv_add_u32 v{vTW}, s34, v{vTW}")
    DMA_AT = DMA_PLAN
    TR_AT = TR_PLAN
    kf0 = sum([rd_kf(0, s_) for s_ in range(17)], [])

    def hook(a, ch, n):
        if (ch, n) in DMA_AT:
            i = DMA_AT.index((ch, n))
            a(f"s_add_u32 m0, s{sU0}, {1024*i}\ns_mul_i32 s34, s{sUB}, {64*1152}")
            a(f"buffer_load_dwordx4 v{vDMA}, s[16:19], s34 offen lds", tag=f"u{i}")
            a(f"s_mov_b32 m0, s{sKG}\ns_add_u32 s{sUB}, s{sUB}, 1\ns_and_b32 s{sUB}, s{sUB}, 7")
        if (ch, n) in TR_AT:
            i = TR_AT.index((ch, n)); a.wait(f"u{i}")
            a(f"ds_read_b64_tr_b16 {V(vTB,2)}, v{vTR0} offset:{1024*i}\nds_read_b64_tr_b16 {V(vTB+2,2)}, v{vTR1} offset:{1024*i}")
        if (ch, n - 2) in TR_AT:
            a(f"ds_write_b128 v{vTW}, {V(vTB,4)}")
            a(f"s_cmp_eq_u32 s{sTB}, 7\ns_cselect_b32 s34, 0x400, 0\ns_sub_u32 s34, 0x80, s34\ns_add_u32 s{sTB}, s{sTB}, 1\nv_add_u32 v{vTW}, s34, v{vTW}")
        if ch == 1 and kf0 and n < 55:
            a(kf0.pop(0))
    a.ext(ksetup(0))
    kgen(a, 0, prof, hook, ksetup(1).ins)
    a.ext(conv_addr())
    prof(a, 2)
    kgen(a, 1, prof, hook, [])
    assert not kf0
    prof(a, 3)
    a("s_waitcnt lgkmcnt(0)\ns_barrier")
    prof(a, 4)
    conv(a, 0, prof)
    prof(a, 5)
    conv(a, 1, prof)
    if "wb1" in EXP:
        a(f"s_waitcnt vmcnt(0)\ns_barrier\ns_cmp_lg_u32 s{sW}, 0\ns_cbranch_scc1 L_END\nbuffer_wbl2 sc1")
    if "wb2" in EXP:
        a(f"s_waitcnt vmcnt(0)\ns_barrier\ns_cmp_lg_u32 s{sW}, 0\ns_cbranch_scc1 L_END\ns_and_b32 s34, s{sJJ}, 3\ns_cmp_lg_u32 s34, 3\ns_cbranch_scc1 L_END\nbuffer_wbl2 sc1")
    prof(a, 7, final=True)
    a("s_endpgm")
    main = finish(a)
    b = Asm()
    b("L_SPARE:")
    b(f"s_lshl_b32 s{sIDX}, s{sT0}, 2\ns_add_u32 s{sIDX}, s{sIDX}, s{sJ}\ns_sub_u32 s{sIDX}, s{sIDX}, 12")
    srd(b, 16, pWS, S2_OFF)
    srd(b, 20, pWS, SENT_SIZE)
    srd(b, 24, pDBG, 256)
    b(f"v_mov_b32 v{vZ}, -1\nv_mov_b32 v{vZ+1}, -1\nv_mov_b32 v{vZ+2}, -1\nv_mov_b32 v{vZ+3}, -1\nv_mov_b32 v{vT0}, 1\nv_mov_b32 v{vT1}, 0")
    b(f"s_lshl_b32 s{sT2}, s{sIDX}, 2\ns_add_u32 s{sT2}, s{sT2}, s{sW}")
    for part, (r, n, base) in enumerate(((16, 17, 0), (20, 72, S2_OFF))):
        b(f"s_mul_i32 s{sT0}, s{sT2}, {n*1024}\ns_add_u32 s{sT0}, s{sT0}, {base}\ns_add_u32 s{sT1}, s{sT0}, {n*1024}")
        b(f"L_FILL{part}:\nbuffer_store_dwordx4 {V(vZ,4)}, v{vT2}, s[{r}:{r+3}], s{sT0} offen sc1")
        b(f"s_add_u32 s{sT0}, s{sT0}, 1024\ns_cmp_lt_u32 s{sT0}, s{sT1}\ns_cbranch_scc1 L_FILL{part}")
        b(f"s_waitcnt vmcnt(0)\ns_barrier\ns_cmp_lg_u32 s{sW}, 0\ns_cbranch_scc1 L_FILLED{part}")
        b(f"s_mov_b64 exec, 1\nbuffer_atomic_add v{vT0}, v{vT1}, s[24:27], 0 offen offset:{64*part} sc1\ns_mov_b64 exec, -1\nL_FILLED{part}:")
    b("s_endpgm")
    k = [i.text for i in main].index("L_A:")
    return main[:k], main[k:] + finish(b)
```

```python
from asmlib import *
from gen_common import *
import numpy as np

XR = 0
WQ = 0
WR = 73728
EX = WR + 16384
WO = WR
FM = 147456
FDUMMY = FM + 4608
NX, NW = 3, 4
PAIRS = [[(0, 2), (0, 3)], [(0, 4), (1, 4)], [(1, 2), (1, 3)], [(2, 3), (2, 4)]]


def head_of(e):
    return 0 if (e < 18 or e == 36) else 1


def table_b():
    T = np.zeros((256, 4), np.uint32)
    T[:, 0] = OOB; T[:, 1] = OOB
    cons = []
    for w in range(4):
        for q in range(2):
            kt, vt = PAIRS[w][q]
            for l in range(64):
                c, g = l % 16, l // 16
                e, ch = 16 * vt + c - 36, 4 * kt + g
                if 0 <= e < 38 and 4 * head_of(e) <= ch <= 4 * head_of(e) + 4:
                    T[64 * w + l, q] = 16 * len(cons)
                    cons.append((e, ch))
    assert len(cons) == 190
    for t in range(256):
        if t < 190:
            e, ch = cons[t]
            fl = 3 if ch != 4 else (1 if head_of(e) == 0 else 2)
            T[t, 2] = FM + 96 * e + 8 * ch; T[t, 3] = fl
        else:
            T[t, 2] = FDUMMY + 8 * (t - 190); T[t, 3] = 0
    return T


vQD = 1
vRO = 2
vOL, vOLT, vOUT, vCK = 6, 7, 8, 9
vL, vI, vG, vX = 10, 11, 12, 13
vDQ = 16
vXR = 17
vXD = 176
vDK = 182
vRK = 22
vRQ = 27
vEW, vGA = 30, 31
vTAB = 32
vT = 36
vONE = 42
vER = 44
vDO = 48
vFR, vFD, vS2, vS2T, vDBG, vDBA = 50, 51, 52, 53, 54, 55
vACC = 56
vFB = 116
vPH = 156
vPK = 172
vKD = 104
vAQ = 186
vFQ = 116
vGAT = 56
vPQ = 222
vFA = 156
vON = 56
vOF = 104
vR = 124
vEPS = 240
vA2 = 12
vWV = 44
vOM = 76
sW, sRB, sP, sRB2, sCB, sG2 = 52, 53, 54, 55, 56, 57
sT = 58
sB, sMX = 64, 65
sM0 = 66
sMK4, sMK89, sMG0 = 68, 70, 72
sLOG, sEPS = 74, 76
sRETRY = 78
sSO = 79
sSX, sSK, sMW = 80, 81, 82
sPC, sPQ, sQK = 83, 84, 85
sWB, sOB = 86, 64


OL_START, OL_PER, OL_AHEAD = 96, 0.3, 2
GS = 12
import os
OUT_FLAGS = os.environ.get("OUTF", "")
EXP = os.environ.get('EXP', '').split(',')


def xreg(s, tau):
    return (3 * s + tau) * 4


def mneed(s):
    return -(-(5 * s + 5) // 4)


def phi4(a, src, dst, tmp, keep=None, slot=lambda n: None):
    e = tmp
    a(f"v_pk_mul_f32 {V(e,2)}, {V(src,2)}, {S(sLOG,2)}\nv_pk_mul_f32 {V(e+2,2)}, {V(src+2,2)}, {S(sLOG,2)}")
    m = src if keep is None else tmp + 4
    for i in range(4):
        if i in (0, 2):
            slot(1)
        a(f"v_exp_f32_e64 v{e+i}, v{e+i} clamp\nv_max_f32 v{m+i}, s{sEPS}, v{src+i}")
    a(f"v_pk_add_f32 {V(e,2)}, {V(e,2)}, {V(m,2)}\nv_pk_add_f32 {V(e+2,2)}, {V(e+2,2)}, {V(m+2,2)}")
    slot(1)
    if keep is not None:
        for i in range(4):
            a(f"v_cndmask_b32 v{e+i}, v{src+i}, v{e+i}, {S(keep,2)}")
        slot(1)
    a(f"v_cvt_pk_bf16_f32 v{dst}, v{e}, v{e+1}\nv_cvt_pk_bf16_f32 v{dst+1}, v{e+2}, v{e+3}")


def spread(fg, bg):
    fg = fg.ins if isinstance(fg, Asm) else fg
    out, k = [], 0
    for n, i in enumerate(fg):
        out.append(i)
        while k < len(bg) and (k + 1) * len(fg) <= (n + 1) * len(bg):
            out.append(bg[k]); k += 1
    return out + bg[k:]


def gen_b(prof):
    a = Asm()
    slow = Asm()
    t0, t1, t2, t3, t4, t5 = range(vT, vT + 6)
    a(f"s_mul_i32 s{sRB}, s6, 3\ns_lshr_b32 s{sT}, s{sJ}, 3\ns_add_u32 s{sRB}, s{sRB}, s{sT}")
    a(f"s_and_b32 s{sT}, s{sJ}, 7\ns_lshr_b32 s{sP}, s{sX}, 2\ns_lshl_b32 s{sP}, s{sP}, 3\ns_add_u32 s{sP}, s{sP}, s{sT}")
    a(f"v_lshrrev_b32 v{t0}, 6, v0\nv_bfe_u32 v{vG}, v0, 4, 2\nv_bfe_u32 v{t1}, v0, 3, 3\nv_readfirstlane_b32 s{sW}, v{t0}")
    a(f"s_mul_i32 s{sT}, s{sRB}, 192\nv_lshl_add_u32 v{t1}, v{t0}, 4, v{t1}\nv_add_u32 v{t1}, s{sT}, v{t1}\nv_mul_u32_u24 v{t1}, 1152, v{t1}")
    a(f"v_and_b32 v{t2}, 7, v0\nv_xor_b32 v{t2}, v{t2}, v{vG}\nv_lshl_add_u32 v{vXD}, v{t2}, 4, v{t1}")
    a(f"v_xor_b32 v{t2}, 4, v{t2}\nv_lshl_add_u32 v{vXD+1}, v{t2}, 4, v{t1}\nv_add_u32 v{vXD+1}, {8*1152-1024}, v{vXD+1}")
    a(f"v_add_u32 v{vXD+2}, {64*1152-2048}, v{vXD}\nv_add_u32 v{vXD+3}, {64*1152-2048}, v{vXD+1}")
    a(f"v_add_u32 v{vXD+4}, {128*1152}, v{vXD}\nv_add_u32 v{vXD+5}, {128*1152}, v{vXD+1}")
    a(f"s_mul_i32 s{sMX}, s{sW}, 6144\ns_lshl_b32 s{sMW}, s{sW}, 12")
    a(f"s_and_b32 s{sT}, s{sP}, 1\ns_lshl_b32 s{sT}, s{sT}, 3\ns_mul_i32 s{sT+1}, s{sP}, 72\ns_sub_u32 s{sT+1}, s{sT+1}, s{sT}")
    a(f"s_and_b32 s{sB}, s{sT+1}, 127\ns_sub_u32 s{sB}, 128, s{sB}\ns_lshr_b32 s{sB}, s{sB}, 4\ns_min_u32 s{sB}, s{sB}, 4")
    a(f"s_sub_u32 s{sT+2}, 5, s{sB}\ns_mov_b32 s{sT+3}, 3456")
    a(f"s_lshr_b32 s{sPC}, s{sJ}, 3\ns_mul_i32 s{sPC}, s{sPC}, 3\ns_and_b32 s{sPQ}, s{sJ}, 7\ns_add_u32 s{sPC}, s{sPC}, s{sPQ}")
    a(f"s_sub_u32 s{sPQ}, s{sPC}, 9\ns_cmp_ge_u32 s{sPC}, 9\ns_cselect_b32 s{sPC}, s{sPQ}, s{sPC}\ns_mov_b32 s{sPQ}, s{sPC}")
    a(f"s_lshl_b32 s{sSX}, s{sPC}, 7\ns_mul_i32 s{sSK}, s{sPC}, {64*3456}")
    def slot_to_col(dst, q, e, tmp):
        a(f"v_mov_b32 v{tmp}, s{sB}\nv_mul_u32_u24 v{dst}, v{q}, v{tmp}\nv_add_u32 v{dst}, v{dst}, v{e}")
        a(f"v_cmp_eq_u32 vcc, 0, v{q}\nv_mov_b32 v{q}, s{sT+2}\nv_cndmask_b32 v{tmp}, v{q}, v{tmp}, vcc\nv_cmp_lt_u32 vcc, v{e}, v{tmp}")
    a(f"v_bfe_u32 v{t1}, v0, 2, 2\nv_xor_b32 v{t1}, v{t1}, v{vG}")
    a(f"v_and_b32 v{t2}, 3, v0\nv_bfe_u32 v{t3}, v0, 6, 1\nv_lshlrev_b32 v{t3}, 1, v{t3}\nv_xor_b32 v{t2}, v{t2}, v{t3}")
    a(f"v_lshrrev_b32 v{t3}, 1, v{t1}\nv_and_b32 v{t1}, 1, v{t1}\nv_mul_u32_u24 v{t3}, 1152, v{t3}")
    slot_to_col(t4, t1, t2, t5)
    a(f"v_lshl_add_u32 v{t3}, v{t4}, 4, v{t3}\nv_lshl_add_u32 v{t0}, v{t0}, 3, v{vG}\nv_mad_u32_u24 v{t3}, v{t0}, s{sT+3}, v{t3}")
    a(f"s_add_u32 s{sT+4}, s{sT+1}, 1152\nv_add_u32 v{t3}, s{sT+4}, v{t3}\nv_mov_b32 v{t4}, {OOB}\nv_cndmask_b32 v{vDK}, v{t4}, v{t3}, vcc")
    for m in range(1, 4):
        a(f"v_add_u32 v{vDK+m}, {(32*(m >> 1)+4*(m & 1))*3456-1024*m}, v{vDK}")
    prof(a, 30)
    a("s_waitcnt lgkmcnt(0)")
    prof(a, 31)
    srd(a, 8, pX, 2048 * 1152)
    srd(a, 12, pW, 576 * 3456)

    def dx(P):
        o = []
        for n in range(6):
            x = Asm()
            if n % 4 == 0:
                x(f"s_add_u32 m0, s{sMX}, {XR + (P % NX) * 24576 + 1024 * n}")
            if n == 0 and P:
                x(f"s_add_u32 s{sPC}, s{sPC}, 1\ns_cmp_eq_u32 s{sPC}, 9\ns_cselect_b32 s{sPC}, 0, s{sPC}\ns_lshl_b32 s{sSX}, s{sPC}, 7")
            x(f"buffer_load_dwordx4 v{vXD+n}, s[8:11], s{sSX} offen offset:{1024*(n % 4)} lds", tag=f"x{P}")
            o.append(x.ins)
        return o

    def dk(P):
        o = []
        for m in range(4):
            x = Asm()
            if m == 0:
                x(f"s_add_u32 m0, s{sMW}, {WR + (P % NW) * 16384}")
                if P:
                    x(f"s_mul_i32 s{sSK}, s{sPC}, {64*3456}")
            x(f"buffer_load_dwordx4 v{vDK+m}, s[12:15], s{sSK} offen offset:{1024*m} lds", tag=f"k{P}")
            o.append(x.ins)
        return o

    def dquad(srdreg, vaddr, pre, sbase, so, ldsbase, k, tag):
        x = Asm()
        if k == 16:
            x(f"s_lshr_b32 s{sSO}, s{sMW}, 1\ns_add_u32 m0, s{sSO}, {ldsbase + 65536}")
        elif k % 4 == 0:
            x(f"s_add_u32 m0, s{sMW}, {ldsbase + 4096 * k}")
        x(pre)
        so -= 1024 * (k % 4)
        if sbase is None:
            x(f"s_mov_b32 s{sSO}, {so}")
        elif so:
            x(f"s_add_u32 s{sSO}, s{sbase}, {so & 0xffffffff}")
        x(f"buffer_load_dwordx4 v{vaddr}, s[{srdreg}:{srdreg+3}], s{sSO if so or sbase is None else sbase} offen offset:{1024*(k % 4)} lds", tag=tag)
        return x.ins

    def dq(k):
        pre = ""
        if k % 2 == 0:
            if k:
                pre = f"s_add_u32 s{sPQ}, s{sPQ}, 1\ns_cmp_eq_u32 s{sPQ}, 9\ns_cselect_b32 s{sPQ}, 0, s{sPQ}\n"
            pre += f"s_mul_i32 s{sQK}, s{sPQ}, {64*3456}\ns_add_u32 s{sQK}, s{sQK}, 2048"
        return dquad(92, vDQ, pre, sQK, 32 * 3456 * (k & 1), WQ, k, f"q{k}")
    qoff = lambda k, rd: 16384 * (k >> 2) + 8192 * rd + 1024 * (k & 3) if k < 16 else 4096 * rd + 1024 * (k & 1)

    for x in dx(0):
        a.ext(x)
    prof(a, 32)
    prof(a, 33)
    for x in dk(0):
        a.ext(x)
    prof(a, 34)
    main, a = a, Asm()
    a(f"v_and_b32 v{vL}, 63, v0\nv_and_b32 v{vI}, 15, v0")
    a(f"v_lshrrev_b32 v{t0}, 1, v{vI}\nv_xor_b32 v{t0}, v{t0}, v{vG}\nv_lshl_add_u32 v{t1}, v{vI}, 7, s{sMX}")
    a(f"v_lshl_add_u32 v{vXR}, v{t0}, 4, v{t1}\nv_xor_b32 v{vXR+1}, 64, v{vXR}")
    a(f"v_lshrrev_b32 v{t0}, 2, v{vL}\nv_and_b32 v{t1}, 3, v{vL}")
    u0, u1, u2, u3, u4, u5, u6 = range(vPH, vPH + 7)
    a(f"v_and_b32 v{u0}, 3, v{t0}\nv_and_b32 v{u1}, 1, v{vG}\nv_lshlrev_b32 v{u1}, 1, v{u1}\nv_bfe_u32 v{u5}, v{t0}, 1, 1")

    def col_to_slot(cc):
        a(f"v_lshl_add_u32 v{u2}, v{cc}, 3, s{sT}\nv_and_b32 v{u4}, 8, v{u2}\nv_lshrrev_b32 v{u3}, 4, v{u2}")
        a(f"v_cmp_le_u32 vcc, s{sB}, v{u3}\nv_subrev_u32 v{u2}, s{sB}, v{u3}\nv_cndmask_b32 v{u3}, v{u3}, v{u2}, vcc\nv_cndmask_b32 v{u2}, 0, 1, vcc")
        a(f"v_xor_b32 v{u3}, v{u3}, v{u1}\nv_lshl_add_u32 v{u3}, v{u3}, 4, v{u4}")
    for T in range(5):
        if T < 2:
            a(f"v_add_u32 v{t3}, {4*T}, v{t1}\nv_mov_b32 v{t4}, 0")
        elif T == 2:
            a(f"v_cmp_eq_u32 vcc, 0, v{t1}\nv_add_u32 v{t3}, -1, v{t1}\nv_cndmask_b32 v{t3}, v{t3}, 8, vcc\nv_cndmask_b32 v{t4}, 2, 0, vcc")
        else:
            a(f"v_add_u32 v{t3}, {4*T-9}, v{t1}\nv_min_u32 v{t3}, 8, v{t3}\nv_mov_b32 v{t4}, 2")
        col_to_slot(t3)
        a(f"v_or_b32 v{u2}, v{u2}, v{t4}\nv_xor_b32 v{u2}, v{u2}, v{u0}\nv_lshl_add_u32 v{u3}, v{u2}, 6, v{u3}")
        a(f"v_lshl_add_u32 v{u3}, v{u0}, 8, v{u3}\nv_lshl_add_u32 v{u3}, v{vG}, 12, v{u3}\nv_add_u32 v{vRK+T}, {WR}, v{u3}")
    a(f"v_and_b32 v{u6}, 7, v{t0}\nv_lshlrev_b32 v{u6}, 7, v{u6}\nv_lshrrev_b32 v{u2}, 1, v{vG}\nv_lshl_add_u32 v{u6}, v{u2}, 12, v{u6}")
    a(f"v_lshlrev_b32 v{u2}, 11, v{u2}\nv_sub_u32 v{vQD}, 0x10000, v{u2}")
    a(f"s_cmp_eq_u32 s{sB}, 1\ns_cselect_b32 s{sT+4}, 0, 1")
    for dl in range(3):
        a(f"v_add_u32 v{t3}, {4*dl}, v{t1}")
        col_to_slot(t3)
        if dl == 2:
            a(f"v_cmp_eq_u32 vcc, 0, v{t1}\nv_mov_b32 v{t4}, s{sT+4}\nv_xor_b32 v{t5}, 3, v{u1}\nv_lshlrev_b32 v{t5}, 4, v{t5}")
            a(f"v_cndmask_b32 v{u2}, v{t4}, v{u2}, vcc\nv_cndmask_b32 v{u3}, v{t5}, v{u3}, vcc")
        a(f"v_xor_b32 v{u2}, v{u2}, v{u5}\nv_lshl_add_u32 v{u3}, v{u2}, 6, v{u3}\nv_add_u32 v{vRQ+dl}, v{u6}, v{u3}")
    a(f"v_and_b32 v{t2}, 6, v{t0}\nv_lshrrev_b32 v{t3}, 1, v{t1}\nv_and_b32 v{t4}, 1, v{t1}")
    a(f"v_lshlrev_b32 v{t4}, 3, v{t4}\nv_add_u32 v{t4}, v{u6}, v{t4}\nv_lshl_add_u32 v{t4}, v{t3}, 4, v{t4}")
    for T in range(4):
        a(f"v_xor_b32 v{t3}, {2*T}, v{t2}\nv_lshl_add_u32 v{vRO+T}, v{t3}, 4, v{t4}\nv_add_u32 v{vRO+T}, {WO}, v{vRO+T}")
    a(f"v_lshrrev_b32 v{t0}, 3, v0\nv_bfe_u32 v{t1}, v0, 2, 1\nv_bfe_u32 v{t2}, v0, 4, 1\nv_xor_b32 v{t1}, v{t1}, v{t2}")
    a(f"v_and_b32 v{t2}, 3, v0\nv_bfe_u32 v{t3}, v0, 5, 1\nv_lshlrev_b32 v{t3}, 1, v{t3}\nv_xor_b32 v{t2}, v{t2}, v{t3}")
    slot_to_col(t4, t1, t2, t5)
    a(f"v_and_b32 v{t1}, 3, v{t0}\nv_and_b32 v{t2}, 12, v{t0}\nv_lshl_or_b32 v{t1}, v{t2}, 1, v{t1}\nv_lshrrev_b32 v{t2}, 4, v{t0}\nv_lshl_or_b32 v{t1}, v{t2}, 2, v{t1}")
    a(f"v_lshl_add_u32 v{t4}, v{t4}, 4, s{sT+1}\nv_mad_u32_u24 v{t4}, v{t1}, s{sT+3}, v{t4}\nv_mov_b32 v{t1}, {OOB}\nv_cndmask_b32 v{vDQ}, v{t1}, v{t4}, vcc")
    a(f"s_and_b32 s{sT+4}, s{sX}, 3\ns_cmp_eq_u32 s{sT+4}, 2\ns_cselect_b32 s{sT+4}, 20, 18\ns_cmp_lt_u32 s{sJ}, s{sT+4}")
    a(f"s_cselect_b32 s{sG2}, 1, 0\ns_cselect_b32 s18, {576*1152}, 0")
    a(f"s_cmp_ge_u32 s{sJ}, 18\ns_cselect_b32 s{sT+4}, 16, 0\ns_mul_i32 s{sT+5}, s{sX}, 18\ns_add_u32 s{sT+5}, s{sT+5}, s{sJ}\ns_add_u32 s{sT+5}, s{sT+5}, s{sT+4}")
    a(f"s_mul_i32 s{sRB2}, s{sT+5}, 7282\ns_lshr_b32 s{sRB2}, s{sRB2}, 16\ns_mul_i32 s{sT+4}, s{sRB2}, 9\ns_sub_u32 s{sCB}, s{sT+5}, s{sT+4}")
    a(f"s_mov_b32 s16, s{pWO}\ns_mov_b32 s17, s{pWO+1}\ns_mov_b32 s19, 0x20000")
    a(f"s_sub_u32 s92, s{pW}, 2048\ns_subb_u32 s93, s{pW+1}, 0\ns_mov_b32 s94, {576*3456+2048}\ns_mov_b32 s95, 0x20000")
    srd(a, 20, pWS, SENT_SIZE)
    srd(a, 24, pDBG, 256)
    srd(a, 28, pOUT, 2048 * 2304)
    a(f"v_lshrrev_b32 v{t0}, 3, v0\nv_and_b32 v{t1}, 7, v0\nv_and_b32 v{t2}, 6, v{t0}\nv_xor_b32 v{t1}, v{t1}, v{t2}")
    a(f"s_lshl_b32 s{sT+4}, s{sCB}, 7\nv_lshl_add_u32 v{t1}, v{t1}, 4, s{sT+4}")
    a(f"v_mul_u32_u24 v{t2}, 1152, v{t0}\nv_add_u32 v{vDO}, v{t1}, v{t2}")
    a(f"v_bfe_u32 v{t2}, v{t0}, 2, 2\nv_lshrrev_b32 v{t3}, 4, v{t0}\nv_lshl_add_u32 v{t2}, v{t2}, 1, v{t3}\nv_mul_u32_u24 v{t2}, 36, v{t2}")
    a(f"v_and_b32 v{t3}, 3, v{t0}\nv_add3_u32 v{t2}, v{t2}, v{t3}, 32\nv_mul_u32_u24 v{t2}, 1152, v{t2}\nv_add_u32 v{vDO+1}, v{t1}, v{t2}")
    a(f"s_lshr_b32 s{sT+4}, s{sW}, 1\ns_mul_i32 s{sT+4}, s{sT+4}, 5120\ns_and_b32 s{sT+5}, s{sW}, 1\ns_lshl_b32 s{sT+5}, s{sT+5}, 3\ns_add_u32 s{sT+4}, s{sT+4}, s{sT+5}\ns_add_u32 s{sT+4}, s{sT+4}, {EX}")
    a(f"v_lshl_add_u32 v{vEW}, v{vL}, 4, s{sT+4}")
    a(f"s_lshl_b32 s{sT+5}, s{sW}, 2")
    for q in range(4):
        pk = sum(PAIRS[w][q // 2][q % 2] << (4 * w) for w in range(4))
        a(f"s_lshr_b32 s{sT+4}, {pk}, s{sT+5}\ns_and_b32 s{sT+4}, s{sT+4}, 15\ns_lshl_b32 s{sT+4}, s{sT+4}, 10\ns_add_u32 s{sT+4}, s{sT+4}, {EX}\nv_lshl_add_u32 v{vER+q}, v{vL}, 4, s{sT+4}")
    a(f"v_cmp_gt_u32 {S(sMK4,2)}, 4, v{vI}\nv_and_b32 v{t0}, 14, v{vI}\nv_cmp_eq_u32 {S(sMK89,2)}, 8, v{t0}\nv_cmp_eq_u32 {S(sMG0,2)}, 0, v{vG}")
    a(f"s_mov_b32 s{sLOG}, 0x3fb8aa3b\ns_mov_b32 s{sLOG+1}, 0x3fb8aa3b\ns_mov_b32 s{sEPS}, 0x358637bd\ns_mov_b32 s{sEPS+1}, 0x358637bd")
    for i in range(4):
        a(f"v_mov_b32 v{vEPS+i}, s{sEPS}\nv_cndmask_b32 v{vEPS+4+i}, 0, v{vEPS+i}, {S(sMK4,2)}")
    a(f"s_cmp_lt_u32 s{sRB}, 10\ns_cselect_b32 s{sT+4}, 0x3f803f80, 0\nv_mov_b32 v{vONE}, 0x3f803f80\nv_mov_b32 v{vONE+1}, s{sT+4}")
    a(f"s_mul_i32 s{sT+4}, s{sP}, {11*S1_SLOT}\nv_lshl_add_u32 v{t0}, v0, 4, s{sT+4}\nv_mov_b32 v{t1}, {OOB}")
    a(f"v_cmp_gt_u32 vcc, 190, v0\nv_cndmask_b32 v{vGA}, v{t1}, v{t0}, vcc")
    a(f"v_mul_u32_u24 v{t0}, 96, v{vI}\nv_lshl_add_u32 v{t0}, v{vG}, 3, v{t0}\nv_add_u32 v{vFR}, {FM}, v{t0}")
    a(f"v_and_b32 v{t0}, 1, v{vI}\nv_mul_u32_u24 v{t0}, 96, v{t0}\nv_lshl_add_u32 v{t0}, v{vG}, 3, v{t0}\nv_add_u32 v{vFD}, {FM+36*96}, v{t0}")
    a(f"s_mul_i32 s{sT+4}, s{sRB}, 12\ns_add_u32 s{sT+4}, s{sT+4}, s{sW}\ns_lshl_b32 s{sT+4}, s{sT+4}, 4\ns_add_u32 s{sT+4}, s{sT+4}, s{sP}")
    a(f"s_lshl_b32 s{sT+5}, s{sT+4}, 10\ns_add_u32 s{sT+5}, s{sT+5}, {S2_OFF}\nv_lshl_add_u32 v{vS2}, v{vL}, 4, s{sT+5}")
    a(f"s_lshl_b32 s{sT+5}, s{sT+4}, 7\ns_add_u32 s{sT+5}, s{sT+5}, {S2T_OFF}\nv_lshl_add_u32 v{t0}, v{vI}, 3, s{sT+5}")
    a(f"v_cndmask_b32 v{vS2T}, v{t1}, v{t0}, {S(sMG0,2)}")
    a(f"s_lshl_b32 s{sT+4}, s{sRB2}, 2\ns_add_u32 s{sT+4}, s{sT+4}, s{sW}")
    a(f"s_lshl_b32 s{sT+5}, s{sT+4}, 15\ns_add_u32 s{sT+5}, s{sT+5}, {S2_OFF}\nv_lshl_add_u32 v{vOL}, v{vL}, 4, s{sT+5}")
    a(f"s_lshl_b32 s{sT+5}, s{sT+4}, 12\ns_add_u32 s{sT+5}, s{sT+5}, {S2T_OFF}\nv_lshl_add_u32 v{t0}, v{vI}, 3, s{sT+5}\nv_lshl_add_u32 v{vOLT}, v{vG}, 8, v{t0}")
    a(f"s_lshl_b32 s{sT+4}, s{sT+4}, 5\nv_add_u32 v{t0}, s{sT+4}, v{vI}\nv_mul_u32_u24 v{t0}, 2304, v{t0}")
    a(f"v_and_b32 v{t1}, 1, v{vG}\nv_lshl_add_u32 v{t0}, v{t1}, 5, v{t0}\nv_lshrrev_b32 v{t1}, 1, v{vG}\nv_lshl_add_u32 v{t0}, v{t1}, 4, v{t0}")
    a(f"s_lshl_b32 s{sT+4}, s{sCB}, 7\ns_add_u32 s{sT+4}, s{sT+4}, 1152\nv_add_u32 v{vOUT}, s{sT+4}, v{t0}")
    a(f"v_mov_b32 v{vDBA}, 0")
    for q in range(4):
        a(f"s_add_u32 s{sT+4}, s{sCB}, {q}\ns_and_b32 s{sT+4}, s{sT+4}, 3\ns_mul_i32 s{sWB+q}, s{sT+4}, {4*36*1152}")
    a(f"s_add_u32 s6, s4, L_TABB-L_PC\ns_addc_u32 s7, s5, 0\ns_mov_b32 s{sRETRY}, 0")
    a(f"v_mov_b32 v{t2}, 0\nv_mov_b32 v{t3}, 0\nv_mov_b32 v{t4}, 0\nv_mov_b32 v{t5}, 0\nv_lshlrev_b32 v{t0}, 4, v0\nv_add_u32 v{t1}, {FM}, v{t0}")
    a(f"ds_write_b128 v{t1}, {V(t2,4)}\nds_write_b128 v{t1}, {V(t2,4)} offset:4096")
    deferred, a = a.ins, main
    a.ext(deferred); deferred = []
    prof(a, 0)
    for x in dx(1) + dk(1):
        a.ext(x)

    def rd_kv(s):
        o = Asm()
        fb = vFB + 20 * (s & 1)
        base = ((s >> 1) % NW) * 16384 + (s & 1) * 2048
        for T in range(5):
            for rd in range(2):
                o(f"ds_read_b64_tr_b16 {V(fb+4*T+2*rd,2)}, v{vRK+T} offset:{base+1024*rd}", tag=f"wr{s}")
        return o.ins

    def rd_x(P):
        o = Asm()
        for h in range(2):
            for tau in range(3):
                o(f"ds_read_b128 {A(xreg(2*P+h,tau),4)}, v{vXR+h} offset:{XR+(P % NX)*24576+tau*2048}", tag=f"xr{P}")
        return o.ins

    def mm_kv(s):
        o = Asm()
        o.wait(f"wr{s}")
        fb = vFB + 20 * (s & 1)
        for T in range(5):
            for tau in range(3):
                d = V(vACC + 4 * (5 * tau + T), 4)
                c = d if s else (V(vEPS, 4) if T < 2 else V(vEPS + 4, 4) if T == 2 else "0")
                o(f"v_mfma_f32_16x16x32_bf16 {d}, {A(xreg(s,tau),4)}, {V(fb+4*T,4)}, {c}")
        return o

    def rd_q(s):
        o = Asm()
        if s == 16:
            for dl in range(3):
                o(f"v_add_u32 v{vRQ+dl}, v{vQD}, v{vRQ+dl}")
        for dl in range(3):
            for rd in range(2):
                o(f"ds_read_b64_tr_b16 {V(vFQ+12*(s % 3)+4*dl+2*rd,2)}, v{vRQ+dl} offset:{qoff(s, rd)}", tag=f"qr{s}")
        return o.ins if s < 18 else []

    def mm_q(s):
        o = Asm()
        o.wait(f"qr{s}")
        for dl in range(3):
            for tau in range(3):
                d = V(vAQ + 4 * (3 * tau + dl), 4)
                o(f"v_mfma_f32_16x16x32_bf16 {d}, {V(vFQ+12*(s % 3)+4*dl,4)}, {A(xreg(s,tau),4)}, {d if s else V(vEPS,4)}")
        return o.ins
    flat = lambda L: [i for x in L for i in x]
    a.wait("x0", "k0"); prof(a, 36); a("s_barrier")
    rx = rd_x(0)
    a.ext(rx[:3] + rd_kv(0) + rx[3:])
    for P in range(9):
        w = Asm(); w.wait(f"xr{P}")
        if P == 0:
            ld = flat(dx(2) + dk(2))
        elif P < 6:
            ld = w.ins + flat(dx(P + 3))
        elif P == 7:
            ld = Asm()(f"v_lshlrev_b32 v{t0}, 4, v0\nglobal_load_dwordx4 {V(vTAB,4)}, v{t0}, s[6:7]").ins
        else:
            ld = []
        a.ext(interleave(interleave(mm_kv(2 * P), ld, per=len(ld) / 14.0), rd_kv(2 * P + 1), per=1))
        fill, ld = [], []
        if P < 8:
            a.wait(f"x{P+1}", f"k{P+1}")
        if P >= 6:
            a.wait(f"xr{P}")
        if P == 8:
            a.wait("q3")
        a("s_barrier")
        if P < 8:
            rx = rd_x(P + 1)
            fill = rx[:3] + rd_kv(2 * P + 2) + rx[3:]
        else:
            fill = rd_q(0)
        if P == 0:
            ld = w.ins + flat(dx(3))
        if P < 6:
            ld += flat(dk(P + 3))
        else:
            ld += flat([dq(k) for k in range([0, 4, 12][P - 6], [4, 12, 18][P - 6])])
        if P == 8:
            ld += Asm()(f"buffer_load_dword v{vDBG}, v{vDBA}, s[24:27], 0 offen sc1").ins
        a.ext(interleave(interleave(mm_kv(2 * P + 1), ld, per=len(ld) / 14.0), fill, per=1.2))
        if P in (0, 2, 4, 6):
            prof(a, 20 + P // 2)
    assert not deferred
    prof(a, 2)
    qstep = lambda s: spread(mm_q(s), rd_q(s + 1))
    fg = a
    bg = qstep(0) + qstep(1) + qstep(2) + mm_q(3)

    def slot(cnt):
        while bg and cnt:
            i = bg.pop(0); fg.ins.append(i)
            cnt -= i.kind == "mfma"
        while bg and bg[0].kind == "ds":
            fg.ins.append(bg.pop(0))
    n = 0
    for tau in range(3):
        for T in (3, 4, 0, 1, 2):
            src = vACC + 4 * (5 * tau + T)
            pk = vPK + 2 * (n & 1)
            if T >= 3:
                if tau:
                    slot(1)
                fg(f"v_cvt_pk_bf16_f32 v{pk}, v{src}, v{src+1}\nv_cvt_pk_bf16_f32 v{pk+1}, v{src+2}, v{src+3}")
                if T == 4:
                    one = vONE + (1 if tau == 2 else 0)
                    fg(f"v_cndmask_b32 v{pk}, v{pk}, v{one}, {S(sMK89,2)}\nv_cndmask_b32 v{pk+1}, v{pk+1}, v{one}, {S(sMK89,2)}")
            else:
                phi4(fg, src, pk, vPH + 8 * (n & 1), keep=sMK4 if T == 2 else None, slot=slot)
            fg(f"ds_write_b64 v{vEW}, {V(pk,2)} offset:{10240*tau+1024*T}")
            n += 1
    a.ext(bg)
    a.wait("q17")
    a("s_waitcnt lgkmcnt(0)\ns_barrier")
    prof(a, 3)
    ef = lambda j, q: A(216 + 16 * j + 4 * q, 4) if j < 2 else V(56 + 16 * (j - 2) + 4 * q, 4) if j < 5 else V(156 + 4 * q, 4)
    a.ext(rd_q(4))
    er = Asm()
    for j in range(6):
        for q in range(4):
            er(f"ds_read_b128 {ef(j,q)}, v{vER+q} offset:{5120*j}")
    a.ext(er.ins[:8])
    a.ext(spread(mm_q(4), er.ins[8:]))
    a(f"s_mul_i32 s{sT}, s{sP}, 11\ns_add_u32 s{sT}, s{sT}, s{sRB}\ns_mul_i32 s{sT}, s{sT}, {S1_SLOT}")
    km = Asm()
    for j in range(6):
        for q in range(2):
            d = V(vKD + 4 * q, 4)
            km(f"v_mfma_f32_16x16x32_bf16 {d}, {ef(j,2*q)}, {ef(j,2*q+1)}, {'0' if j == 0 else d}")
    a.ext(spread(km, rd_q(5) + rd_q(6)))
    a(f"v_cmp_gt_u32 vcc, 8, v{vDBG}")
    m5 = mm_q(5)
    a.ext(m5[:5])
    a(f"s_cbranch_vccnz L_B_INIT\nL_B_INIT_OK:")
    slow("L_B_INIT:")
    slow(f"buffer_load_dword v{vDBG}, v{vDBA}, s[24:27], 0 offen sc1\ns_add_u32 s{sRETRY}, s{sRETRY}, 1\ns_cmp_gt_u32 s{sRETRY}, 0x100000")
    slow(f"s_waitcnt vmcnt(0)\ns_cbranch_scc1 L_B_INIT_OK\nv_cmp_gt_u32 vcc, 8, v{vDBG}\ns_nop 1\ns_cbranch_vccnz L_B_INIT\ns_branch L_B_INIT_OK")
    st = Asm()
    for q in range(2):
        for i in range(4):
            st(f"v_min_u32 v{vKD+4*q+i}, -2, v{vKD+4*q+i}")
        st(f"buffer_store_dwordx4 {V(vKD+4*q,4)}, v{vTAB+q}, s[20:23], s{sT} offen sc1")
    a.ext(spread(st, m5[5:]))
    a("s_barrier")
    prof(a, 4)

    def gather():
        o = Asm()
        for r in range(11):
            if r:
                o(f"s_mov_b32 s{sSO}, {r*S1_SLOT}")
            o(f"buffer_load_dwordx4 {V(vGAT+4*r,4)}, v{vGA}, s[20:23], {'s%d' % sSO if r else '0'} offen sc1")
        return o.ins
    ld = []
    for k in range(18):
        ld.append(dquad(16, vDO, "", sWB + (k >> 2), 36 * 1152 * (k & 3), WO, k, f"o{k}") if k < 16 else
                  dquad(16, vDO + 1, "", None, 288 * 1152 * (k - 16), WO, k, f"o{k}"))
    ga = gather()
    for s in range(6, 18):
        ex = []
        if GS <= s < GS + 3:
            ex += ga[:7]; ga = ga[7:]
        else:
            ex += flat(ld[:2]); ld = ld[2:]
        if s == 17:
            ex += Asm()(f"buffer_load_dword v{vDBG}, v{vDBA}, s[24:27], 0 offen offset:64 sc1").ins
        a.ext(spread(spread(mm_q(s), ex), rd_q(s + 1)))
    assert not ld and not ga
    prof(a, 5)
    for tau in range(3):
        for dl in range(3):
            phi4(a, vAQ + 4 * (3 * tau + dl), vPQ + 6 * tau + 2 * dl, 128 + 4 * (dl & 1))
    prof(a, 6)

    def check(o, regs, label):
        r = list(regs)
        o(f"v_max3_u32 v{vCK}, v{r[0]}, v{r[1]}, v{r[2]}")
        r = r[3:]
        while len(r) >= 2:
            o(f"v_max3_u32 v{vCK}, v{r[0]}, v{r[1]}, v{vCK}"); r = r[2:]
        if r:
            o(f"v_max_u32 v{vCK}, v{r[0]}, v{vCK}")
        o(f"v_cmp_eq_u32 vcc, -1, v{vCK}\ns_cbranch_vccnz {label}")

    def slow_path(name, loads, regs):
        slow(f"{name}:")
        slow.ext(loads)
        slow(f"s_add_u32 s{sRETRY}, s{sRETRY}, 1\ns_cmp_gt_u32 s{sRETRY}, 0x100000\ns_waitcnt vmcnt(0)\ns_cbranch_scc1 {name}_OK")
        check(slow, regs, name)
        slow(f"s_branch {name}_OK")
    check(a, range(vGAT, vGAT + 44), "L_B_GA")
    a("L_B_GA_OK:")
    slow_path("L_B_GA", gather(), range(vGAT, vGAT + 44))
    step = 1
    while step < 11:
        for r in range(0, 11 - step, 2 * step):
            for h in range(2):
                a(f"v_pk_add_f32 {V(vGAT+4*r+2*h,2)}, {V(vGAT+4*r+2*h,2)}, {V(vGAT+4*(r+step)+2*h,2)}")
        step *= 2
    a(f"v_bfe_i32 v{t0}, v{vTAB+3}, 0, 1\nv_bfe_i32 v{t1}, v{vTAB+3}, 1, 1")
    a(f"v_cvt_pk_bf16_f32 v{t2}, v{vGAT}, v{vGAT+1}\nv_cvt_pk_bf16_f32 v{t3}, v{vGAT+2}, v{vGAT+3}")
    a(f"v_and_b32 v{t2}, v{t2}, v{t0}\nv_and_b32 v{t3}, v{t3}, v{t1}\nds_write_b64 v{vTAB+2}, {V(t2,2)}")
    a.wait("o17")
    a("s_waitcnt lgkmcnt(0)\ns_barrier")
    prof(a, 7)
    for h in range(2):
        a(f"ds_read_b64 {V(vFA+12+2*h,2)}, v{vFD} offset:{32*h}")
    a(f"ds_read_b64 {V(vFA+20,2)}, v{vFD} offset:64")
    for ep in range(3):
        for h in range(2):
            a(f"ds_read_b64 {V(vFA+4*ep+2*h,2)}, v{vFR} offset:{1536*ep+32*h}")
        if ep:
            a(f"ds_read_b64 {V(vFA+14+2*ep,2)}, v{vFR} offset:{1536*ep+64}")
    om_ = []
    for tau in range(3):
        o = Asm()
        b1, b2 = V(vPQ + 6 * tau, 4), V(vPQ + 6 * tau + 4, 2)
        for ep in (3, 0, 1, 2):
            d = V(vON + 16 * tau + 4 * ep, 4)
            o(f"v_mfma_f32_16x16x32_bf16 {d}, {V(vFA+4*ep,4)}, {b1}, {V(vEPS,4) if ep == 3 else '0'}")
        for ep in (3, 1, 2):
            d = V(vON + 16 * tau + 4 * ep, 4)
            o(f"v_mfma_f32_16x16x16_bf16 {d}, {V(vFA+14+2*ep,2)}, {b2}, {d}")
        om_.append(o.ins)
    a.ext(om_[0] + om_[1][:4])
    a(f"v_cmp_gt_u32 vcc, 8, v{vDBG}\ns_cbranch_vccnz L_B_INI2\nL_B_INI2_OK:")
    slow("L_B_INI2:")
    slow(f"buffer_load_dword v{vDBG}, v{vDBA}, s[24:27], 0 offen offset:64 sc1\ns_add_u32 s{sRETRY}, s{sRETRY}, 1\ns_cmp_gt_u32 s{sRETRY}, 0x100000")
    slow(f"s_waitcnt vmcnt(0)\ns_cbranch_scc1 L_B_INI2_OK\nv_cmp_gt_u32 vcc, 8, v{vDBG}\ns_nop 1\ns_cbranch_vccnz L_B_INI2\ns_branch L_B_INI2_OK")
    for tau in range(3):
        n0 = vON + 16 * tau; of = vOF + 6 * tau; r = vR
        o = Asm()
        o(f"v_rcp_f32 v{r}, v{n0+12}\nv_rcp_f32 v{r+1}, v{n0+13}")
        if tau == 2:
            o(f"s_cmp_lt_u32 s{sRB}, 10\ns_cselect_b32 s{sT}, {2*65536}, {OOB}\ns_cselect_b32 s{sT+1}, {2*8192}, {OOB}") if False else None
            o(f"s_cmp_lt_u32 s{sRB}, 10\ns_cselect_b32 s{sT}, 0, {OOB}\ns_add_u32 s{sT+1}, s{sT}, {2*8192}\ns_add_u32 s{sT}, s{sT}, {2*65536}")
        else:
            o(f"s_mov_b32 s{sT}, {65536*tau}\ns_mov_b32 s{sT+1}, {8192*tau}")
        o(f"v_cndmask_b32 v{r+2}, v{r+1}, v{r}, {S(sMG0,2)}")
        if tau == 0:
            for q in range(12):
                o(f"v_mul_f32 v{n0+q}, v{r + (0 if q < 4 else 2 if q < 6 else 1)}, v{n0+q}")
        else:
            o(f"v_pk_mul_f32 {V(n0,2)}, {V(n0,2)}, {V(r,2)} op_sel_hi:[1,0]\nv_pk_mul_f32 {V(n0+2,2)}, {V(n0+2,2)}, {V(r,2)} op_sel_hi:[1,0]")
            o(f"v_pk_mul_f32 {V(n0+4,2)}, {V(n0+4,2)}, {V(r+2,2)} op_sel_hi:[1,0]")
            for q in (6, 8, 10):
                o(f"v_pk_mul_f32 {V(n0+q,2)}, {V(n0+q,2)}, {V(r,2)} op_sel:[0,1] op_sel_hi:[1,1]")
        for q in range(6):
            o(f"v_cvt_pk_bf16_f32 v{of+q}, v{n0+2*q}, v{n0+2*q+1}")
        for q in range(4):
            o(f"v_min_u32 v{of+q}, -2, v{of+q}")
        o(f"buffer_store_dwordx4 {V(of,4)}, v{vS2}, s[20:23], s{sT} offen sc1")
        o(f"v_min_u32 v{of+4}, -2, v{of+4}\nv_min_u32 v{of+5}, -2, v{of+5}")
        o(f"buffer_store_dwordx2 {V(of+4,2)}, v{vS2T}, s[20:23], s{sT+1} offen sc1")
        a.ext(spread(o, om_[1][4:] + om_[2]) if tau == 0 else o.ins)
    if prof.on:
        a(f"s_cmp_eq_u32 s{sG2}, 0\ns_cbranch_scc1 L_B_EXIT")
        pv = prof.prev
        slow("L_B_EXIT:"); prof(slow, 8, final=True); slow("s_endpgm")
        prof.prev = pv
    else:
        a(f"s_cmp_eq_u32 s{sG2}, 0\ns_cbranch_scc1 L_END")
    prof(a, 8)

    def wreg(k, T, n=4, o=0):
        return A(16 * k + 4 * T + o, n) if k < 16 else V(vWV + 16 * (k - 16) + 4 * T + o, n)
    om = lambda k, rt: vOM + 4 * (2 * k + rt)

    def oloads(ks):
        o = Asm()
        cur = None
        for k in ks:
            for rt in range(2):
                if k < 16:
                    o(f"buffer_load_dwordx4 {V(om(k,rt),4)}, v{vOL}, s[20:23], s{(sWB if rt else sOB) + (k >> 2)} offen offset:{1024*(k & 3)} sc1")
                else:
                    for hf in range(2):
                        o(f"buffer_load_dwordx2 {V(om(k,rt)+2*hf,2)}, v{vOLT}, s[20:23], 0 offen offset:{2048*rt+1024*(k-16)+128*hf} sc1")
        return o.ins
    rd = Asm()
    for k in range(18):
        if k == 16:
            for T in range(4):
                rd(f"v_add_u32 v{vRO+T}, v{vQD}, v{vRO+T}")
        for T in range(4):
            for h in range(2):
                rd(f"ds_read_b64_tr_b16 {wreg(k,T,2,2*h)}, v{vRO+T} offset:{qoff(k, h)}")
    for q in range(4):
        a(f"s_add_u32 s{sT+4}, s{sCB}, {q}\ns_and_b32 s{sT+4}, s{sT+4}, 3\ns_lshl_b32 s{sOB+q}, s{sT+4}, 12\ns_add_u32 s{sWB+q}, s{sOB+q}, 16384")
    a.ext(interleave(rd, oloads(range(3 * OL_AHEAD)), per=OL_PER, start=OL_START, pred=lambda i: i.kind == "ds"))
    prof(a, 9)
    groups = [list(range(3 * gidx, 3 * gidx + 3)) for gidx in range(6)]
    gregs = lambda ks: [om(k, rt) + i for k in ks for rt in range(2) for i in range(4)]

    def mm_o(ks):
        o = Asm()
        for k in ks:
            for rt in range(2):
                for T in range(4):
                    d = V(vA2 + 4 * (4 * rt + T), 4)
                    o(f"v_mfma_f32_16x16x32_bf16 {d}, {wreg(k,T)}, {V(om(k,rt),4)}, {'0' if k == 0 else d}")
        return o
    check(a, gregs(groups[0]), "L_B_O0")
    a("L_B_O0_OK:")
    slow_path("L_B_O0", oloads(groups[0]), gregs(groups[0]))
    for gi, ks in enumerate(groups):
        if gi < 5:
            c = Asm(); check(c, gregs(groups[gi + 1]), f"L_B_O{gi+1}")
            m = mm_o(ks).ins
            if gi + OL_AHEAD < 6:
                m = interleave(m, oloads(groups[gi + OL_AHEAD]), per=0.3)
            a.ext(interleave(m, c.ins[:-1], per=1, start=10))
            a.ext(c.ins[-1:])
            a(f"L_B_O{gi+1}_OK:")
            slow_path(f"L_B_O{gi+1}", oloads(groups[gi + 1]), gregs(groups[gi + 1]))
        else:
            m = mm_o(ks).ins
            m0 = [i for n, i in enumerate(m) if (n >> 2) & 1 == 0]; m1 = [i for n, i in enumerate(m) if (n >> 2) & 1]
            a.ext(m0 + m1[:3])
            main = a
        prof(a, 10 + gi)
    a(f"s_mov_b32 s{sT}, {16*2304}")
    for rt in range(2):
        a = Asm()
        for u in range(2):
            p0 = vOM + 4 * (2 * rt + u)
            for h in range(2):
                n0 = vA2 + 4 * (4 * rt + 2 * u + h)
                a(f"v_cvt_pk_bf16_f32 v{p0+2*h}, v{n0}, v{n0+1}\nv_cvt_pk_bf16_f32 v{p0+2*h+1}, v{n0+2}, v{n0+3}")
            a(f"v_permlane16_swap_b32 v{p0}, v{p0+2}\nv_permlane16_swap_b32 v{p0+1}, v{p0+3}")
            a(f"buffer_store_dwordx4 {V(p0,4)}, v{vOUT}, s[28:31], {'s%d' % sT if rt else '0'} offen offset:{64*u} {OUT_FLAGS}")
        main.ext(spread(a, m1[3:]) if rt == 0 else a.ins)
    a = main
    prof(a, 16, final=True)
    a("s_endpgm")
    return finish(a) + finish(slow)
```

```python
import sys
from asmlib import *
from gen_common import *
import gen_a
def build(prof_on=False, with_b=True):
    prof = Prof(prof_on)
    e = Asm()
    prof.start(e)
    e("s_load_dwordx16 s[36:51], s[0:1], 56")
    e("s_cmp_ge_u32 s2, 256\ns_cbranch_scc1 L_END")
    e("s_getpc_b64 s[4:5]\nL_PC:")
    e(f"s_lshr_b32 s{sJ}, s2, 3\ns_and_b32 s{sX}, s2, 7\ns_cmp_ge_u32 s{sJ}, 2\ns_cbranch_scc1 L_NOPF")
    e(f"s_lshl_b32 s6, s{sJ}, 15\nv_lshl_add_u32 v1, v0, 7, s6\nv_min_u32 v1, L_LAST-L_PC, v1\nglobal_load_dword v253, v1, s[4:5]")
    e("L_NOPF:")
    e(f"s_and_b32 s6, s{sX}, 3\ns_cmp_eq_u32 s6, 3\ns_cselect_b32 s{sNA}, 16, 8\ns_cmp_ge_u32 s{sJ}, s{sNA}\ns_cbranch_scc1 L_B")
    a_head, a_rest = gen_a.gen_a(prof)
    ins = e.ins + a_head + Asm()(f"L_B:\ns_sub_u32 s{sJ}, s{sJ}, s{sNA}").ins
    tabs = []
    if with_b:
        import gen_b
        ins = ins + gen_b.gen_b(prof)
        tabs.append(("L_TABB", gen_b.table_b()))
    else:
        ins = ins + Asm()("s_endpgm").ins
    ins = ins + a_rest
    tabs.append(("L_TABA", gen_a.table_a()[[5, 4, 0, 1, 2, 3]]))
    head = open("concat_heads__ssm_conv_s4__linear_attn_block__prompt.s.ref").read().split("\n")
    hdr = [l for l in head if l.startswith(";") and "@launch" not in l and "Override" not in l and "grid=ceil" not in l]
    hdr = hdr[:17]
    out = hdr + ["; @launch grid=(256,1,1) block=(256,1,1) lds=163840", '.amdgcn_target "amdgcn-amd-amdhsa--gfx950"', ".text",
                 f".globl {NAME}", ".p2align 12", ".p2align 8", f".type {NAME},@function", f"{NAME}:"]
    out.append(text_of(ins))
    out.append("L_END:\ns_endpgm")
    for lab, T in tabs:
        out.append(f".p2align 7\n.type {lab},@object\n{lab}:")
        fl = T.reshape(-1)
        for i in range(0, len(fl), 8):
            out.append(".long " + ", ".join(hex(int(x)) for x in fl[i:i+8]))
        out.append(f".size {lab}, {4*len(fl)}")
    out.append(".type L_LAST,@object\nL_LAST:\n.long 0\n.size L_LAST, 4")
    out.append(f'.section .rodata,"a"\n.p2align 6\n.amdhsa_kernel {NAME}\n  .amdhsa_next_free_vgpr 512\n  .amdhsa_next_free_sgpr 102\n  .amdhsa_accum_offset 256\n  .amdhsa_group_segment_fixed_size 0\n  .amdhsa_kernarg_size 120\n  .amdhsa_user_sgpr_count 2\n  .amdhsa_user_sgpr_kernarg_segment_ptr 1\n  .amdhsa_system_sgpr_workgroup_id_x 1\n.end_amdhsa_kernel')
    return "\n".join(out) + "\n"
if __name__ == "__main__":
    path = sys.argv[1]
    s = build(prof_on="prof" in sys.argv, with_b="noB" not in sys.argv)
    open(path, "w").write(s)
    print("wrote", path, len(s), "bytes")
```

```python
import re

TRANS = ("v_exp_f32", "v_log_f32", "v_rcp_f32", "v_rsq_f32", "v_sqrt_f32", "v_sin_f32", "v_cos_f32", "v_rcp_iflag_f32")


def regs_of(tok):
    tok = tok.strip()
    tok = tok.lstrip("-").replace("abs(", "").replace("|", "").rstrip(")")
    m = re.fullmatch(r"([vas])\[(\d+):(\d+)\]", tok)
    if m:
        return [(m.group(1), i) for i in range(int(m.group(2)), int(m.group(3)) + 1)]
    m = re.fullmatch(r"([vas])(\d+)", tok)
    if m:
        return [(m.group(1), int(m.group(2)))]
    if tok in ("vcc", "vcc_lo", "vcc_hi"):
        return [("s", "vcc")]
    if tok in ("exec", "exec_lo", "exec_hi"):
        return [("s", "exec")]
    if tok == "m0":
        return [("s", "m0")]
    return []


class I:
    __slots__ = ("text", "op", "dst", "src", "kind", "tag", "mfma_c", "passes", "ab", "after", "wide_store", "lds_dma")

    def __init__(self, text, tag=None, after=None):
        self.text = text
        self.tag = tag
        self.after = after or []
        t = text.split(";")[0].strip()
        parts = t.split(None, 1)
        self.op = parts[0] if parts else ""
        ops = []
        if len(parts) > 1:
            ops = [x.strip() for x in re.split(r",(?![^\[]*\])", parts[1])]
            if ops:
                ops[-1] = ops[-1].split()[0] if ops[-1].split() else ""
        mods = t
        op = self.op
        self.dst, self.src = [], []
        self.mfma_c, self.ab, self.passes = [], [], 0
        self.wide_store = False
        self.lds_dma = False
        R = regs_of
        if op.endswith(":") or op.startswith("."):
            self.kind = "label"
        elif op.startswith("v_mfma"):
            self.kind = "mfma"
            self.dst = R(ops[0]); self.ab = R(ops[1]) + R(ops[2]); self.mfma_c = R(ops[3])
            self.src = self.ab + self.mfma_c
            self.passes = 8 if "32x32" in op else 4
        elif op.startswith("buffer_") or op.startswith("global_"):
            self.kind = "vmem"
            if op.startswith("buffer_wbl2") or op.startswith("buffer_inv"):
                pass
            elif re.search(r"\blds\b", mods):
                self.lds_dma = True
                self.src = sum((R(o) for o in ops), []) + [("s", "m0")]
            elif "_load_" in op:
                self.dst = R(ops[0]); self.src = sum((R(o) for o in ops[1:]), [])
            elif "_atomic_" in op:
                self.src = sum((R(o) for o in ops), [])
                if re.search(r"\bsc0\b", mods):
                    self.dst = R(ops[0])
            else:
                self.src = sum((R(o) for o in ops), [])
                if "x4" in op or "x3" in op:
                    self.wide_store = True
        elif op.startswith("ds_"):
            self.kind = "ds"
            if op.startswith("ds_read") or op.startswith("ds_bpermute") or op.startswith("ds_swizzle"):
                self.dst = R(ops[0]); self.src = sum((R(o) for o in ops[1:]), [])
            else:
                self.src = sum((R(o) for o in ops), [])
        elif op.startswith("s_load") or op.startswith("s_memtime") or op.startswith("s_memrealtime"):
            self.kind = "smem"
            self.dst = R(ops[0]); self.src = sum((R(o) for o in ops[1:]), [])
        elif op.startswith("v_"):
            self.kind = "valu"
            if op.startswith("v_permlane"):
                self.dst = R(ops[0]) + R(ops[1]); self.src = list(self.dst)
            elif op.startswith("v_add_co") or op.startswith("v_addc_co") or op.startswith("v_sub_co"):
                self.dst = R(ops[0]) + R(ops[1]); self.src = sum((R(o) for o in ops[2:]), [])
            else:
                self.dst = R(ops[0]); self.src = sum((R(o) for o in ops[1:]), [])
                if op.startswith("v_fmac") or op.startswith("v_writelane"):
                    self.src += self.dst
        elif op.startswith("s_"):
            self.kind = "salu"
            if op in ("s_waitcnt", "s_barrier", "s_nop", "s_endpgm", "s_setprio", "s_branch", "s_sleep") or op.startswith("s_cbranch"):
                if op in ("s_cbranch_vccz", "s_cbranch_vccnz"):
                    self.src = [("s", "vcc")]
                if op in ("s_cbranch_execz", "s_cbranch_execnz"):
                    self.src = [("s", "exec")]
            elif op.startswith("s_cmp") or op.startswith("s_bitcmp"):
                self.src = sum((R(o) for o in ops), [])
            else:
                self.dst = R(ops[0]); self.src = sum((R(o) for o in ops[1:]), [])
                if "saveexec" in op:
                    self.dst += [("s", "exec")]
        else:
            self.kind = "other"

    def states(self):
        if self.kind == "label":
            return 0
        if self.op == "s_nop":
            return int(self.text.split()[1]) + 1
        return 1


class Asm:
    def __init__(self):
        self.ins = []

    def __call__(self, text, tag=None, after=None):
        for line in text.split("\n"):
            line = line.strip()
            if line:
                self.ins.append(I(line, tag=tag, after=after))
                after = None
        return self

    def ext(self, lst):
        self.ins.extend(lst.ins if isinstance(lst, Asm) else lst)

    def wait(self, *tags):
        i = I("; wait", after=list(tags))
        i.kind = "label"
        self.ins.append(i)

    def drain(self):
        self("s_waitcnt vmcnt(0) lgkmcnt(0)")


def atoms(lst):
    out = []
    for i in lst:
        if out and (i.op.startswith(("s_cselect", "s_addc", "s_subb", "s_cbranch")) or out[-1][-1].op.startswith(("s_cmp", "s_bitcmp"))):
            out[-1].append(i)
        else:
            out.append([i])
    return out


def interleave(main, fill, per=1, start=0, pred=lambda i: i.kind == "mfma"):
    main = main.ins if isinstance(main, Asm) else main
    fill = atoms(list(fill.ins if isinstance(fill, Asm) else fill))
    out, n, acc = [], 0, 0.0
    for i in main:
        out.append(i)
        if pred(i):
            n += 1
            if n > start:
                acc += per
                while acc >= 1 and fill:
                    g = fill.pop(0)
                    out.extend(g)
                    acc -= len(g)
    for g in fill:
        out.extend(g)
    return out


def insert_waits(ins):
    out = []
    vm, lg = [], []

    def need(queue, regs, tags):
        last = -1
        for k, (d, tg, _) in enumerate(queue):
            if (d & regs) or (tg is not None and tg in tags):
                last = k
        return last

    for i in ins:
        if i.op == "s_waitcnt":
            m = re.search(r"vmcnt\((\d+)\)", i.text)
            if m:
                n = int(m.group(1)); vm[:] = vm[len(vm) - n:] if n < len(vm) and n > 0 else ([] if n == 0 else vm)
            m = re.search(r"lgkmcnt\((\d+)\)", i.text)
            if m:
                n = int(m.group(1)); lg[:] = lg[len(lg) - n:] if n < len(lg) and n > 0 else ([] if n == 0 else lg)
            out.append(i)
            continue
        regs = set(i.src) | set(i.dst)
        tags = set(i.after)
        w = []
        k = need(vm, regs, tags)
        if k >= 0:
            n = len(vm) - 1 - k
            n = min(n, 63)
            w.append(f"vmcnt({n})")
            vm[:] = vm[len(vm) - n:] if n > 0 else []
        k = need(lg, regs, tags)
        if k >= 0:
            n = len(lg) - 1 - k
            if any(e[2] for e in lg):
                n = 0
            n = min(n, 15)
            w.append(f"lgkmcnt({n})")
            lg[:] = lg[len(lg) - n:] if n > 0 else []
        if w:
            out.append(I("s_waitcnt " + " ".join(w)))
        out.append(i)
        if i.kind == "vmem":
            vm.append((set(i.dst), i.tag, False))
            assert len(vm) <= 63, "more than 63 vector-memory operations outstanding: " + i.text
        elif i.kind == "ds":
            lg.append((set(i.dst), i.tag, False))
        elif i.kind == "smem":
            lg.append((set(i.dst), i.tag, True))
    return out


def base_op(op):
    return re.sub(r"_e(32|64)$", "", op)


def hazard_need(p, c):
    n = 0
    pd, cs, cd = set(p.dst), set(c.src), set(c.dst)
    vec = lambda s: {r for r in s if r[0] in "va"}
    sca = lambda s: {r for r in s if r[0] == "s"}
    if p.kind == "valu":
        if c.kind == "mfma" and vec(pd) & cs:
            n = max(n, 2)
        if base_op(p.op) in TRANS and c.kind == "valu" and vec(pd) & cs and base_op(c.op) not in TRANS:
            n = max(n, 1)
        if base_op(p.op) in TRANS and c.kind in ("ds", "vmem") and vec(pd) & cs:
            n = max(n, 1)
        if sca(pd):
            if c.kind == "valu" and sca(pd) & cs:
                n = max(n, 4 if c.op.startswith(("v_readlane", "v_writelane")) else 2)
            if c.kind == "vmem" and sca(pd) & cs:
                n = max(n, 5)
            if c.kind == "salu" and sca(pd) & cs:
                n = max(n, 1)
        if c.kind == "valu" and vec(pd) & cs:
            if c.op.startswith(("v_readlane", "v_readfirstlane")):
                n = max(n, 1)
            if c.op.startswith("v_permlane") or "row_" in c.text or "quad_perm" in c.text:
                n = max(n, 2)
    if p.kind == "mfma":
        far = p.passes + 4
        if c.kind == "mfma":
            if pd & set(c.ab):
                n = max(n, far)
            if pd & set(c.mfma_c):
                same = (p.dst == c.mfma_c and p.passes == c.passes)
                n = max(n, 0 if same else p.passes + 2)
            elif pd & cd:
                n = max(n, p.passes + 2)
        elif c.kind in ("valu", "vmem", "ds"):
            if pd & (cs | cd):
                n = max(n, far)
            if c.kind == "valu" and set(p.mfma_c) & cd:
                n = max(n, p.passes - 1)
    if p.kind == "vmem" and p.wide_store:
        if vec(set(p.src)) & cd:
            n = max(n, 2)
    if p.kind == "salu" and ("s", "m0") in pd and ((c.kind == "vmem" and c.lds_dma) or "addtid" in c.op):
        n = max(n, 1)
    return n


def insert_nops(ins):
    out = []
    for c in ins:
        if c.kind != "label":
            dist, need = 0, 0
            for p in reversed(out):
                if dist > 14:
                    break
                if p.kind != "label":
                    h = hazard_need(p, c)
                    if h > dist:
                        need = max(need, h - dist)
                dist += p.states()
            if need:
                out.append(I(f"s_nop {need - 1}"))
        out.append(c)
    return out


def finish(asm):
    ins = asm.ins if isinstance(asm, Asm) else asm
    ins = insert_waits(ins)
    ins = insert_nops(ins)
    return ins


def text_of(ins):
    return "\n".join(i.text for i in ins if not i.text.startswith("; wait"))


def V(n, cnt=1):
    return f"v{n}" if cnt == 1 else f"v[{n}:{n + cnt - 1}]"


def A(n, cnt=1):
    return f"a{n}" if cnt == 1 else f"a[{n}:{n + cnt - 1}]"


def S(n, cnt=1):
    return f"s{n}" if cnt == 1 else f"s[{n}:{n + cnt - 1}]"
```

```python
from asmlib import *
from gen_common import *
import numpy as np

XR = 0
WQ = 0
WR = 73728
EX = WR + 16384
WO = WR
FM = 147456
FDUMMY = FM + 4608
NX, NW = 3, 4
PAIRS = [[(0, 2), (0, 3)], [(0, 4), (1, 4)], [(1, 2), (1, 3)], [(2, 3), (2, 4)]]


def head_of(e):
    return 0 if (e < 18 or e == 36) else 1


def table_b():
    T = np.zeros((256, 4), np.uint32)
    T[:, 0] = OOB; T[:, 1] = OOB
    cons = []
    for w in range(4):
        for q in range(2):
            kt, vt = PAIRS[w][q]
            for l in range(64):
                c, g = l % 16, l // 16
                e, ch = 16 * vt + c - 36, 4 * kt + g
                if 0 <= e < 38 and 4 * head_of(e) <= ch <= 4 * head_of(e) + 4:
                    T[64 * w + l, q] = 16 * len(cons)
                    cons.append((e, ch))
    assert len(cons) == 190
    for t in range(256):
        if t < 190:
            e, ch = cons[t]
            fl = 3 if ch != 4 else (1 if head_of(e) == 0 else 2)
            T[t, 2] = FM + 96 * e + 8 * ch; T[t, 3] = fl
        else:
            T[t, 2] = FDUMMY + 8 * (t - 190); T[t, 3] = 0
    return T


vQD = 1
vRO = 2
vOL, vOLT, vOUT, vCK = 6, 7, 8, 9
vL, vI, vG, vX = 10, 11, 12, 13
vDQ = 16
vXR = 17
vXD = 176
vDK = 182
vRK = 22
vRQ = 27
vEW, vGA = 30, 31
vTAB = 32
vT = 36
vONE = 42
vER = 44
vDO = 48
vFR, vFD, vS2, vS2T, vDBG, vDBA = 50, 51, 52, 53, 54, 55
vACC = 56
vFB = 116
vPH = 156
vPK = 172
vKD = 104
vAQ = 186
vFQ = 116
vGAT = 56
vPQ = 222
vFA = 156
vON = 56
vOF = 104
vR = 124
vEPS = 240
vA2 = 12
vWV = 44
vOM = 76
sW, sRB, sP, sRB2, sCB, sG2 = 52, 53, 54, 55, 56, 57
sT = 58
sB, sMX = 64, 65
sM0 = 66
sMK4, sMK89, sMG0 = 68, 70, 72
sLOG, sEPS = 74, 76
sRETRY = 78
sSO = 79
sSX, sSK, sMW = 80, 81, 82
sPC, sPQ, sQK = 83, 84, 85
sWB, sOB = 86, 64


_E = __import__('os').environ
OL_START, OL_PER, OL_AHEAD = int(_E.get('OLS', 100)), float(_E.get('OLP', 0.4)), int(_E.get('OLA', 2))
GS = int(_E.get('GS', 12))
N_PRE = int(__import__('os').environ.get('NPRE', '999'))
import os
OUT_FLAGS = os.environ.get("OUTF", "")
EXP = os.environ.get('EXP', '').split(',')


def xreg(s, tau):
    return (3 * s + tau) * 4


def mneed(s):
    return -(-(5 * s + 5) // 4)


def phi4(a, src, dst, tmp, keep=None, slot=lambda n: None):
    e = tmp
    a(f"v_pk_mul_f32 {V(e,2)}, {V(src,2)}, {S(sLOG,2)}\nv_pk_mul_f32 {V(e+2,2)}, {V(src+2,2)}, {S(sLOG,2)}")
    m = src if keep is None else tmp + 4
    for i in range(4):
        if i in (0, 2):
            slot(1)
        a(f"v_exp_f32_e64 v{e+i}, v{e+i} clamp\nv_max_f32 v{m+i}, s{sEPS}, v{src+i}")
    a(f"v_pk_add_f32 {V(e,2)}, {V(e,2)}, {V(m,2)}\nv_pk_add_f32 {V(e+2,2)}, {V(e+2,2)}, {V(m+2,2)}")
    slot(1)
    if keep is not None:
        for i in range(4):
            a(f"v_cndmask_b32 v{e+i}, v{src+i}, v{e+i}, {S(keep,2)}")
        slot(1)
    a(f"v_cvt_pk_bf16_f32 v{dst}, v{e}, v{e+1}\nv_cvt_pk_bf16_f32 v{dst+1}, v{e+2}, v{e+3}")


def spread(fg, bg):
    fg = atoms(fg.ins if isinstance(fg, Asm) else fg)
    bg = atoms(bg)
    out, k = [], 0
    for n, i in enumerate(fg):
        out.extend(i)
        while k < len(bg) and (k + 1) * len(fg) <= (n + 1) * len(bg):
            out.extend(bg[k]); k += 1
    return out + [x for g in bg[k:] for x in g]


def gen_b(prof):
    a = Asm()
    slow = Asm()
    t0, t1, t2, t3, t4, t5 = range(vT, vT + 6)
    a(f"s_mul_i32 s{sRB}, s6, 3\ns_lshr_b32 s{sT}, s{sJ}, 3\ns_add_u32 s{sRB}, s{sRB}, s{sT}")
    a(f"s_and_b32 s{sT}, s{sJ}, 7\ns_lshr_b32 s{sP}, s{sX}, 2\ns_lshl_b32 s{sP}, s{sP}, 3\ns_add_u32 s{sP}, s{sP}, s{sT}")
    a(f"v_lshrrev_b32 v{t0}, 6, v0\nv_bfe_u32 v{vG}, v0, 4, 2\nv_bfe_u32 v{t1}, v0, 3, 3\nv_readfirstlane_b32 s{sW}, v{t0}")
    a(f"s_mul_i32 s{sT}, s{sRB}, 192\nv_lshl_add_u32 v{t1}, v{t0}, 4, v{t1}\nv_add_u32 v{t1}, s{sT}, v{t1}\nv_mul_u32_u24 v{t1}, 1152, v{t1}")
    a(f"v_and_b32 v{t2}, 7, v0\nv_xor_b32 v{t2}, v{t2}, v{vG}\nv_lshl_add_u32 v{vXD}, v{t2}, 4, v{t1}")
    a(f"v_xor_b32 v{t2}, 4, v{t2}\nv_lshl_add_u32 v{vXD+1}, v{t2}, 4, v{t1}\nv_add_u32 v{vXD+1}, {8*1152-1024}, v{vXD+1}")
    a(f"v_add_u32 v{vXD+2}, {64*1152-2048}, v{vXD}\nv_add_u32 v{vXD+3}, {64*1152-2048}, v{vXD+1}")
    a(f"v_add_u32 v{vXD+4}, {128*1152}, v{vXD}\nv_add_u32 v{vXD+5}, {128*1152}, v{vXD+1}")
    a(f"s_mul_i32 s{sMX}, s{sW}, 6144\ns_lshl_b32 s{sMW}, s{sW}, 12")
    a(f"s_and_b32 s{sT}, s{sP}, 1\ns_lshl_b32 s{sT}, s{sT}, 3\ns_mul_i32 s{sT+1}, s{sP}, 72\ns_sub_u32 s{sT+1}, s{sT+1}, s{sT}")
    a(f"s_and_b32 s{sB}, s{sT+1}, 127\ns_sub_u32 s{sB}, 128, s{sB}\ns_lshr_b32 s{sB}, s{sB}, 4\ns_min_u32 s{sB}, s{sB}, 4")
    a(f"s_sub_u32 s{sT+2}, 5, s{sB}\ns_mov_b32 s{sT+3}, 3456")
    if 'rot1' in EXP:
        a(f"s_lshr_b32 s{sPC}, s{sJ}, 3\ns_mul_i32 s{sPC}, s{sPC}, 3\ns_and_b32 s{sPQ}, s{sJ}, 7\ns_add_u32 s{sPC}, s{sPC}, s{sPQ}")
    else:
        offs = [1, 0, 4, 0, 7, 0, 1, 0] if 'rot3' not in EXP else [1, 0, 4, 0, 7, 0, 2, 0]
        pk0 = sum(o << (4 * i) for i, o in enumerate(offs)); pk1 = sum(o << (4 * (7 - i)) for i, o in enumerate(offs))
        a(f"s_mov_b32 s{sPC}, {pk0}\ns_cmp_ge_u32 s{sP}, 8\ns_cselect_b32 s{sPC}, {pk1}, s{sPC}\ns_and_b32 s{sPQ}, s{sJ}, 7\ns_lshl_b32 s{sPQ}, s{sPQ}, 2")
        a(f"s_lshr_b32 s{sPQ}, s{sPC}, s{sPQ}\ns_and_b32 s{sPQ}, s{sPQ}, 15\ns_lshr_b32 s{sPC}, s{sJ}, 3\ns_mul_i32 s{sPC}, s{sPC}, 3\ns_add_u32 s{sPC}, s{sPC}, s{sPQ}")
    a(f"s_sub_u32 s{sPQ}, s{sPC}, 9\ns_cmp_ge_u32 s{sPC}, 9\ns_cselect_b32 s{sPC}, s{sPQ}, s{sPC}\ns_mov_b32 s{sPQ}, s{sPC}")
    a(f"s_lshl_b32 s{sSX}, s{sPC}, 7\ns_mul_i32 s{sSK}, s{sPC}, {64*3456}")
    def slot_to_col(dst, q, e, tmp):
        a(f"v_mov_b32 v{tmp}, s{sB}\nv_mul_u32_u24 v{dst}, v{q}, v{tmp}\nv_add_u32 v{dst}, v{dst}, v{e}")
        a(f"v_cmp_eq_u32 vcc, 0, v{q}\nv_mov_b32 v{q}, s{sT+2}\nv_cndmask_b32 v{tmp}, v{q}, v{tmp}, vcc\nv_cmp_lt_u32 vcc, v{e}, v{tmp}")
    a(f"v_bfe_u32 v{t1}, v0, 2, 2\nv_xor_b32 v{t1}, v{t1}, v{vG}")
    a(f"v_and_b32 v{t2}, 3, v0\nv_bfe_u32 v{t3}, v0, 6, 1\nv_lshlrev_b32 v{t3}, 1, v{t3}\nv_xor_b32 v{t2}, v{t2}, v{t3}")
    a(f"v_lshrrev_b32 v{t3}, 1, v{t1}\nv_and_b32 v{t1}, 1, v{t1}\nv_mul_u32_u24 v{t3}, 1152, v{t3}")
    slot_to_col(t4, t1, t2, t5)
    a(f"v_lshl_add_u32 v{t3}, v{t4}, 4, v{t3}\nv_lshl_add_u32 v{t0}, v{t0}, 3, v{vG}\nv_mad_u32_u24 v{t3}, v{t0}, s{sT+3}, v{t3}")
    a(f"s_add_u32 s{sT+4}, s{sT+1}, 1152\nv_add_u32 v{t3}, s{sT+4}, v{t3}\nv_mov_b32 v{t4}, {OOB}\nv_cndmask_b32 v{vDK}, v{t4}, v{t3}, vcc")
    for m in range(1, 4):
        a(f"v_add_u32 v{vDK+m}, {(32*(m >> 1)+4*(m & 1))*3456-1024*m}, v{vDK}")
    prof(a, 30)
    a("s_waitcnt lgkmcnt(0)")
    prof(a, 31)
    srd(a, 8, pX, 2048 * 1152)
    srd(a, 12, pW, 576 * 3456)

    def dx(P):
        o = []
        for n in range(6):
            x = Asm()
            if n % 4 == 0:
                x(f"s_add_u32 m0, s{sMX}, {XR + (P % NX) * 24576 + 1024 * n}")
            if n == 0 and P:
                x(f"s_add_u32 s{sPC}, s{sPC}, 1\ns_cmp_eq_u32 s{sPC}, 9\ns_cselect_b32 s{sPC}, 0, s{sPC}\ns_lshl_b32 s{sSX}, s{sPC}, 7")
            x(f"buffer_load_dwordx4 v{vXD+n}, s[8:11], s{sSX} offen offset:{1024*(n % 4)} lds", tag=f"x{P}")
            o.append(x.ins)
        return o

    def dk(P):
        o = []
        for m in range(4):
            x = Asm()
            if m == 0:
                x(f"s_add_u32 m0, s{sMW}, {WR + (P % NW) * 16384}")
                if P:
                    x(f"s_mul_i32 s{sSK}, s{sPC}, {64*3456}")
            x(f"buffer_load_dwordx4 v{vDK+m}, s[12:15], s{sSK} offen offset:{1024*m} lds", tag=f"k{P}")
            o.append(x.ins)
        return o

    def dquad(srdreg, vaddr, pre, sbase, so, ldsbase, k, tag):
        x = Asm()
        if k == 16:
            x(f"s_lshr_b32 s{sSO}, s{sMW}, 1\ns_add_u32 m0, s{sSO}, {ldsbase + 65536}")
        elif k % 4 == 0:
            x(f"s_add_u32 m0, s{sMW}, {ldsbase + 4096 * k}")
        x(pre)
        so -= 1024 * (k % 4)
        if sbase is None:
            x(f"s_mov_b32 s{sSO}, {so}")
        elif so:
            x(f"s_add_u32 s{sSO}, s{sbase}, {so & 0xffffffff}")
        x(f"buffer_load_dwordx4 v{vaddr}, s[{srdreg}:{srdreg+3}], s{sSO if so or sbase is None else sbase} offen offset:{1024*(k % 4)} lds", tag=tag)
        return x.ins

    def dq(k):
        pre = ""
        if k % 2 == 0:
            if k:
                pre = f"s_add_u32 s{sPQ}, s{sPQ}, 1\ns_cmp_eq_u32 s{sPQ}, 9\ns_cselect_b32 s{sPQ}, 0, s{sPQ}\n"
            pre += f"s_mul_i32 s{sQK}, s{sPQ}, {64*3456}\ns_add_u32 s{sQK}, s{sQK}, 2048"
        return dquad(92, vDQ, pre, sQK, 32 * 3456 * (k & 1), WQ, k, f"q{k}")
    qoff = lambda k, rd: 16384 * (k >> 2) + 8192 * rd + 1024 * (k & 3) if k < 16 else 4096 * rd + 1024 * (k & 1)

    for x in dx(0):
        a.ext(x)
    prof(a, 32)
    prof(a, 33)
    for x in dk(0):
        a.ext(x)
    prof(a, 34)
    main, a = a, Asm()
    a(f"v_and_b32 v{vL}, 63, v0\nv_and_b32 v{vI}, 15, v0")
    a(f"v_lshrrev_b32 v{t0}, 1, v{vI}\nv_xor_b32 v{t0}, v{t0}, v{vG}\nv_lshl_add_u32 v{t1}, v{vI}, 7, s{sMX}")
    a(f"v_lshl_add_u32 v{vXR}, v{t0}, 4, v{t1}\nv_xor_b32 v{vXR+1}, 64, v{vXR}")
    a(f"v_lshrrev_b32 v{t0}, 2, v{vL}\nv_and_b32 v{t1}, 3, v{vL}")
    u0, u1, u2, u3, u4, u5, u6 = range(vPH, vPH + 7)
    a(f"v_and_b32 v{u0}, 3, v{t0}\nv_and_b32 v{u1}, 1, v{vG}\nv_lshlrev_b32 v{u1}, 1, v{u1}\nv_bfe_u32 v{u5}, v{t0}, 1, 1")

    def col_to_slot(cc):
        a(f"v_lshl_add_u32 v{u2}, v{cc}, 3, s{sT}\nv_and_b32 v{u4}, 8, v{u2}\nv_lshrrev_b32 v{u3}, 4, v{u2}")
        a(f"v_cmp_le_u32 vcc, s{sB}, v{u3}\nv_subrev_u32 v{u2}, s{sB}, v{u3}\nv_cndmask_b32 v{u3}, v{u3}, v{u2}, vcc\nv_cndmask_b32 v{u2}, 0, 1, vcc")
        a(f"v_xor_b32 v{u3}, v{u3}, v{u1}\nv_lshl_add_u32 v{u3}, v{u3}, 4, v{u4}")
    for T in range(5):
        if T < 2:
            a(f"v_add_u32 v{t3}, {4*T}, v{t1}\nv_mov_b32 v{t4}, 0")
        elif T == 2:
            a(f"v_cmp_eq_u32 vcc, 0, v{t1}\nv_add_u32 v{t3}, -1, v{t1}\nv_cndmask_b32 v{t3}, v{t3}, 8, vcc\nv_cndmask_b32 v{t4}, 2, 0, vcc")
        else:
            a(f"v_add_u32 v{t3}, {4*T-9}, v{t1}\nv_min_u32 v{t3}, 8, v{t3}\nv_mov_b32 v{t4}, 2")
        col_to_slot(t3)
        a(f"v_or_b32 v{u2}, v{u2}, v{t4}\nv_xor_b32 v{u2}, v{u2}, v{u0}\nv_lshl_add_u32 v{u3}, v{u2}, 6, v{u3}")
        a(f"v_lshl_add_u32 v{u3}, v{u0}, 8, v{u3}\nv_lshl_add_u32 v{u3}, v{vG}, 12, v{u3}\nv_add_u32 v{vRK+T}, {WR}, v{u3}")
    a(f"v_cmp_gt_u32 {S(sMK4,2)}, 4, v{vI}\nv_and_b32 v{t5}, 14, v{vI}\nv_cmp_eq_u32 {S(sMK89,2)}, 8, v{t5}\nv_cmp_eq_u32 {S(sMG0,2)}, 0, v{vG}")
    a(f"s_mov_b32 s{sLOG}, 0x3fb8aa3b\ns_mov_b32 s{sLOG+1}, 0x3fb8aa3b\ns_mov_b32 s{sEPS}, 0x358637bd\ns_mov_b32 s{sEPS+1}, 0x358637bd")
    for i in range(4):
        a(f"v_mov_b32 v{vEPS+i}, s{sEPS}\nv_cndmask_b32 v{vEPS+4+i}, 0, v{vEPS+i}, {S(sMK4,2)}")
    a(f"s_cmp_lt_u32 s{sRB}, 10\ns_cselect_b32 s{sT+4}, 0x3f803f80, 0\nv_mov_b32 v{vONE}, 0x3f803f80\nv_mov_b32 v{vONE+1}, s{sT+4}")
    n_crit = len(a.ins)
    a(f"v_and_b32 v{u6}, 7, v{t0}\nv_lshlrev_b32 v{u6}, 7, v{u6}\nv_lshrrev_b32 v{u2}, 1, v{vG}\nv_lshl_add_u32 v{u6}, v{u2}, 12, v{u6}")
    a(f"v_lshlrev_b32 v{u2}, 11, v{u2}\nv_sub_u32 v{vQD}, 0x10000, v{u2}")
    a(f"s_cmp_eq_u32 s{sB}, 1\ns_cselect_b32 s{sT+4}, 0, 1")
    for dl in range(3):
        a(f"v_add_u32 v{t3}, {4*dl}, v{t1}")
        col_to_slot(t3)
        if dl == 2:
            a(f"v_cmp_eq_u32 vcc, 0, v{t1}\nv_mov_b32 v{t4}, s{sT+4}\nv_xor_b32 v{t5}, 3, v{u1}\nv_lshlrev_b32 v{t5}, 4, v{t5}")
            a(f"v_cndmask_b32 v{u2}, v{t4}, v{u2}, vcc\nv_cndmask_b32 v{u3}, v{t5}, v{u3}, vcc")
        a(f"v_xor_b32 v{u2}, v{u2}, v{u5}\nv_lshl_add_u32 v{u3}, v{u2}, 6, v{u3}\nv_add_u32 v{vRQ+dl}, v{u6}, v{u3}")
    a(f"v_and_b32 v{t2}, 6, v{t0}\nv_lshrrev_b32 v{t3}, 1, v{t1}\nv_and_b32 v{t4}, 1, v{t1}")
    a(f"v_lshlrev_b32 v{t4}, 3, v{t4}\nv_add_u32 v{t4}, v{u6}, v{t4}\nv_lshl_add_u32 v{t4}, v{t3}, 4, v{t4}")
    for T in range(4):
        a(f"v_xor_b32 v{t3}, {2*T}, v{t2}\nv_lshl_add_u32 v{vRO+T}, v{t3}, 4, v{t4}\nv_add_u32 v{vRO+T}, {WO}, v{vRO+T}")
    a(f"v_lshrrev_b32 v{t0}, 3, v0\nv_bfe_u32 v{t1}, v0, 2, 1\nv_bfe_u32 v{t2}, v0, 4, 1\nv_xor_b32 v{t1}, v{t1}, v{t2}")
    a(f"v_and_b32 v{t2}, 3, v0\nv_bfe_u32 v{t3}, v0, 5, 1\nv_lshlrev_b32 v{t3}, 1, v{t3}\nv_xor_b32 v{t2}, v{t2}, v{t3}")
    slot_to_col(t4, t1, t2, t5)
    a(f"v_and_b32 v{t1}, 3, v{t0}\nv_and_b32 v{t2}, 12, v{t0}\nv_lshl_or_b32 v{t1}, v{t2}, 1, v{t1}\nv_lshrrev_b32 v{t2}, 4, v{t0}\nv_lshl_or_b32 v{t1}, v{t2}, 2, v{t1}")
    a(f"v_lshl_add_u32 v{t4}, v{t4}, 4, s{sT+1}\nv_mad_u32_u24 v{t4}, v{t1}, s{sT+3}, v{t4}\nv_mov_b32 v{t1}, {OOB}\nv_cndmask_b32 v{vDQ}, v{t1}, v{t4}, vcc")
    a(f"s_and_b32 s{sT+4}, s{sX}, 3\ns_cmp_eq_u32 s{sT+4}, 2\ns_cselect_b32 s{sT+4}, 20, 18\ns_cmp_lt_u32 s{sJ}, s{sT+4}")
    a(f"s_cselect_b32 s{sG2}, 1, 0\ns_cselect_b32 s18, {576*1152}, 0")
    a(f"s_cmp_ge_u32 s{sJ}, 18\ns_cselect_b32 s{sT+4}, 16, 0\ns_mul_i32 s{sT+5}, s{sX}, 18\ns_add_u32 s{sT+5}, s{sT+5}, s{sJ}\ns_add_u32 s{sT+5}, s{sT+5}, s{sT+4}")
    a(f"s_mul_i32 s{sRB2}, s{sT+5}, 7282\ns_lshr_b32 s{sRB2}, s{sRB2}, 16\ns_mul_i32 s{sT+4}, s{sRB2}, 9\ns_sub_u32 s{sCB}, s{sT+5}, s{sT+4}")
    a(f"s_mov_b32 s16, s{pWO}\ns_mov_b32 s17, s{pWO+1}\ns_mov_b32 s19, 0x20000")
    a(f"s_sub_u32 s92, s{pW}, 2048\ns_subb_u32 s93, s{pW+1}, 0\ns_mov_b32 s94, {576*3456+2048}\ns_mov_b32 s95, 0x20000")
    srd(a, 20, pWS, SENT_SIZE)
    srd(a, 24, pDBG, 256)
    srd(a, 28, pOUT, 2048 * 2304)
    a(f"v_lshrrev_b32 v{t0}, 3, v0\nv_and_b32 v{t1}, 7, v0\nv_and_b32 v{t2}, 6, v{t0}\nv_xor_b32 v{t1}, v{t1}, v{t2}")
    a(f"s_lshl_b32 s{sT+4}, s{sCB}, 7\nv_lshl_add_u32 v{t1}, v{t1}, 4, s{sT+4}")
    a(f"v_mul_u32_u24 v{t2}, 1152, v{t0}\nv_add_u32 v{vDO}, v{t1}, v{t2}")
    a(f"v_bfe_u32 v{t2}, v{t0}, 2, 2\nv_lshrrev_b32 v{t3}, 4, v{t0}\nv_lshl_add_u32 v{t2}, v{t2}, 1, v{t3}\nv_mul_u32_u24 v{t2}, 36, v{t2}")
    a(f"v_and_b32 v{t3}, 3, v{t0}\nv_add3_u32 v{t2}, v{t2}, v{t3}, 32\nv_mul_u32_u24 v{t2}, 1152, v{t2}\nv_add_u32 v{vDO+1}, v{t1}, v{t2}")
    a(f"s_lshr_b32 s{sT+4}, s{sW}, 1\ns_mul_i32 s{sT+4}, s{sT+4}, 5120\ns_and_b32 s{sT+5}, s{sW}, 1\ns_lshl_b32 s{sT+5}, s{sT+5}, 3\ns_add_u32 s{sT+4}, s{sT+4}, s{sT+5}\ns_add_u32 s{sT+4}, s{sT+4}, {EX}")
    a(f"v_lshl_add_u32 v{vEW}, v{vL}, 4, s{sT+4}")
    a(f"s_lshl_b32 s{sT+5}, s{sW}, 2")
    for q in range(4):
        pk = sum(PAIRS[w][q // 2][q % 2] << (4 * w) for w in range(4))
        a(f"s_lshr_b32 s{sT+4}, {pk}, s{sT+5}\ns_and_b32 s{sT+4}, s{sT+4}, 15\ns_lshl_b32 s{sT+4}, s{sT+4}, 10\ns_add_u32 s{sT+4}, s{sT+4}, {EX}\nv_lshl_add_u32 v{vER+q}, v{vL}, 4, s{sT+4}")
    a(f"s_mul_i32 s{sT+4}, s{sP}, {11*S1_SLOT}\nv_lshl_add_u32 v{t0}, v0, 4, s{sT+4}\nv_mov_b32 v{t1}, {OOB}")
    a(f"v_cmp_gt_u32 vcc, 190, v0\nv_cndmask_b32 v{vGA}, v{t1}, v{t0}, vcc")
    a(f"v_mul_u32_u24 v{t0}, 96, v{vI}\nv_lshl_add_u32 v{t0}, v{vG}, 3, v{t0}\nv_add_u32 v{vFR}, {FM}, v{t0}")
    a(f"v_and_b32 v{t0}, 1, v{vI}\nv_mul_u32_u24 v{t0}, 96, v{t0}\nv_lshl_add_u32 v{t0}, v{vG}, 3, v{t0}\nv_add_u32 v{vFD}, {FM+36*96}, v{t0}")
    a(f"s_mul_i32 s{sT+4}, s{sRB}, 12\ns_add_u32 s{sT+4}, s{sT+4}, s{sW}\ns_lshl_b32 s{sT+4}, s{sT+4}, 4")
    a(f"s_lshr_b32 s34, s{sP}, 3\ns_xor_b32 s34, s34, s{sP}\ns_and_b32 s34, s34, 1\ns_lshl_b32 s34, s34, 3\ns_lshr_b32 s35, s{sP}, 1\ns_add_u32 s34, s34, s35")
    a(f"s_add_u32 s34, s34, s{sT+4}\ns_add_u32 s{sT+4}, s{sT+4}, s{sP}")
    a(f"s_lshl_b32 s{sT+5}, s34, 10\ns_add_u32 s{sT+5}, s{sT+5}, {S2_OFF}\nv_lshl_add_u32 v{vS2}, v{vL}, 4, s{sT+5}")
    a(f"s_lshl_b32 s{sT+5}, s{sT+4}, 7\ns_add_u32 s{sT+5}, s{sT+5}, {S2T_OFF}\nv_lshl_add_u32 v{t0}, v{vI}, 3, s{sT+5}")
    a(f"v_cndmask_b32 v{vS2T}, v{t1}, v{t0}, {S(sMG0,2)}")
    a(f"s_lshl_b32 s{sT+4}, s{sRB2}, 2\ns_add_u32 s{sT+4}, s{sT+4}, s{sW}")
    a(f"s_lshl_b32 s{sT+5}, s{sT+4}, 15\ns_add_u32 s{sT+5}, s{sT+5}, {S2_OFF}\nv_lshl_add_u32 v{vOL}, v{vL}, 4, s{sT+5}")
    a(f"s_lshl_b32 s{sT+5}, s{sT+4}, 12\ns_add_u32 s{sT+5}, s{sT+5}, {S2T_OFF}\nv_lshl_add_u32 v{t0}, v{vI}, 3, s{sT+5}\nv_lshl_add_u32 v{vOLT}, v{vG}, 8, v{t0}")
    a(f"s_lshl_b32 s{sT+4}, s{sT+4}, 5\nv_add_u32 v{t0}, s{sT+4}, v{vI}\nv_mul_u32_u24 v{t0}, 2304, v{t0}")
    a(f"v_and_b32 v{t1}, 1, v{vG}\nv_lshl_add_u32 v{t0}, v{t1}, 5, v{t0}\nv_lshrrev_b32 v{t1}, 1, v{vG}\nv_lshl_add_u32 v{t0}, v{t1}, 4, v{t0}")
    a(f"s_lshl_b32 s{sT+4}, s{sCB}, 7\ns_add_u32 s{sT+4}, s{sT+4}, 1152\nv_add_u32 v{vOUT}, s{sT+4}, v{t0}")
    a(f"v_mov_b32 v{vDBA}, 0")
    for q in range(4):
        b0, b1 = [0, 9, 1, 8][q], [0, 9, 1, 8][q ^ 1]
        a(f"s_bitcmp1_b32 s{sCB}, 0\ns_cselect_b32 s{sT+4}, {b1}, {b0}\ns_mul_i32 s{sWB+q}, s{sT+4}, {36*1152}")
    a(f"s_add_u32 s6, s4, L_TABB-L_PC\ns_addc_u32 s7, s5, 0\ns_mov_b32 s{sRETRY}, 0")
    a(f"v_mov_b32 v{t2}, 0\nv_mov_b32 v{t3}, 0\nv_mov_b32 v{t4}, 0\nv_mov_b32 v{t5}, 0\nv_lshlrev_b32 v{t0}, 4, v0\nv_add_u32 v{t1}, {FM}, v{t0}")
    a(f"ds_write_b128 v{t1}, {V(t2,4)}\nds_write_b128 v{t1}, {V(t2,4)} offset:4096")
    deferred, a = a.ins, main
    dd, deferred = take(deferred, max(n_crit, N_PRE)); a.ext(dd)
    print("address instructions:", n_crit, len(dd), len(deferred))
    prof(a, 0)
    for x in dx(1) + dk(1):
        a.ext(x)

    def rd_kv(s):
        o = Asm()
        fb = vFB + 20 * (s & 1)
        base = ((s >> 1) % NW) * 16384 + (s & 1) * 2048
        for T in range(5):
            for rd in range(2):
                o(f"ds_read_b64_tr_b16 {V(fb+4*T+2*rd,2)}, v{vRK+T} offset:{base+1024*rd}", tag=f"wr{s}")
        return o.ins

    def rd_x(P):
        o = Asm()
        for h in range(2):
            for tau in range(3):
                o(f"ds_read_b128 {A(xreg(2*P+h,tau),4)}, v{vXR+h} offset:{XR+(P % NX)*24576+tau*2048}", tag=f"xr{P}")
        return o.ins

    def mm_kv(s):
        o = Asm()
        o.wait(f"wr{s}")
        fb = vFB + 20 * (s & 1)
        for T in range(5):
            for tau in range(3):
                d = V(vACC + 4 * (5 * tau + T), 4)
                c = d if s else (V(vEPS, 4) if T < 2 else V(vEPS + 4, 4) if T == 2 else "0")
                o(f"v_mfma_f32_16x16x32_bf16 {d}, {A(xreg(s,tau),4)}, {V(fb+4*T,4)}, {c}")
        return o

    def rd_q(s):
        o = Asm()
        if s == 16:
            for dl in range(3):
                o(f"v_add_u32 v{vRQ+dl}, v{vQD}, v{vRQ+dl}")
        for dl in range(3):
            for rd in range(2):
                o(f"ds_read_b64_tr_b16 {V(vFQ+12*(s % 3)+4*dl+2*rd,2)}, v{vRQ+dl} offset:{qoff(s, rd)}", tag=f"qr{s}")
        return o.ins if s < 18 else []

    def mm_q(s):
        o = Asm()
        o.wait(f"qr{s}")
        for dl in range(3):
            for tau in range(3):
                d = V(vAQ + 4 * (3 * tau + dl), 4)
                o(f"v_mfma_f32_16x16x32_bf16 {d}, {V(vFQ+12*(s % 3)+4*dl,4)}, {A(xreg(s,tau),4)}, {d if s else V(vEPS,4)}")
        return o.ins
    flat = lambda L: [i for x in L for i in x]
    a.wait("x0", "k0"); prof(a, 36); a("s_barrier")
    rx = rd_x(0)
    a.ext(rx[:3] + rd_kv(0) + rx[3:])
    for P in range(9):
        w = Asm(); w.wait(f"xr{P}")
        if P == 0:
            ld = flat(dx(2) + dk(2))
        elif P < 6:
            ld = w.ins + flat(dx(P + 3))
        elif P == 7:
            ld = Asm()(f"v_lshlrev_b32 v{t0}, 4, v0\nglobal_load_dwordx4 {V(vTAB,4)}, v{t0}, s[6:7]").ins
        else:
            ld = []
        dd = []
        if 1 <= P < 6:
            dd, deferred = take(deferred, -(-len(deferred) // (12 - 2 * P)))
        a.ext(interleave(interleave(interleave(mm_kv(2 * P), dd, per=len(dd) / 14.0), ld, per=len(ld) / 14.0), rd_kv(2 * P + 1), per=1))
        fill, ld = [], []
        if P < 8:
            a.wait(f"x{P+1}", f"k{P+1}")
        if P >= 6:
            a.wait(f"xr{P}")
        if P == 8:
            a.wait("q3")
        a("s_barrier")
        if P < 8:
            rx = rd_x(P + 1)
            fill = rx[:3] + rd_kv(2 * P + 2) + rx[3:]
        else:
            fill = rd_q(0)
        if P == 0:
            ld = w.ins + flat(dx(3))
        if P < 6:
            ld += flat(dk(P + 3))
        else:
            ld += flat([dq(k) for k in range([0, 4, 12][P - 6], [4, 12, 18][P - 6])])
        if P == 8:
            ld += Asm()(f"buffer_load_dword v{vDBG}, v{vDBA}, s[24:27], 0 offen sc1").ins
        dd = []
        if 1 <= P < 6:
            dd, deferred = take(deferred, -(-len(deferred) // (11 - 2 * P)))
        a.ext(interleave(interleave(interleave(mm_kv(2 * P + 1), dd, per=len(dd) / 14.0), ld, per=len(ld) / 14.0), fill, per=1.2))
        if P in (0, 2, 4, 6):
            prof(a, 20 + P // 2)
    assert not deferred
    prof(a, 2)
    qstep = lambda s: spread(mm_q(s), rd_q(s + 1))
    fg = a
    bg = qstep(0) + qstep(1) + qstep(2) + mm_q(3)

    def slot(cnt):
        while bg and cnt:
            i = bg.pop(0); fg.ins.append(i)
            cnt -= i.kind == "mfma"
        while bg and bg[0].kind == "ds":
            fg.ins.append(bg.pop(0))
    n = 0
    for tau in range(3):
        for T in (3, 4, 0, 1, 2):
            src = vACC + 4 * (5 * tau + T)
            pk = vPK + 2 * (n & 1)
            if T >= 3:
                if tau:
                    slot(1)
                fg(f"v_cvt_pk_bf16_f32 v{pk}, v{src}, v{src+1}\nv_cvt_pk_bf16_f32 v{pk+1}, v{src+2}, v{src+3}")
                if T == 4:
                    one = vONE + (1 if tau == 2 else 0)
                    fg(f"v_cndmask_b32 v{pk}, v{pk}, v{one}, {S(sMK89,2)}\nv_cndmask_b32 v{pk+1}, v{pk+1}, v{one}, {S(sMK89,2)}")
            else:
                phi4(fg, src, pk, vPH + 8 * (n & 1), keep=sMK4 if T == 2 else None, slot=slot)
            fg(f"ds_write_b64 v{vEW}, {V(pk,2)} offset:{10240*tau+1024*T}")
            n += 1
    a.ext(bg)
    a.wait("q17")
    a("s_waitcnt lgkmcnt(0)\ns_barrier")
    prof(a, 3)
    ef = lambda j, q: A(216 + 16 * j + 4 * q, 4) if j < 2 else V(56 + 16 * (j - 2) + 4 * q, 4) if j < 5 else V(156 + 4 * q, 4)
    a.ext(rd_q(4))
    er = Asm()
    for j in range(6):
        for q in range(4):
            er(f"ds_read_b128 {ef(j,q)}, v{vER+q} offset:{5120*j}")
    a.ext(er.ins[:8])
    a.ext(spread(mm_q(4), er.ins[8:]))
    a(f"s_mul_i32 s{sT}, s{sP}, 11\ns_add_u32 s{sT}, s{sT}, s{sRB}\ns_mul_i32 s{sT}, s{sT}, {S1_SLOT}")
    km = Asm()
    for j in range(6):
        for q in range(2):
            d = V(vKD + 4 * q, 4)
            km(f"v_mfma_f32_16x16x32_bf16 {d}, {ef(j,2*q)}, {ef(j,2*q+1)}, {'0' if j == 0 else d}")
    a.ext(spread(km, rd_q(5) + rd_q(6)))
    a(f"v_cmp_gt_u32 vcc, 8, v{vDBG}")
    m5 = mm_q(5)
    a.ext(m5[:5])
    a(f"s_cbranch_vccnz L_B_INIT\nL_B_INIT_OK:")
    slow("L_B_INIT:")
    slow(f"buffer_load_dword v{vDBG}, v{vDBA}, s[24:27], 0 offen sc1\ns_add_u32 s{sRETRY}, s{sRETRY}, 1\ns_cmp_gt_u32 s{sRETRY}, 0x100000")
    slow(f"s_waitcnt vmcnt(0)\ns_cbranch_scc1 L_B_INIT_OK\nv_cmp_gt_u32 vcc, 8, v{vDBG}\ns_nop 1\ns_cbranch_vccnz L_B_INIT\ns_branch L_B_INIT_OK")
    st = Asm()
    for q in range(2):
        for i in range(4):
            st(f"v_min_u32 v{vKD+4*q+i}, -2, v{vKD+4*q+i}")
        st(f"buffer_store_dwordx4 {V(vKD+4*q,4)}, v{vTAB+q}, s[20:23], s{sT} offen sc1")
    a.ext(spread(st, m5[5:]))
    a("s_barrier")
    prof(a, 4)

    def gather():
        o = Asm()
        for r in range(11):
            if r:
                o(f"s_mov_b32 s{sSO}, {r*S1_SLOT}")
            o(f"buffer_load_dwordx4 {V(vGAT+4*r,4)}, v{vGA}, s[20:23], {'s%d' % sSO if r else '0'} offen sc1")
        return o.ins
    ld = []
    for k in range(18):
        ld.append(dquad(16, vDO, "", sWB + (k >> 2), 72 * 1152 * (k & 3), WO, k, f"o{k}") if k < 16 else
                  dquad(16, vDO + 1, "", None, 288 * 1152 * (k - 16), WO, k, f"o{k}"))
    ga = gather()
    for s in range(6, 18):
        ex = []
        if GS <= s < GS + 3:
            ex += ga[:7]; ga = ga[7:]
        else:
            ex += flat(ld[:2]); ld = ld[2:]
        if s == 17:
            ex += Asm()(f"buffer_load_dword v{vDBG}, v{vDBA}, s[24:27], 0 offen offset:64 sc1").ins
        a.ext(spread(spread(mm_q(s), ex), rd_q(s + 1)))
    assert not ld and not ga
    prof(a, 5)
    for tau in range(3):
        for dl in range(3):
            phi4(a, vAQ + 4 * (3 * tau + dl), vPQ + 6 * tau + 2 * dl, 128 + 4 * (dl & 1))
    prof(a, 6)

    def check(o, regs, label):
        r = list(regs)
        o(f"v_max3_u32 v{vCK}, v{r[0]}, v{r[1]}, v{r[2]}")
        r = r[3:]
        while len(r) >= 2:
            o(f"v_max3_u32 v{vCK}, v{r[0]}, v{r[1]}, v{vCK}"); r = r[2:]
        if r:
            o(f"v_max_u32 v{vCK}, v{r[0]}, v{vCK}")
        o(f"v_cmp_eq_u32 vcc, -1, v{vCK}\ns_cbranch_vccnz {label}")

    def slow_path(name, loads, regs):
        slow(f"{name}:")
        slow.ext(loads)
        slow(f"s_add_u32 s{sRETRY}, s{sRETRY}, 1\ns_cmp_gt_u32 s{sRETRY}, 0x100000\ns_waitcnt vmcnt(0)\ns_cbranch_scc1 {name}_OK")
        check(slow, regs, name)
        slow(f"s_branch {name}_OK")
    check(a, range(vGAT, vGAT + 44), "L_B_GA")
    a("L_B_GA_OK:")
    slow_path("L_B_GA", gather(), range(vGAT, vGAT + 44))
    step = 1
    while step < 11:
        for r in range(0, 11 - step, 2 * step):
            for h in range(2):
                a(f"v_pk_add_f32 {V(vGAT+4*r+2*h,2)}, {V(vGAT+4*r+2*h,2)}, {V(vGAT+4*(r+step)+2*h,2)}")
        step *= 2
    a(f"v_bfe_i32 v{t0}, v{vTAB+3}, 0, 1\nv_bfe_i32 v{t1}, v{vTAB+3}, 1, 1")
    a(f"v_cvt_pk_bf16_f32 v{t2}, v{vGAT}, v{vGAT+1}\nv_cvt_pk_bf16_f32 v{t3}, v{vGAT+2}, v{vGAT+3}")
    a(f"v_and_b32 v{t2}, v{t2}, v{t0}\nv_and_b32 v{t3}, v{t3}, v{t1}\nds_write_b64 v{vTAB+2}, {V(t2,2)}")
    a.wait("o17")
    a("s_waitcnt lgkmcnt(0)\ns_barrier")
    prof(a, 7)
    for h in range(2):
        a(f"ds_read_b64 {V(vFA+12+2*h,2)}, v{vFD} offset:{32*h}")
    a(f"ds_read_b64 {V(vFA+20,2)}, v{vFD} offset:64")
    for ep in range(3):
        for h in range(2):
            a(f"ds_read_b64 {V(vFA+4*ep+2*h,2)}, v{vFR} offset:{1536*ep+32*h}")
        if ep:
            a(f"ds_read_b64 {V(vFA+14+2*ep,2)}, v{vFR} offset:{1536*ep+64}")
    om_ = []
    for tau in range(3):
        o = Asm()
        b1, b2 = V(vPQ + 6 * tau, 4), V(vPQ + 6 * tau + 4, 2)
        for ep in (3, 0, 1, 2):
            d = V(vON + 16 * tau + 4 * ep, 4)
            o(f"v_mfma_f32_16x16x32_bf16 {d}, {V(vFA+4*ep,4)}, {b1}, {V(vEPS,4) if ep == 3 else '0'}")
        for ep in (3, 1, 2):
            d = V(vON + 16 * tau + 4 * ep, 4)
            o(f"v_mfma_f32_16x16x16_bf16 {d}, {V(vFA+14+2*ep,2)}, {b2}, {d}")
        om_.append(o.ins)
    a.ext(om_[0] + om_[1][:4])
    a(f"v_cmp_gt_u32 vcc, 8, v{vDBG}\ns_cbranch_vccnz L_B_INI2\nL_B_INI2_OK:")
    slow("L_B_INI2:")
    slow(f"buffer_load_dword v{vDBG}, v{vDBA}, s[24:27], 0 offen offset:64 sc1\ns_add_u32 s{sRETRY}, s{sRETRY}, 1\ns_cmp_gt_u32 s{sRETRY}, 0x100000")
    slow(f"s_waitcnt vmcnt(0)\ns_cbranch_scc1 L_B_INI2_OK\nv_cmp_gt_u32 vcc, 8, v{vDBG}\ns_nop 1\ns_cbranch_vccnz L_B_INI2\ns_branch L_B_INI2_OK")
    for tau in range(3):
        n0 = vON + 16 * tau; of = vOF + 6 * tau; r = vR
        o = Asm()
        o(f"v_rcp_f32 v{r}, v{n0+12}\nv_rcp_f32 v{r+1}, v{n0+13}")
        if tau == 2:
            o(f"s_cmp_lt_u32 s{sRB}, 10\ns_cselect_b32 s{sT}, {2*65536}, {OOB}\ns_cselect_b32 s{sT+1}, {2*8192}, {OOB}") if False else None
            o(f"s_cmp_lt_u32 s{sRB}, 10\ns_cselect_b32 s{sT}, 0, {OOB}\ns_add_u32 s{sT+1}, s{sT}, {2*8192}\ns_add_u32 s{sT}, s{sT}, {2*65536}")
        else:
            o(f"s_mov_b32 s{sT}, {65536*tau}\ns_mov_b32 s{sT+1}, {8192*tau}")
        o(f"v_cndmask_b32 v{r+2}, v{r+1}, v{r}, {S(sMG0,2)}")
        if tau == 0:
            for q in range(12):
                o(f"v_mul_f32 v{n0+q}, v{r + (0 if q < 4 else 2 if q < 6 else 1)}, v{n0+q}")
        else:
            o(f"v_pk_mul_f32 {V(n0,2)}, {V(n0,2)}, {V(r,2)} op_sel_hi:[1,0]\nv_pk_mul_f32 {V(n0+2,2)}, {V(n0+2,2)}, {V(r,2)} op_sel_hi:[1,0]")
            o(f"v_pk_mul_f32 {V(n0+4,2)}, {V(n0+4,2)}, {V(r+2,2)} op_sel_hi:[1,0]")
            for q in (6, 8, 10):
                o(f"v_pk_mul_f32 {V(n0+q,2)}, {V(n0+q,2)}, {V(r,2)} op_sel:[0,1] op_sel_hi:[1,1]")
        for q in range(6):
            o(f"v_cvt_pk_bf16_f32 v{of+q}, v{n0+2*q}, v{n0+2*q+1}")
        for q in range(4):
            o(f"v_min_u32 v{of+q}, -2, v{of+q}")
        o(f"buffer_store_dwordx4 {V(of,4)}, v{vS2}, s[20:23], s{sT} offen sc1")
        o(f"v_min_u32 v{of+4}, -2, v{of+4}\nv_min_u32 v{of+5}, -2, v{of+5}")
        o(f"buffer_store_dwordx2 {V(of+4,2)}, v{vS2T}, s[20:23], s{sT+1} offen sc1")
        a.ext(spread(o, om_[1][4:] + om_[2]) if tau == 0 else o.ins)
    if prof.on:
        a(f"s_cmp_eq_u32 s{sG2}, 0\ns_cbranch_scc1 L_B_EXIT")
        pv = prof.prev
        slow("L_B_EXIT:"); prof(slow, 8, final=True); slow("s_endpgm")
        prof.prev = pv
    else:
        a(f"s_cmp_eq_u32 s{sG2}, 0\ns_cbranch_scc1 L_END")
    prof(a, 8)

    def wreg(k, T, n=4, o=0):
        return A(16 * k + 4 * T + o, n) if k < 16 else V(vWV + 16 * (k - 16) + 4 * T + o, n)
    om = lambda k, rt: vOM + 4 * (2 * k + rt)

    def oloads(ks):
        o = Asm()
        cur = None
        for k in ks:
            for rt in range(2):
                if k < 16:
                    o(f"buffer_load_dwordx4 {V(om(k,rt),4)}, v{vOL}, s[20:23], s{(sWB if rt else sOB) + (k >> 2)} offen offset:{1024*(k & 3)} sc1")
                else:
                    for hf in range(2):
                        o(f"buffer_load_dwordx2 {V(om(k,rt)+2*hf,2)}, v{vOLT}, s[20:23], 0 offen offset:{2048*rt+1024*(k-16)+128*hf} sc1")
        return o.ins
    rd = Asm()
    for k in range(18):
        if k == 16:
            for T in range(4):
                rd(f"v_add_u32 v{vRO+T}, v{vQD}, v{vRO+T}")
        for T in range(4):
            for h in range(2):
                rd(f"ds_read_b64_tr_b16 {wreg(k,T,2,2*h)}, v{vRO+T} offset:{qoff(k, h)}")
    for q in range(4):
        a(f"s_and_b32 s{sT+4}, s{sCB}, 1\ns_xor_b32 s{sT+4}, s{sT+4}, {q}\ns_lshl_b32 s{sOB+q}, s{sT+4}, 12\ns_add_u32 s{sWB+q}, s{sOB+q}, 16384")
    groups = [list(range(4 * q, 4 * q + 4)) for q in range(4)] + [[16, 17]]
    gregs = lambda ks: [om(k, rt) + i for k in ks for rt in range(2) for i in range(4)]
    z = Asm()
    for i in range(32):
        z(f"v_mov_b32 v{vA2+i}, 0")
    isds = lambda i: i.kind == "ds"
    a.ext(interleave(interleave(rd, z, per=1, start=110, pred=isds), oloads(groups[0] + groups[1]), per=OL_PER, start=OL_START, pred=isds))
    prof(a, 9)

    def mm_o(ks):
        o = Asm()
        for k in ks:
            for rt in range(2):
                for T in range(4):
                    d = V(vA2 + 4 * (4 * rt + T), 4)
                    o(f"v_mfma_f32_16x16x32_bf16 {d}, {wreg(k,T)}, {V(om(k,rt),4)}, {d}")
        return o

    def epilogue(rt):
        o = Asm()
        for u in range(2):
            p0 = vOM + 4 * (2 * rt + u)
            for h in range(2):
                n0 = vA2 + 4 * (4 * rt + 2 * u + h)
                o(f"v_cvt_pk_bf16_f32 v{p0+2*h}, v{n0}, v{n0+1}\nv_cvt_pk_bf16_f32 v{p0+2*h+1}, v{n0+2}, v{n0+3}")
            o(f"v_permlane16_swap_b32 v{p0}, v{p0+2}\nv_permlane16_swap_b32 v{p0+1}, v{p0+3}")
            o(f"buffer_store_dwordx4 {V(p0,4)}, v{vOUT}, s[28:31], {'s%d' % sT if rt else '0'} offen offset:{64*u} {OUT_FLAGS}")
        return o
    sPEND, sFORCE, sREADY = 83, 84, 85
    a(f"s_mov_b32 s{sT}, {16*2304}")
    check(a, gregs(groups[0]), "L_B_R0")
    a("L_B_R0_OK:")
    for gi, ks in enumerate(groups):
        m = mm_o(ks).ins
        if gi < 4:
            c = Asm(); check(c, gregs(groups[gi + 1]), f"L_B_R{gi+1}")
            if gi + 2 < 5:
                m = interleave(m, oloads(groups[gi + 2]), per=0.3)
            a.ext(interleave(m, c.ins[:-1], per=1, start=32 - len(c.ins)))
            a.ext(c.ins[-1:])
            a(f"L_B_R{gi+1}_OK:")
        else:
            m0 = [i for n, i in enumerate(m) if (n >> 2) & 1 == 0]; m1 = [i for n, i in enumerate(m) if (n >> 2) & 1]
            a.ext(m0 + m1[:3])
            a.ext(spread(epilogue(0), m1[3:]))
            a.ext(epilogue(1))
        prof(a, 10 + gi)
    pv = prof.prev
    prof(a, 16, final=True)
    a("s_endpgm")
    dyn = Asm()
    for gi, ks in enumerate(groups):
        dyn(f"L_B_R{gi}:")
        dyn.ext(oloads(ks + (groups[gi + 1] if gi < 4 and 'norefresh' not in EXP else [])))
        dyn(f"s_add_u32 s{sRETRY}, s{sRETRY}, 1\ns_cmp_gt_u32 s{sRETRY}, 0x100000\ns_waitcnt vmcnt({(8 if gi < 4 and 'norefresh' not in EXP else 0)})\ns_cbranch_scc1 L_B_R{gi}_OK")
        check(dyn, gregs(ks), f"L_B_R{gi}")
        dyn(f"s_waitcnt vmcnt(0)\ns_branch L_B_R{gi}_OK")
    return finish(a) + finish(slow) + finish(dyn)
```

```python
from asmlib import *
from gen_common import *
import numpy as np

SU = 4640
SY = 4160
KGW = 32 * 528
KG = 0
UT = 4 * KGW
U0 = UT + 8 * SU
YT = U0
KA0 = U0 + 8 * SY
KASZ = 3584
A_LDS_END = KA0 + 4 * KASZ
KE, KO, K2, K3 = 0, 1120, 2240, 2752
XC = list(range(9)) + [256, 258, 260, 262, 264, 516, 520, 772, 776, 1032, 1288, 1544, 1800]


def table_a():
    T = np.zeros((6, 64, 4), np.uint32)
    one = 0x3F80
    for l in range(64):
        r, g = l % 16, l // 16
        for bi, (ctr, w) in enumerate([(8, 2), (12, 1), (8, 4), (8, 3)]):
            for dw in range(4):
                v = 0
                for hf in range(2):
                    k = 8 * g + 2 * dw + hf
                    if abs(k - (r + ctr)) <= w:
                        v |= one << (16 * hf)
                T[bi, l, dw] = v
        for dw in range(4):
            v = 0
            for hf in range(2):
                if 8 * g + 2 * dw + hf - r in (12, 13):
                    v |= 0xFFFF << (16 * hf)
            T[4, l, dw] = v
        io, hh = l % 32, l // 32
        rho, h = 4 * (io // 8) + io % 4, (io // 4) % 2
        if rho < 5:
            c = 4 * h + rho
        elif rho < 8:
            c = 256 + 4 * h + 2 * (rho - 5)
        elif rho < 12:
            c = [(516, 772), (520, 776), (1032, 1544), (1288, 1800)][rho - 8][h]
        else:
            c = 0
        T[5, l, 0] = XC.index(c) * 528 + 16 * hh
    return T


vLANE = 1
vP = 2
vTAB5 = 14
vMASK = 18
vKGW, vKGB, vKGA = 22, 23, 24
vT0, vT1, vT2, vT3 = 25, 26, 27, 28
vKW, vK2W, vK3W = 29, 30, 31
vW = 32
vD = 96
vKFA, vKFB, vHK2, vHK3, vUF, vA2, vA3, vYW = 112, 113, 114, 115, 116, 117, 118, 119
vACC = 120
vBXD = 152
vBX = 168
vKFX = 184
vEP = 188
vZ = 192
vDMA, vTR0, vTR1, vTW, vOR, vOS = 196, 197, 198, 199, 200, 201
vTB = 204
vKA = 228
aBAND = 0
aY = 16
aX = 80
aKFS = (184, 16)
aHK2 = 84
aHK3 = 108
aUF = 140
aAP = 168
sW, sAG, sIDX, sJJ, sWI = 68, 69, 70, 71, 77
sLDT, sDSK = 72, 73
sT0, sT1, sT2 = 74, 75, 76
sKG, sU0 = 78, 79
sEX = 80


import os
Y_FLAGS = os.environ.get("YF", "")
EXP = os.environ.get("EXP", "").split(",")
sUB, sTB = 84, 85
_PLANS = {
    "0": ([(0, 2), (0, 36), (0, 46), (0, 55), (1, 8), (1, 19), (1, 30), (1, 41)], [(0, 50), (0, 55), (1, 3), (1, 13), (1, 24), (1, 35), (1, 46), (1, 55)]),
    "1": ([(0, 30), (0, 55), (1, 5), (1, 13), (1, 21), (1, 29), (1, 37), (1, 45)], [(1, 2), (1, 9), (1, 17), (1, 25), (1, 33), (1, 41), (1, 49), (1, 55)]),
    "2": ([(0, 2), (0, 24), (0, 33), (0, 42), (0, 51), (1, 2), (1, 11), (1, 20)], [(0, 37), (0, 46), (0, 55), (1, 6), (1, 15), (1, 24), (1, 33), (1, 42)]),
    "3": ([(0, 44), (1, 2), (1, 9), (1, 16), (1, 23), (1, 30), (1, 37), (1, 44)], [(1, 5), (1, 12), (1, 19), (1, 26), (1, 33), (1, 40), (1, 48), (1, 55)]),
}
DMA_PLAN, TR_PLAN = _PLANS[os.environ.get("UPLAN", "0")]


def cmul(a, z, x, y, t, conj=False):
    n = "neg_hi:[1,0,0]" if conj else "neg_lo:[1,0,0]"
    return [f"v_pk_mul_f32 {V(t,2)}, {V(x,2)}, {V(y,2)} op_sel_hi:[1,0]",
            f"v_pk_fma_f32 {V(z,2)}, {V(x,2)}, {V(y,2)}, {V(t,2)} op_sel:[1,1,0] op_sel_hi:[0,1,1] {n}"]


base = [vW, vW + 30]
AB, E1, E8, G, X, T, S0, S1, U = 0, 2, 4, 6, 8, 10, 12, 14, 16
CC, BB = 18, 20
PK = vW + 60


def ksetup(ch):
    a = Asm()
    p = vP + 6 * ch
    dt = vW + 24
    if ch == 0:
        a(f"s_lshl_b32 s{sT0}, s{sLDT}, 16")
    else:
        a(f"s_and_b32 s{sT0}, s{sLDT}, 0xffff0000")
    a(f"v_mov_b32 v{dt}, s{sT0}\nv_mul_f32 v{dt}, 0x3fb8aa3b, v{dt}\nv_exp_f32 v{dt}, v{dt}")
    for n in range(2):
        b = base[n]
        un = (lambda d, s: f"v_lshlrev_b32 v{d}, 16, v{s}") if n == 0 else (lambda d, s: f"v_and_b32 v{d}, 0xffff0000, v{s}")
        a(un(b + AB, p + 0)); a(un(b + AB + 1, p + 1))
        if n == 0:
            a(f"v_cvt_pk_bf16_f32 v{dt}, v{dt}, v{dt}\nv_lshlrev_b32 v{dt}, 16, v{dt}")
        a(un(b + BB, p + 2)); a(un(b + BB + 1, p + 3))
        a(un(b + CC, p + 4)); a(un(b + CC + 1, p + 5))
    for n in range(2):
        b = base[n]
        a(f"v_mul_f32 v{b+AB}, v{dt}, v{b+AB}\nv_mul_f32 v{b+AB+1}, v{dt}, v{b+AB+1}")
        a(f"v_mul_f32 v{b+AB}, 0x3fb8aa3b, v{b+AB}\nv_mul_f32 v{b+AB+1}, 0x3e22f983, v{b+AB+1}")
    for dst, mul in ((E8, "0x41000000"), (E1, None), (G, "0x43800000")):
        for n in range(2):
            b = base[n]
            if mul is None:
                a(f"v_exp_f32 v{b+U}, v{b+AB}\nv_fract_f32 v{b+T}, v{b+AB+1}")
            else:
                a(f"v_mul_f32 v{b+U}, {mul}, v{b+AB}\nv_mul_f32 v{b+T}, {mul}, v{b+AB+1}")
                a(f"v_exp_f32 v{b+U}, v{b+U}\nv_fract_f32 v{b+T}, v{b+T}")
        for n in range(2):
            b = base[n]
            a(f"v_cos_f32 v{b+dst}, v{b+T}\nv_sin_f32 v{b+dst+1}, v{b+T}")
        if dst == E8:
            for n in range(2):
                b = base[n]
                a(f"v_mul_f32 v{b+BB}, v{dt}, v{b+BB}\nv_mul_f32 v{b+BB+1}, v{dt}, v{b+BB+1}")
                a(f"v_mul_f32 v{b+X}, v{b+CC}, v{b+BB}\nv_mul_f32 v{b+X+1}, v{b+CC}, v{b+BB+1}")
                a(f"v_fma_f32 v{b+X}, -v{b+CC+1}, v{b+BB+1}, v{b+X}\nv_fma_f32 v{b+X+1}, -v{b+CC+1}, v{b+BB}, -v{b+X+1}")
        for n in range(2):
            b = base[n]
            a(f"v_mul_f32 v{b+dst}, v{b+dst}, v{b+U}\nv_mul_f32 v{b+dst+1}, v{b+dst+1}, v{b+U}")
    return a


def kgen(a, ch, prof, hook, shadow):
    cnt = [0]

    def put(reg, row):
        pk = PK + 2 * (cnt[0] & 1); cnt[0] += 1
        a(f"v_cvt_pk_bf16_f32 v{pk}, v{base[0]+reg}, v{base[0]+reg+1}")
        a(f"v_cvt_pk_bf16_f32 v{pk+1}, v{base[1]+reg}, v{base[1]+reg+1}")
        a(f"ds_write_addtid_b32 v{pk} offset:{row*528}\nds_write_addtid_b32 v{pk+1} offset:{row*528+256}")
        hook(a, ch, cnt[0])

    def mul2(z, x, y, conj):
        m = [cmul(a, base[n] + z, base[n] + x, base[n] + y, base[n] + T, conj) for n in range(2)]
        a(m[0][0]); a(m[1][0]); a(m[0][1]); a(m[1][1])
    prof(a, 10 + 5 * ch)
    a(f"v_mov_b32 v{PK}, 0x3f80\nds_write_addtid_b32 v{PK}\nds_write_addtid_b32 v{PK} offset:256")
    cnt[0] = 1
    put(E8, 1)
    mul2(S0, E8, E8, False); put(S0, 2)
    for j in range(3, 32):
        mul2(S0, S0, E8, False); put(S0, j)
    prof(a, 11 + 5 * ch)
    for k in range(16):
        a(f"ds_read_b128 {A(aY+4*k,4)}, v{vKGB} offset:{32*k}")
        if k == 7:
            mul2(U, X, G, True)
    prof(a, 12 + 5 * ch)
    for c in range(9):
        if c:
            mul2(X, X, E1, True)
        put(X, c)
        if c % 2 == 0:
            d = S0 if c == 4 else (S1 if c == 8 else U)
            if c:
                mul2(d, X, G, True)
            put(d, XC.index(256 + c))
    for c in (516, 772):
        mul2(S0, S0, G, True); put(S0, XC.index(c))
        mul2(S1, S1, G, True); put(S1, XC.index(c + 4))
    for c in (1032, 1288, 1544, 1800):
        mul2(S1, S1, G, True); put(S1, XC.index(c))
    prof(a, 13 + 5 * ch)
    for k in range(4):
        a(f"ds_read_b128 {A(aX+4*k,4)}, v{vKGA} offset:{32*k}")
    if ch == 0:
        a(f"s_mul_i32 s{sT2}, s{sW}, {KASZ}\ns_add_u32 s{sT2}, s{sT2}, {KA0}")
    else:
        a(f"s_mul_i32 s{sT2}, s{sW}, {KGW}\ns_add_u32 s{sT2}, s{sT2}, {KG}")
    a(f"v_lshl_add_u32 v{vT0}, v{vLANE}, 4, s{sT2}")
    a(f"v_add_u32 v{vT1}, s{sT2}, v{vKW}\nv_add_u32 v{vT2}, s{sT2}, v{vK2W}\nv_add_u32 v{vT3}, s{sT2}, v{vK3W}")
    if ch == 0:
        a(f"s_lshl_b32 s{sT1}, s{sDSK}, 16")
    else:
        a(f"s_and_b32 s{sT1}, s{sDSK}, 0xffff0000")
    m = Asm()
    sh = list(shadow)
    for k in range(16):
        m(f"v_mfma_f32_32x32x16_bf16 {V(vD,16)}, {A(aX+4*k,4)}, {A(aY+4*k,4)}, {'0' if k == 0 else V(vD,16)}")
        if k < 12:
            m(f"ds_read_b128 {A(aX+4*k+16,4)}, v{vKGA} offset:{32*k+128}")
        if k in (12, 13, 14):
            m(f"ds_write_b128 v{vT0}, {V(vZ,4)} offset:{(k-12)*1024}")
        n = -(-len(sh) // (16 - k))
        dd, sh = take(sh, n); m.ext(dd)
    a.ext(m)
    prof(a, 14 + 5 * ch)
    hook(a, ch, 55)
    a(f"s_mov_b32 exec_hi, 0\nds_write_b128 v{vT0}, {V(vZ,4)} offset:3072\ns_mov_b64 exec, 1")
    a(f"v_add_f32 v{vD}, s{sT1}, v{vD}\ns_mov_b64 exec, -1")
    t = vACC
    d = vD
    a(f"v_cvt_pk_bf16_f32 v{t}, v{d+3}, v{d+2}\nv_cvt_pk_bf16_f32 v{t+1}, v{d+1}, v{d}")
    a(f"v_cvt_pk_bf16_f32 v{t+2}, v{d+4}, v{d+3}\nv_cvt_pk_bf16_f32 v{t+3}, v{d+2}, v{d+1}")
    a(f"ds_write_b64 v{vT1}, {V(t,2)} offset:{KO+512}\nds_write_b64 v{vT1}, {V(t+2,2)} offset:{KE+512}")
    a(f"v_cvt_pk_bf16_f32 v{t+4}, v{d+7}, v{d+6}\nv_cvt_pk_bf16_f32 v{t+5}, v{d+5}, v{d+5}")
    a(f"v_cvt_pk_bf16_f32 v{t+6}, v{d+7}, v{d+7}\nv_cvt_pk_bf16_f32 v{t+7}, v{d+6}, v{d+5}")
    a(f"ds_write_b64 v{vT1}, {V(t+4,2)} offset:{KO}\nds_write_b64 v{vT1}, {V(t+6,2)} offset:{KE}")
    a(f"v_cvt_pk_bf16_f32 v{t+8}, v{d+8}, v{d+9}\nv_cvt_pk_bf16_f32 v{t+9}, v{d+10}, v{d+11}")
    a(f"ds_write_b16 v{vT2}, v{t+8} offset:{K2+256}\nds_write_b16_d16_hi v{vT2}, v{t+8} offset:{K2}")
    a(f"ds_write_b16 v{vT3}, v{t+9} offset:{K3+32}\nds_write_b16 v{vT3}, v{t+9} offset:{K3+32+190}")
    a(f"ds_write_b16_d16_hi v{vT3}, v{t+9} offset:{K3}\nds_write_b16_d16_hi v{vT3}, v{t+9} offset:{K3+190}")
    a(f"v_and_b32 v{t+10}, 0xffff0000, v{t+6}\nv_mov_b32 v{t+11}, v{t+6}\nv_lshrrev_b32 v{t+12}, 16, v{t+1}")
    a(f"v_mov_b32 v{t+13}, s{sT2}")
    a(f"s_mov_b32 exec_lo, 0\ns_mov_b32 exec_hi, 0x80000000")
    a(f"ds_write_b32 v{t+13}, v{t+6} offset:{KE+60}\nds_write_b64 v{t+13}, {V(t+10,2)} offset:{KO+56}")
    a(f"s_mov_b64 exec, 1\nds_write_b32 v{t+13}, v{t+12} offset:{KE+1088}\ns_mov_b64 exec, -1")
    a(f"v_readlane_b32 s{82+ch}, v{t+8}, 63")
    hook(a, ch, 57)


def conv_addr():
    a = Asm()
    for ch in range(2):
        if ch == 0:
            a(f"s_mul_i32 s34, s{sW}, {KASZ}\ns_add_u32 s34, s34, {KA0}")
        else:
            a(f"s_mul_i32 s34, s{sW}, {KGW}")
        kfa, kfb, hk2, hk3, uf, a2, a3, yw = range(vKA + 8 * ch, vKA + 8 * ch + 8)
        a(f"v_add_u32 v{kfa}, s34, v{vKFA}\nv_add_u32 v{kfb}, s34, v{vKFB}\nv_add_u32 v{hk2}, s34, v{vHK2}\nv_add_u32 v{hk3}, s34, v{vHK3}")
        a(f"s_lshl_b32 s34, s{sW}, 1\ns_add_u32 s34, s34, {ch}\ns_mul_i32 s35, s34, {SY}\ns_mul_i32 s34, s34, {SU}")
        a(f"v_add_u32 v{uf}, s34, v{vUF}\nv_add_u32 v{a2}, s34, v{vA2}\nv_add_u32 v{a3}, s34, v{vA3}\nv_add_u32 v{yw}, s35, v{vYW}")
    return a


def rd_kf(ch, s):
    r = aKFS[ch] + 4 * s
    ad, o = (vKA + 8 * ch + 1, 0) if s == 0 else (vKA + 8 * ch, 16 * (16 - s))
    return [f"ds_read2_b32 {A(r,2)}, v{ad} offset0:{o} offset1:{o+1}", f"ds_read2_b32 {A(r+2,2)}, v{ad} offset0:{o+2} offset1:{o+3}"]


def kfx(ch):
    o = [f"s_lshr_b32 s34, s{82+ch}, 16", f"s_and_b32 s35, s{82+ch}, 0xffff0000", "s_or_b32 s34, s34, s35"]
    return o + [f"v_and_b32 v{vKFX+k}, s34, v{vMASK+k}" for k in range(4)]


def conv(a, ch, prof):
    kfa, kfb, hk2, hk3, uf, a2, a3, yw = range(vKA + 8 * ch, vKA + 8 * ch + 8)
    aKF = aKFS[ch]

    def rd_hk2(pi, dl):
        r = aHK2 + 4 * (3 * pi + dl); o = 16 * (2 - dl) + 64 * pi
        return [f"ds_read2_b32 {A(r,2)}, v{hk2} offset0:{o} offset1:{o+1}", f"ds_read2_b32 {A(r+2,2)}, v{hk2} offset0:{o+2} offset1:{o+3}"]

    def rd_hk3(pi, q):
        r = aHK3 + 4 * (4 * pi + q); o = (48 - 16 * q) // 2 + 96 * pi
        return [f"ds_read2_b32 {A(r,2)}, v{hk3} offset0:{o} offset1:{o+1}", f"ds_read2_b32 {A(r+2,2)}, v{hk3} offset0:{o+2} offset1:{o+3}"]
    NR = 7
    rd_uf = lambda n: f"ds_read_b128 {A(aUF+4*(n % NR),4)}, v{uf} offset:{64*n}"
    touched = set()

    def mm(t, x, y):
        c = V(vACC + 4 * t, 4) if t in touched else "0"
        touched.add(t)
        return f"v_mfma_f32_16x16x32_bf16 {V(vACC+4*t,4)}, {x}, {y}, {c}"
    NS = 64
    pre = [[] for _ in range(NS + 8)]
    extra = [[] for _ in range(NS + 8)]
    blk = [[] for _ in range(NS + 8)]
    last = [8 * t + 7 for t in range(8)]
    LA = 5
    head = [rd_uf(n) for n in range(LA)]
    for n in range(NS - LA):
        pre[n].append(rd_uf(n + LA))
    pre[0] += kfx(ch)[:4]; pre[1] += kfx(ch)[4:]
    hk = sum([rd_hk2(pi, dl) for pi in range(2) for dl in range(3)], []) + sum([rd_hk3(pi, q) for pi in range(2) for q in range(4)], [])
    for i, x in enumerate(hk):
        pre[i // 2 if i < 12 else i - 6].append(x)
    if ch == 0:
        for i, x in enumerate(sum([rd_kf(1, s) for s in range(17)], [])):
            pre[24 + i].append(x)
    jobs = [("2", 0), ("2", 1), ("3", 0, 0), ("3", 0, 1), ("2", 2), ("2", 3), ("3", 1, 0), ("3", 1, 1), ("2", 4), ("2", 5)]
    n0 = 7
    for ji, jb in enumerate(jobs):
        ap = aAP + 8 * (ji & 1); bx = vBX + 8 * (ji & 1)
        F = jb[1]
        if jb[0] == "2":
            for om in range(2):
                pre[n0].append(f"ds_read_b128 {A(ap+4*om,4)}, v{a2} offset:{512*F+64*om}")
            for pi in range(2):
                for om in range(2):
                    extra[n0 + 2].append(f"v_mfma_f32_16x16x32_bf16 {V(vBXD+8*pi+4*om,4)}, {A(ap+4*om,4)}, {A(aBAND+4*pi,4)}, 0")
            for pi in range(2):
                for q in range(4):
                    pre[n0 + 4 + pi].append(f"v_cvt_pk_bf16_f32 v{bx+4*pi+q}, v{vBXD+8*pi+2*q}, v{vBXD+8*pi+2*q+1}")
                for dl in range(3):
                    t = F + dl + 2
                    if t < 8:
                        extra[n0 + 5 + pi].append((t, V(bx + 4 * pi, 4), A(aHK2 + 4 * (3 * pi + dl), 4)))
                        last[t] = max(last[t], n0 + 5 + pi)
            n0 += 5
        else:
            pi = jb[2]
            for om in range(2):
                pre[n0].append(f"ds_read_b128 {A(ap+4*om,4)}, v{a3} offset:{1024*F+128*om+16*pi}")
                extra[n0 + 2].append(f"v_mfma_f32_16x16x32_bf16 {V(vBXD+4*om,4)}, {A(ap+4*om,4)}, {A(aBAND+8+4*pi,4)}, 0")
            for q in range(4):
                pre[n0 + 4].append(f"v_cvt_pk_bf16_f32 v{bx+q}, v{vBXD+2*q}, v{vBXD+2*q+1}")
            for a2_ in range(4):
                q = a2_ - 2 * F
                if q >= 0:
                    extra[n0 + 5].append((a2_ + 4, V(bx, 4), A(aHK3 + 4 * (4 * pi + q), 4)))
                    last[a2_ + 4] = max(last[a2_ + 4], n0 + 5)
            n0 += 5
    for t in range(8):
        n = last[t] + 3
        e = vEP + 2 * (t & 1)
        pre[n] += [f"v_cvt_pk_bf16_f32 v{e}, v{vACC+4*t}, v{vACC+4*t+1}", f"v_cvt_pk_bf16_f32 v{e+1}, v{vACC+4*t+2}, v{vACC+4*t+3}",
                   I(f"ds_write_b64 v{yw}, {V(e,2)} offset:{512*t}", tag=f"y{ch}{t}")]
        if ch == 1:
            w = Asm(); w.wait(f"y1{t}"); w("s_barrier")
            tb = vTB + 4 * (t & 1)
            w(f"ds_read_b64_tr_b16 {V(tb,2)}, v{vOR} offset:{512*t}\nds_read_b64_tr_b16 {V(tb+2,2)}, v{vOR} offset:{512*t+4*SY}", tag=f"yr{t}")
            pre[n + 1] += w.ins
            pre[n + 3] += [f"s_mov_b32 s{sT0}, {256*2304*t}", f"buffer_store_dwordx4 {V(tb,4)}, v{vOS}, s[20:23], s{sT0} offen {Y_FLAGS}"]
    emit = lambda x: a(x) if isinstance(x, str) else a.ins.append(x)
    for s in head:
        a(s)
    for n in range(NS + 8):
        ms = []
        if ch == 0 and n % 8 == 0: prof(a, 20 + n // 8)
        if n < NS:
            phi = n - 7
            for s in list(range(17)) + [32]:
                if (phi + s) % 8 == 0 and 0 <= (phi + s) // 8 < 8:
                    ms.append(((phi + s) // 8, V(vKFX, 4) if s == 32 else A(aKF + 4 * s, 4), A(aUF + 4 * (n % NR), 4)))
        ms += extra[n]
        fill = list(pre[n])
        per = -(-len(fill) // max(1, len(ms)))
        for m in ms:
            a(m if isinstance(m, str) else mm(*m))
            for _ in range(per):
                if fill:
                    emit(fill.pop(0))
        for f in fill + blk[n]:
            emit(f)


def gen_a(prof):
    a = Asm()
    a("s_load_dwordx16 s[52:67], s[0:1], 0")
    a(f"v_lshrrev_b32 v{vT0}, 6, v0\nv_and_b32 v{vLANE}, 63, v0\ns_lshr_b32 s{sT0}, s{sX}, 2\nv_readfirstlane_b32 s{sW}, v{vT0}")
    a(f"s_sub_u32 s{sAG}, s{sX}, s{sT0}\ns_lshl_b32 s{sAG}, s{sAG}, 3\ns_mul_i32 s{sT1}, s{sT0}, 12\ns_add_u32 s{sT1}, s{sT1}, 48")
    a(f"s_cmp_eq_u32 s{sNA}, 16\ns_cselect_b32 s{sAG}, s{sT1}, s{sAG}\ns_add_u32 s{sAG}, s{sAG}, s{sJ}")
    a(f"s_lshl_b32 s{sT1}, s{sAG}, 2\ns_add_u32 s{sT1}, s{sT1}, s{sW}\ns_lshl_b32 s{sT2}, s{sT1}, 2\ns_lshl_b32 s{sT1}, s{sT1}, 9")
    a(f"v_lshl_add_u32 v{vT1}, v{vLANE}, 2, s{sT1}\nv_lshlrev_b32 v{vT2}, 4, v{vLANE}")
    a(f"s_cmp_ge_u32 s{sJ}, 12")
    prof(a, 30)
    a("s_waitcnt lgkmcnt(0)\ns_cbranch_scc1 L_SPARE")
    a(f"s_load_dword s{sLDT}, s[{pLOGDT}:{pLOGDT+1}], s{sT2}\ns_load_dword s{sDSK}, s[{pDSKIP}:{pDSKIP+1}], s{sT2}")
    for k in range(6):
        a(f"global_load_dword v{vP+k}, v{vT1}, s[{54+2*k}:{55+2*k}]")
    a("s_branch L_A\nL_A:")
    prof(a, 31)
    a(f"s_mov_b32 s{sJJ}, s{sJ}\ns_add_u32 s6, s4, L_TABA-L_PC\ns_addc_u32 s7, s5, 0")
    a(f"global_load_dwordx4 {V(vTAB5,4)}, v{vT2}, s[6:7]")
    for k in range(6):
        a(f"global_load_dword v{vP+6+k}, v{vT1}, s[{54+2*k}:{55+2*k}] offset:256")
    a(f"global_load_dwordx4 {V(vMASK,4)}, v{vT2}, s[6:7] offset:1024")
    a(f"s_add_u32 s6, s6, 2048\ns_addc_u32 s7, s7, 0")
    for k in range(4):
        a(f"global_load_dwordx4 {A(aBAND+4*k,4)}, v{vT2}, s[6:7] offset:{1024*k}")
    prof(a, 32)
    if "pf" in EXP:
        srd(a, 12, pW, 576 * 3456)
        t, ln, blk = 34, 35, sEX
        a(f"s_lshl_b32 s{t}, s{sJ}, 2\ns_add_u32 s{t}, s{t}, s{sW}\nv_mul_u32_u24 v{vW}, 3456, v{vLANE}")
        a(f"s_and_b32 s{ln}, s{t}, 1\ns_mul_i32 s{ln}, s{ln}, 9\ns_add_u32 s{ln}, s{ln}, 9\ns_lshr_b32 s{blk}, s{t}, 1")
        a(f"s_sub_u32 s{sT0}, s{blk}, 9\ns_mul_i32 s{sT0}, s{sT0}, 3\ns_add_u32 s{sT0}, s{sT0}, 2\ns_and_b32 s{sT1}, s{sX}, 4\ns_lshl_b32 s{sT1}, s{sT1}, 1")
        a(f"s_cmp_lt_u32 s{t}, 18\ns_cselect_b32 s{blk}, s{blk}, s{sT0}\ns_cselect_b32 s{sT1}, 4, s{sT1}\ns_add_u32 s{ln}, s{ln}, s{sT1}")
        a(f"s_sub_u32 s{sT0}, s{t}, 24\ns_cmp_ge_u32 s{t}, 24\ns_cselect_b32 s{blk}, s{sT0}, s{blk}\ns_cselect_b32 s{ln}, 4, s{ln}")
        a(f"s_mul_i32 s{blk}, s{blk}, {64*27}\ns_add_u32 s{ln}, s{ln}, s{blk}\ns_lshl_b32 s{ln}, s{ln}, 7")
        pf_load(a, vW, 12, ln)
    prof(a, 0)
    srd(a, 16, 52, 2048 * 1152)
    srd(a, 20, pOUT, 2048 * 2304)
    L = vLANE
    t0, t1, t2, t3 = vW, vW + 1, vW + 2, vW + 3
    r16, g = vW + 4, vW + 5
    a(f"v_and_b32 v{r16}, 15, v{L}\nv_lshrrev_b32 v{g}, 4, v{L}")
    a(f"s_mul_i32 s{sT0}, s{sW}, {KGW}\ns_mov_b32 s{sKG}, s{sT0}\ns_mov_b32 m0, s{sT0}")
    a(f"v_and_b32 v{t0}, 31, v{L}\nv_lshrrev_b32 v{t1}, 5, v{L}")
    a(f"v_mul_u32_u24 v{t2}, 528, v{t0}\nv_lshl_add_u32 v{t2}, v{t1}, 4, v{t2}\nv_add_u32 v{vKGB}, s{sT0}, v{t2}")
    a(f"v_lshlrev_b32 v{t2}, 4, v{t0}\nv_lshl_add_u32 v{t2}, v{t1}, 3, v{t2}\nv_sub_u32 v{vKW}, 568, v{t2}")
    a(f"v_lshlrev_b32 v{t2}, 1, v{L}\nv_sub_u32 v{vK2W}, 190, v{t2}")
    a(f"v_and_b32 v{t2}, 1, v{t0}\nv_mul_u32_u24 v{t2}, 384, v{t2}\nv_and_b32 v{t3}, 30, v{t0}\nv_add_u32 v{t2}, v{t2}, v{t3}")
    a(f"v_lshl_add_u32 v{t2}, v{t1}, 6, v{t2}\nv_sub_u32 v{vK3W}, {384+96}, v{t2}")
    a(f"v_and_b32 v{t0}, 1, v{r16}\nv_add_u32 v{t1}, v{r16}, v{t0}\nv_lshlrev_b32 v{t2}, 3, v{g}\nv_sub_u32 v{t1}, v{t2}, v{t1}")
    a(f"v_lshlrev_b32 v{t1}, 1, v{t1}")
    a(f"v_mul_u32_u24 v{t2}, {KO-KE}, v{t0}\nv_add3_u32 v{vKFA}, v{t1}, v{t2}, 32\nv_add_u32 v{vKFB}, 1024, v{vKFA}")
    a(f"v_mul_u32_u24 v{t2}, 192, v{t0}\nv_add_u32 v{t2}, {K3+32}, v{t2}\nv_add_u32 v{vHK3}, v{t1}, v{t2}")
    a(f"v_lshlrev_b32 v{t1}, 4, v{g}\nv_lshlrev_b32 v{t2}, 2, v{r16}\nv_sub_u32 v{t2}, v{t1}, v{t2}\nv_add_u32 v{vHK2}, {K2+60}, v{t2}")
    a(f"v_lshl_add_u32 v{t2}, v{r16}, 5, v{t1}\nv_add_u32 v{vUF}, {UT+32}, v{t2}")
    a(f"v_lshrrev_b32 v{t2}, 2, v{r16}\nv_and_b32 v{t3}, 3, v{r16}\nv_lshl_add_u32 v{t0}, v{t2}, 3, v{t3}")
    a(f"v_lshl_add_u32 v{vA2}, v{t0}, 4, v{t1}\nv_add_u32 v{vA2}, {UT+464}, v{vA2}")
    a(f"v_lshl_add_u32 v{vA3}, v{t0}, 5, v{t1}\nv_add_u32 v{vA3}, {UT+464}, v{vA3}")
    a(f"v_lshlrev_b32 v{t0}, 3, v{g}\nv_lshl_add_u32 v{t0}, v{r16}, 5, v{t0}\nv_add_u32 v{vYW}, {YT}, v{t0}")
    a(f"v_lshrrev_b32 v{t0}, 2, v{L}\nv_and_b32 v{t0}, 4, v{t0}\nv_xor_b32 v{t0}, v{t0}, v{L}\nv_mul_u32_u24 v{t0}, 1152, v{t0}")
    a(f"s_mul_i32 s{sT0}, s{sW}, {512*1152}\ns_lshl_b32 s{sT1}, s{sAG}, 4\ns_add_u32 s{sT0}, s{sT0}, s{sT1}\nv_add_u32 v{vDMA}, s{sT0}, v{t0}")
    a(f"v_lshrrev_b32 v{t0}, 1, v{g}\nv_lshlrev_b32 v{t0}, 5, v{t0}\nv_lshl_add_u32 v{t0}, v{t3}, 3, v{t0}\nv_add_u32 v{t0}, v{t0}, v{t2}")
    a(f"v_and_b32 v{t1}, 2, v{t3}\nv_lshlrev_b32 v{t1}, 1, v{t1}")
    a(f"v_xor_b32 v{vTR0}, v{t0}, v{t1}\nv_xor_b32 v{vTR1}, 4, v{vTR0}")
    a(f"s_lshl_b32 s{sT0}, s{sW}, 13\ns_add_u32 s{sT0}, s{sT0}, {U0}")
    a(f"v_and_b32 v{t1}, 1, v{g}\nv_lshl_add_u32 v{t0}, v{t1}, 3, s{sT0}")
    a(f"v_lshl_add_u32 v{vTR0}, v{vTR0}, 4, v{t0}\nv_lshl_add_u32 v{vTR1}, v{vTR1}, 4, v{t0}")
    a(f"v_lshl_add_u32 v{t1}, v{t1}, 2, v{t3}\nv_mul_u32_u24 v{t1}, {SU}, v{t1}")
    a(f"v_lshrrev_b32 v{t0}, 1, v{g}\nv_lshlrev_b32 v{t0}, 6, v{t0}\nv_lshl_add_u32 v{t0}, v{t2}, 4, v{t0}")
    a(f"s_lshl_b32 s{sT0}, s{sW}, 10\ns_add_u32 s{sT0}, s{sT0}, {UT+512}\nv_add3_u32 v{vTW}, v{t0}, v{t1}, s{sT0}")
    a(f"v_mul_u32_u24 v{t0}, {SY}, v{t2}\nv_lshl_add_u32 v{t0}, v{g}, 5, v{t0}\nv_lshl_add_u32 v{t0}, v{t3}, 3, v{t0}")
    a(f"s_lshl_b32 s{sT0}, s{sW}, 7\ns_add_u32 s{sT0}, s{sT0}, {YT}\nv_add_u32 v{vOR}, s{sT0}, v{t0}")
    a(f"s_mul_i32 s{sT0}, s{sW}, {64*2304}\ns_lshl_b32 s{sT1}, s{sAG}, 4\ns_add_u32 s{sT0}, s{sT0}, s{sT1}")
    a(f"v_mul_u32_u24 v{t0}, 2304, v{L}\nv_add_u32 v{vOS}, s{sT0}, v{t0}")
    a(f"v_mov_b32 v{vZ}, 0\nv_mov_b32 v{vZ+1}, 0\nv_mov_b32 v{vZ+2}, 0\nv_mov_b32 v{vZ+3}, 0")
    a(f"v_lshrrev_b32 v{t0}, 5, v{L}\nv_mul_u32_u24 v{t0}, {SU}, v{t0}\nv_and_b32 v{t1}, 31, v{L}\nv_lshl_add_u32 v{t0}, v{t1}, 4, v{t0}")
    a(f"s_mul_i32 s{sT0}, s{sW}, {2*SU}\nv_add_u32 v{t0}, s{sT0}, v{t0}\nv_add_u32 v{t0}, {UT}, v{t0}\nds_write_b128 v{t0}, {V(vZ,4)}")
    a(f"s_mul_i32 s{sT0}, s{sW}, {KGW}\ns_add_u32 s{sT0}, s{sT0}, {KG}\nv_add_u32 v{vKGA}, s{sT0}, v{vTAB5}")
    a("s_waitcnt lgkmcnt(0)")
    prof(a, 1)

    a(f"s_lshl_b32 s{sU0}, s{sW}, 13\ns_add_u32 s{sU0}, s{sU0}, {U0}")
    a(f"s_and_b32 s{sUB}, s{sJJ}, 7\ns_mov_b32 s{sTB}, s{sUB}\ns_lshl_b32 s34, s{sUB}, 7\nv_add_u32 v{vTW}, s34, v{vTW}")
    DMA_AT = DMA_PLAN
    TR_AT = TR_PLAN
    kf0 = sum([rd_kf(0, s_) for s_ in range(17)], [])

    def hook(a, ch, n):
        if (ch, n) in DMA_AT:
            i = DMA_AT.index((ch, n))
            a(f"s_add_u32 m0, s{sU0}, {1024*i}\ns_mul_i32 s34, s{sUB}, {64*1152}")
            a(f"buffer_load_dwordx4 v{vDMA}, s[16:19], s34 offen lds", tag=f"u{i}")
            a(f"s_mov_b32 m0, s{sKG}\ns_add_u32 s{sUB}, s{sUB}, 1\ns_and_b32 s{sUB}, s{sUB}, 7")
        if (ch, n) in TR_AT:
            i = TR_AT.index((ch, n)); a.wait(f"u{i}")
            a(f"ds_read_b64_tr_b16 {V(vTB,2)}, v{vTR0} offset:{1024*i}\nds_read_b64_tr_b16 {V(vTB+2,2)}, v{vTR1} offset:{1024*i}")
        if (ch, n - 2) in TR_AT:
            a(f"ds_write_b128 v{vTW}, {V(vTB,4)}")
            a(f"s_cmp_eq_u32 s{sTB}, 7\ns_cselect_b32 s34, 0x400, 0\ns_sub_u32 s34, 0x80, s34\ns_add_u32 s{sTB}, s{sTB}, 1\nv_add_u32 v{vTW}, s34, v{vTW}")
        if ch == 1 and kf0 and n < 55:
            a(kf0.pop(0))
    a.ext(ksetup(0))
    kgen(a, 0, prof, hook, ksetup(1).ins)
    a.ext(conv_addr())
    prof(a, 2)
    kgen(a, 1, prof, hook, [])
    assert not kf0
    prof(a, 3)
    a("s_waitcnt lgkmcnt(0)\ns_barrier")
    prof(a, 4)
    conv(a, 0, prof)
    prof(a, 5)
    conv(a, 1, prof)
    if "wb1" in EXP:
        a(f"s_waitcnt vmcnt(0)\ns_barrier\ns_cmp_lg_u32 s{sW}, 0\ns_cbranch_scc1 L_END\nbuffer_wbl2 sc1")
    if "wb2" in EXP:
        a(f"s_waitcnt vmcnt(0)\ns_barrier\ns_cmp_lg_u32 s{sW}, 0\ns_cbranch_scc1 L_END\ns_and_b32 s34, s{sJJ}, 3\ns_cmp_lg_u32 s34, 3\ns_cbranch_scc1 L_END\nbuffer_wbl2 sc1")
    prof(a, 7, final=True)
    a("s_endpgm")
    main = finish(a)
    b = Asm()
    b("L_SPARE:")
    b(f"s_lshl_b32 s{sIDX}, s{sT0}, 2\ns_add_u32 s{sIDX}, s{sIDX}, s{sJ}\ns_sub_u32 s{sIDX}, s{sIDX}, 12")
    srd(b, 16, pWS, S2_OFF)
    srd(b, 20, pWS, SENT_SIZE)
    srd(b, 24, pDBG, 256)
    b(f"v_mov_b32 v{vZ}, -1\nv_mov_b32 v{vZ+1}, -1\nv_mov_b32 v{vZ+2}, -1\nv_mov_b32 v{vZ+3}, -1\nv_mov_b32 v{vT0}, 1\nv_mov_b32 v{vT1}, 0")
    b(f"s_lshl_b32 s{sT2}, s{sIDX}, 2\ns_add_u32 s{sT2}, s{sT2}, s{sW}")
    for part, (r, n, base) in enumerate(((16, 17, 0), (20, 72, S2_OFF))):
        b(f"s_mul_i32 s{sT0}, s{sT2}, {n*1024}\ns_add_u32 s{sT0}, s{sT0}, {base}\ns_add_u32 s{sT1}, s{sT0}, {n*1024}")
        b(f"L_FILL{part}:\nbuffer_store_dwordx4 {V(vZ,4)}, v{vT2}, s[{r}:{r+3}], s{sT0} offen sc1")
        b(f"s_add_u32 s{sT0}, s{sT0}, 1024\ns_cmp_lt_u32 s{sT0}, s{sT1}\ns_cbranch_scc1 L_FILL{part}")
        b(f"s_waitcnt vmcnt(0)\ns_barrier\ns_cmp_lg_u32 s{sW}, 0\ns_cbranch_scc1 L_FILLED{part}")
        b(f"s_mov_b64 exec, 1\nbuffer_atomic_add v{vT0}, v{vT1}, s[24:27], 0 offen offset:{64*part} sc1\ns_mov_b64 exec, -1\nL_FILLED{part}:")
    b("s_endpgm")
    k = [i.text for i in main].index("L_A:")
    return main[:k], main[k:] + finish(b)
```

```python
from asmlib import *
from gen_common import *
import numpy as np

XR = 0
WQ = 0
WR = 73728
EX = WR + 16384
WO = WR
FM = 147456
FDUMMY = FM + 4608
NX, NW = 3, 4
PAIRS = [[(0, 2), (0, 3)], [(0, 4), (1, 4)], [(1, 2), (1, 3)], [(2, 3), (2, 4)]]


def head_of(e):
    return 0 if (e < 18 or e == 36) else 1


def table_b():
    T = np.zeros((256, 4), np.uint32)
    T[:, 0] = OOB; T[:, 1] = OOB
    cons = []
    for w in range(4):
        for q in range(2):
            kt, vt = PAIRS[w][q]
            for l in range(64):
                c, g = l % 16, l // 16
                e, ch = 16 * vt + c - 36, 4 * kt + g
                if 0 <= e < 38 and 4 * head_of(e) <= ch <= 4 * head_of(e) + 4:
                    T[64 * w + l, q] = 16 * len(cons)
                    cons.append((e, ch))
    assert len(cons) == 190
    for t in range(256):
        if t < 190:
            e, ch = cons[t]
            fl = 3 if ch != 4 else (1 if head_of(e) == 0 else 2)
            T[t, 2] = FM + 96 * e + 8 * ch; T[t, 3] = fl
        else:
            T[t, 2] = FDUMMY + 8 * (t - 190); T[t, 3] = 0
    return T


vQD = 1
vRO = 2
vOL, vOLT, vOUT, vCK = 6, 7, 8, 9
vL, vI, vG, vX = 10, 11, 12, 13
vDQ = 16
vXR = 17
vXD = 176
vDK = 182
vRK = 22
vRQ = 27
vEW, vGA = 30, 31
vTAB = 32
vT = 36
vONE = 42
vER = 44
vDO = 48
vFR, vFD, vS2, vS2T, vDBG, vDBA = 50, 51, 52, 53, 54, 55
vACC = 56
vFB = 116
vPH = 156
vPK = 172
vKD = 104
vAQ = 186
vFQ = 116
vGAT = 56
vPQ = 222
vFA = 156
vON = 56
vOF = 104
vR = 124
vMM, vLO = 248, 249
vBW, vBR = 250, 251
vEW2 = 42
vC4 = 186
vEPS = 240
vA2 = 12
vWV = 44
vOM = 76
sW, sRB, sP, sRB2, sCB, sG2 = 52, 53, 54, 55, 56, 57
sT = 58
sB, sMX = 64, 65
sM0 = 66
sMK4, sMK89, sMG0 = 68, 70, 72
sLOG, sEPS = 74, 76
sRETRY = 78
sSO = 79
sSX, sSK, sMW = 80, 81, 82
sPC, sPQ, sQK = 83, 84, 85
sWB, sOB = 86, 64


_E = __import__('os').environ
OL_START, OL_PER, OL_AHEAD = int(_E.get('OLS', 100)), float(_E.get('OLP', 0.4)), int(_E.get('OLA', 2))
GS = int(_E.get('GS', 15))
RD0 = int(_E.get('RD0', 18))
LDP, LDS_ = float(_E.get('LDP', 0)), int(_E.get('LDS', 0))
RAMP = int(_E.get('RAMP', 0))
Q7, Q8 = int(_E.get('Q7', 8)), int(_E.get('Q8', 10))
KVP = float(_E.get('KVP', 1))
N_PRE = int(__import__('os').environ.get('NPRE', '999'))
import os
OUT_FLAGS = os.environ.get("OUTF", "")
EXP = os.environ.get('EXP', '').split(',')


def xreg(s, tau):
    return (3 * s + tau) * 4


def mneed(s):
    return -(-(5 * s + 5) // 4)


def phi4(a, src, dst, tmp, keep=None, slot=lambda n: None):
    e = tmp
    a(f"v_pk_mul_f32 {V(e,2)}, {V(src,2)}, {S(sLOG,2)}\nv_pk_mul_f32 {V(e+2,2)}, {V(src+2,2)}, {S(sLOG,2)}")
    m = src
    for i in range(4):
        if i in (0, 2):
            slot(1)
        a(f"v_exp_f32_e64 v{e+i}, v{e+i} clamp\nv_max_f32 v{m+i}, {'v%d' % vLO if keep else 's%d' % sEPS}, v{src+i}")
    for h in (0, 2):
        if keep:
            a(f"v_pk_fma_f32 {V(e+h,2)}, {V(e+h,2)}, {V(vMM,2)}, {V(m+h,2)} op_sel_hi:[1,0,1]")
        else:
            a(f"v_pk_add_f32 {V(e+h,2)}, {V(e+h,2)}, {V(m+h,2)}")
    slot(1)
    a(f"v_cvt_pk_bf16_f32 v{dst}, v{e}, v{e+1}\nv_cvt_pk_bf16_f32 v{dst+1}, v{e+2}, v{e+3}")


def spread(fg, bg):
    fg = atoms(fg.ins if isinstance(fg, Asm) else fg)
    bg = atoms(bg)
    out, k = [], 0
    for n, i in enumerate(fg):
        out.extend(i)
        while k < len(bg) and (k + 1) * len(fg) <= (n + 1) * len(bg):
            out.extend(bg[k]); k += 1
    return out + [x for g in bg[k:] for x in g]


def gen_b(prof):
    a = Asm()
    slow = Asm()
    t0, t1, t2, t3, t4, t5 = range(vT, vT + 6)
    a(f"s_load_dwordx2 s[8:9], s[0:1], 72\ns_load_dwordx2 s[12:13], s[0:1], 80")
    a(f"s_mov_b32 s10, {2048*1152}\ns_mov_b32 s11, 0x20000\ns_mov_b32 s14, {576*3456}\ns_mov_b32 s15, 0x20000")
    a(f"s_mul_i32 s{sRB}, s6, 3\ns_lshr_b32 s{sT}, s{sJ}, 3\ns_add_u32 s{sRB}, s{sRB}, s{sT}")
    a(f"s_and_b32 s{sT}, s{sJ}, 7\ns_lshr_b32 s{sP}, s{sX}, 2\ns_lshl_b32 s{sP}, s{sP}, 3\ns_add_u32 s{sP}, s{sP}, s{sT}")
    a(f"v_lshrrev_b32 v{t0}, 6, v0\nv_bfe_u32 v{vG}, v0, 4, 2\nv_bfe_u32 v{t1}, v0, 3, 3\nv_readfirstlane_b32 s{sW}, v{t0}")
    a(f"s_mul_i32 s{sT}, s{sRB}, 192\nv_lshl_add_u32 v{t1}, v{t0}, 4, v{t1}\nv_add_u32 v{t1}, s{sT}, v{t1}\nv_mul_u32_u24 v{t1}, 1152, v{t1}")
    a(f"v_and_b32 v{t2}, 7, v0\nv_xor_b32 v{t2}, v{t2}, v{vG}\nv_lshl_add_u32 v{vXD}, v{t2}, 4, v{t1}")
    a(f"v_xor_b32 v{t2}, 4, v{t2}\nv_lshl_add_u32 v{vXD+1}, v{t2}, 4, v{t1}\nv_add_u32 v{vXD+1}, {8*1152-1024}, v{vXD+1}")
    a(f"v_add_u32 v{vXD+2}, {64*1152-2048}, v{vXD}\nv_add_u32 v{vXD+3}, {64*1152-2048}, v{vXD+1}")
    a(f"v_add_u32 v{vXD+4}, {128*1152}, v{vXD}\nv_add_u32 v{vXD+5}, {128*1152}, v{vXD+1}")
    a(f"s_mul_i32 s{sMX}, s{sW}, 6144\ns_lshl_b32 s{sMW}, s{sW}, 12")
    a(f"s_and_b32 s{sT}, s{sP}, 1\ns_lshl_b32 s{sT}, s{sT}, 3\ns_mul_i32 s{sT+1}, s{sP}, 72\ns_sub_u32 s{sT+1}, s{sT+1}, s{sT}")
    a(f"s_and_b32 s{sB}, s{sT+1}, 127\ns_sub_u32 s{sB}, 128, s{sB}\ns_lshr_b32 s{sB}, s{sB}, 4\ns_min_u32 s{sB}, s{sB}, 4")
    a(f"s_sub_u32 s{sT+2}, 5, s{sB}\ns_mov_b32 s{sT+3}, 3456")
    if 'rot1' in EXP:
        a(f"s_lshr_b32 s{sPC}, s{sJ}, 3\ns_mul_i32 s{sPC}, s{sPC}, 3\ns_and_b32 s{sPQ}, s{sJ}, 7\ns_add_u32 s{sPC}, s{sPC}, s{sPQ}")
    else:
        offs = [1, 0, 4, 0, 7, 0, 1, 0] if 'rot3' not in EXP else [1, 0, 4, 0, 7, 0, 2, 0]
        pk0 = sum(o << (4 * i) for i, o in enumerate(offs)); pk1 = sum(o << (4 * (7 - i)) for i, o in enumerate(offs))
        a(f"s_mov_b32 s{sPC}, {pk0}\ns_cmp_ge_u32 s{sP}, 8\ns_cselect_b32 s{sPC}, {pk1}, s{sPC}\ns_and_b32 s{sPQ}, s{sJ}, 7\ns_lshl_b32 s{sPQ}, s{sPQ}, 2")
        a(f"s_lshr_b32 s{sPQ}, s{sPC}, s{sPQ}\ns_and_b32 s{sPQ}, s{sPQ}, 15\ns_lshr_b32 s{sPC}, s{sJ}, 3\ns_mul_i32 s{sPC}, s{sPC}, 3\ns_add_u32 s{sPC}, s{sPC}, s{sPQ}")
    a(f"s_sub_u32 s{sPQ}, s{sPC}, 9\ns_cmp_ge_u32 s{sPC}, 9\ns_cselect_b32 s{sPC}, s{sPQ}, s{sPC}\ns_mov_b32 s{sPQ}, s{sPC}")
    a(f"s_lshl_b32 s{sSX}, s{sPC}, 7\ns_mul_i32 s{sSK}, s{sPC}, {64*3456}")
    def slot_to_col(dst, q, e, tmp):
        a(f"v_mov_b32 v{tmp}, s{sB}\nv_mul_u32_u24 v{dst}, v{q}, v{tmp}\nv_add_u32 v{dst}, v{dst}, v{e}")
        a(f"v_cmp_eq_u32 vcc, 0, v{q}\nv_mov_b32 v{q}, s{sT+2}\nv_cndmask_b32 v{tmp}, v{q}, v{tmp}, vcc\nv_cmp_lt_u32 vcc, v{e}, v{tmp}")
    a(f"v_bfe_u32 v{t1}, v0, 2, 2\nv_xor_b32 v{t1}, v{t1}, v{vG}")
    a(f"v_and_b32 v{t2}, 3, v0\nv_bfe_u32 v{t3}, v0, 6, 1\nv_lshlrev_b32 v{t3}, 1, v{t3}\nv_xor_b32 v{t2}, v{t2}, v{t3}")
    a(f"v_lshrrev_b32 v{t3}, 1, v{t1}\nv_and_b32 v{t1}, 1, v{t1}\nv_mul_u32_u24 v{t3}, 1152, v{t3}")
    slot_to_col(t4, t1, t2, t5)
    a(f"v_lshl_add_u32 v{t3}, v{t4}, 4, v{t3}\nv_lshl_add_u32 v{t0}, v{t0}, 3, v{vG}\nv_mad_u32_u24 v{t3}, v{t0}, s{sT+3}, v{t3}")
    a(f"s_add_u32 s{sT+4}, s{sT+1}, 1152\nv_add_u32 v{t3}, s{sT+4}, v{t3}\nv_mov_b32 v{t4}, {OOB}\nv_cndmask_b32 v{vDK}, v{t4}, v{t3}, vcc")
    for m in range(1, 4):
        a(f"v_add_u32 v{vDK+m}, {(32*(m >> 1)+4*(m & 1))*3456-1024*m}, v{vDK}")
    prof(a, 30)
    a("s_waitcnt lgkmcnt(0)")
    prof(a, 31)

    def dx(P):
        o = []
        for n in range(6):
            x = Asm()
            if n % 4 == 0:
                x(f"s_add_u32 m0, s{sMX}, {XR + (P % NX) * 24576 + 1024 * n}")
            if n == 0 and P:
                x(f"s_add_u32 s{sPC}, s{sPC}, 1\ns_cmp_eq_u32 s{sPC}, 9\ns_cselect_b32 s{sPC}, 0, s{sPC}\ns_lshl_b32 s{sSX}, s{sPC}, 7")
            x(f"buffer_load_dwordx4 v{vXD+n}, s[8:11], s{sSX} offen offset:{1024*(n % 4)} lds", tag=f"x{P}")
            o.append(x.ins)
        return o

    def dk(P):
        o = []
        for m in range(4):
            x = Asm()
            if m == 0:
                x(f"s_add_u32 m0, s{sMW}, {WR + (P % NW) * 16384}")
                if P:
                    x(f"s_mul_i32 s{sSK}, s{sPC}, {64*3456}")
            x(f"buffer_load_dwordx4 v{vDK+m}, s[12:15], s{sSK} offen offset:{1024*m} lds", tag=f"k{P}")
            o.append(x.ins)
        return o

    def dquad(srdreg, vaddr, pre, sbase, so, ldsbase, k, tag):
        x = Asm()
        if k == 16:
            x(f"s_lshr_b32 s{sSO}, s{sMW}, 1\ns_add_u32 m0, s{sSO}, {ldsbase + 65536}")
        elif k % 4 == 0:
            x(f"s_add_u32 m0, s{sMW}, {ldsbase + 4096 * k}")
        x(pre)
        so -= 1024 * (k % 4)
        if sbase is None:
            x(f"s_mov_b32 s{sSO}, {so}")
        elif so:
            x(f"s_add_u32 s{sSO}, s{sbase}, {so & 0xffffffff}")
        x(f"buffer_load_dwordx4 v{vaddr}, s[{srdreg}:{srdreg+3}], s{sSO if so or sbase is None else sbase} offen offset:{1024*(k % 4)} lds", tag=tag)
        return x.ins

    def dq(k):
        pre = ""
        if k % 2 == 0:
            if k:
                pre = f"s_add_u32 s{sPQ}, s{sPQ}, 1\ns_cmp_eq_u32 s{sPQ}, 9\ns_cselect_b32 s{sPQ}, 0, s{sPQ}\n"
            pre += f"s_mul_i32 s{sQK}, s{sPQ}, {64*3456}\ns_add_u32 s{sQK}, s{sQK}, 2048"
        return dquad(92, vDQ, pre, sQK, 32 * 3456 * (k & 1), WQ, k, f"q{k}")
    qoff = lambda k, rd: 16384 * (k >> 2) + 8192 * rd + 1024 * (k & 3) if k < 16 else 4096 * rd + 1024 * (k & 1)

    for x in dx(0):
        a.ext(x)
    prof(a, 32)
    prof(a, 33)
    for x in dk(0):
        a.ext(x)
    prof(a, 34)
    main, a = a, Asm()
    a(f"v_and_b32 v{vL}, 63, v0\nv_and_b32 v{vI}, 15, v0")
    a(f"v_lshrrev_b32 v{t0}, 1, v{vI}\nv_xor_b32 v{t0}, v{t0}, v{vG}\nv_lshl_add_u32 v{t1}, v{vI}, 7, s{sMX}")
    a(f"v_lshl_add_u32 v{vXR}, v{t0}, 4, v{t1}\nv_xor_b32 v{vXR+1}, 64, v{vXR}")
    a(f"v_lshrrev_b32 v{t0}, 2, v{vL}\nv_and_b32 v{t1}, 3, v{vL}")
    u0, u1, u2, u3, u4, u5, u6 = range(vPH, vPH + 7)
    a(f"v_and_b32 v{u0}, 3, v{t0}\nv_and_b32 v{u1}, 1, v{vG}\nv_lshlrev_b32 v{u1}, 1, v{u1}\nv_bfe_u32 v{u5}, v{t0}, 1, 1")

    def col_to_slot(cc):
        a(f"v_lshl_add_u32 v{u2}, v{cc}, 3, s{sT}\nv_and_b32 v{u4}, 8, v{u2}\nv_lshrrev_b32 v{u3}, 4, v{u2}")
        a(f"v_cmp_le_u32 vcc, s{sB}, v{u3}\nv_subrev_u32 v{u2}, s{sB}, v{u3}\nv_cndmask_b32 v{u3}, v{u3}, v{u2}, vcc\nv_cndmask_b32 v{u2}, 0, 1, vcc")
        a(f"v_xor_b32 v{u3}, v{u3}, v{u1}\nv_lshl_add_u32 v{u3}, v{u3}, 4, v{u4}")
    for T in range(5):
        if T < 2:
            a(f"v_add_u32 v{t3}, {4*T}, v{t1}\nv_mov_b32 v{t4}, 0")
        elif T == 2:
            a(f"v_cmp_eq_u32 vcc, 0, v{t1}\nv_add_u32 v{t3}, -1, v{t1}\nv_cndmask_b32 v{t3}, v{t3}, 8, vcc\nv_cndmask_b32 v{t4}, 2, 0, vcc")
        else:
            a(f"v_add_u32 v{t3}, {4*T-9}, v{t1}\nv_min_u32 v{t3}, 8, v{t3}\nv_mov_b32 v{t4}, 2")
        col_to_slot(t3)
        if T == 4:
            a(f"s_cmp_eq_u32 s{sB}, 1\ns_cselect_b32 s{sT+4}, 0, 1\nv_cmp_gt_u32 vcc, 2, v{t1}\nv_mov_b32 v{u4}, s{sT+4}\nv_xor_b32 v{t5}, 3, v{u1}\nv_lshlrev_b32 v{t5}, 4, v{t5}")
            a(f"v_cndmask_b32 v{u2}, v{u4}, v{u2}, vcc\nv_cndmask_b32 v{u3}, v{t5}, v{u3}, vcc")
        a(f"v_or_b32 v{u2}, v{u2}, v{t4}\nv_xor_b32 v{u2}, v{u2}, v{u0}\nv_lshl_add_u32 v{u3}, v{u2}, 6, v{u3}")
        a(f"v_lshl_add_u32 v{u3}, v{u0}, 8, v{u3}\nv_lshl_add_u32 v{u3}, v{vG}, 12, v{u3}\nv_add_u32 v{vRK+T}, {WR}, v{u3}")
    a(f"v_cmp_gt_u32 {S(sMK4,2)}, 4, v{vI}\nv_and_b32 v{t5}, 14, v{vI}\nv_cmp_eq_u32 {S(sMK89,2)}, 8, v{t5}\nv_cmp_eq_u32 {S(sMG0,2)}, 0, v{vG}")
    a(f"s_mov_b32 s{sLOG}, 0x3fb8aa3b\ns_mov_b32 s{sLOG+1}, 0x3fb8aa3b\ns_mov_b32 s{sEPS}, 0x358637bd\ns_mov_b32 s{sEPS+1}, 0x358637bd")
    for i in range(4):
        a(f"v_mov_b32 v{vEPS+i}, s{sEPS}\nv_cndmask_b32 v{vEPS+4+i}, 0, v{vEPS+i}, {S(sMK4,2)}")
    a(f"v_cndmask_b32 v{vMM}, 0, 1.0, {S(sMK4,2)}\nv_mov_b32 v{vLO}, 0xff800000\nv_cndmask_b32 v{vLO}, v{vLO}, v{vEPS}, {S(sMK4,2)}")
    a(f"s_cmp_lt_u32 s{sRB}, 10\ns_cselect_b32 s{sT+4}, 1.0, 0\nv_cndmask_b32 v{vC4}, 0, 1.0, {S(sMK89,2)}\nv_mul_f32 v{vC4+4}, s{sT+4}, v{vC4}")
    for i in range(1, 4):
        a(f"v_mov_b32 v{vC4+i}, v{vC4}\nv_mov_b32 v{vC4+4+i}, v{vC4+4}")
    n_crit = len(a.ins)
    a(f"v_and_b32 v{u6}, 7, v{t0}\nv_lshlrev_b32 v{u6}, 7, v{u6}\nv_lshrrev_b32 v{u2}, 1, v{vG}\nv_lshl_add_u32 v{u6}, v{u2}, 12, v{u6}")
    a(f"v_lshlrev_b32 v{u2}, 11, v{u2}\nv_sub_u32 v{vQD}, 0x10000, v{u2}")
    a(f"s_cmp_eq_u32 s{sB}, 1\ns_cselect_b32 s{sT+4}, 0, 1")
    for dl in range(3):
        a(f"v_add_u32 v{t3}, {4*dl}, v{t1}")
        col_to_slot(t3)
        if dl == 2:
            a(f"v_cmp_eq_u32 vcc, 0, v{t1}\nv_mov_b32 v{t4}, s{sT+4}\nv_xor_b32 v{t5}, 3, v{u1}\nv_lshlrev_b32 v{t5}, 4, v{t5}")
            a(f"v_cndmask_b32 v{u2}, v{t4}, v{u2}, vcc\nv_cndmask_b32 v{u3}, v{t5}, v{u3}, vcc")
        a(f"v_xor_b32 v{u2}, v{u2}, v{u5}\nv_lshl_add_u32 v{u3}, v{u2}, 6, v{u3}\nv_add_u32 v{vRQ+dl}, v{u6}, v{u3}")
    a(f"v_and_b32 v{t2}, 6, v{t0}\nv_lshrrev_b32 v{t3}, 1, v{t1}\nv_and_b32 v{t4}, 1, v{t1}")
    a(f"v_lshlrev_b32 v{t4}, 3, v{t4}\nv_add_u32 v{t4}, v{u6}, v{t4}\nv_lshl_add_u32 v{t4}, v{t3}, 4, v{t4}")
    for T in range(4):
        a(f"v_xor_b32 v{t3}, {2*T}, v{t2}\nv_lshl_add_u32 v{vRO+T}, v{t3}, 4, v{t4}\nv_add_u32 v{vRO+T}, {WO}, v{vRO+T}")
    a(f"v_lshrrev_b32 v{t0}, 3, v0\nv_bfe_u32 v{t1}, v0, 2, 1\nv_bfe_u32 v{t2}, v0, 4, 1\nv_xor_b32 v{t1}, v{t1}, v{t2}")
    a(f"v_and_b32 v{t2}, 3, v0\nv_bfe_u32 v{t3}, v0, 5, 1\nv_lshlrev_b32 v{t3}, 1, v{t3}\nv_xor_b32 v{t2}, v{t2}, v{t3}")
    slot_to_col(t4, t1, t2, t5)
    a(f"v_and_b32 v{t1}, 3, v{t0}\nv_and_b32 v{t2}, 12, v{t0}\nv_lshl_or_b32 v{t1}, v{t2}, 1, v{t1}\nv_lshrrev_b32 v{t2}, 4, v{t0}\nv_lshl_or_b32 v{t1}, v{t2}, 2, v{t1}")
    a(f"v_lshl_add_u32 v{t4}, v{t4}, 4, s{sT+1}\nv_mad_u32_u24 v{t4}, v{t1}, s{sT+3}, v{t4}\nv_mov_b32 v{t1}, {OOB}\nv_cndmask_b32 v{vDQ}, v{t1}, v{t4}, vcc")
    a(f"s_and_b32 s{sT+4}, s{sX}, 3\ns_cmp_eq_u32 s{sT+4}, 2\ns_cselect_b32 s{sT+4}, 20, 18\ns_cmp_lt_u32 s{sJ}, s{sT+4}")
    a(f"s_cselect_b32 s{sG2}, 1, 0\ns_cselect_b32 s18, {576*1152}, 0")
    a(f"s_cmp_ge_u32 s{sJ}, 18\ns_cselect_b32 s{sT+4}, 16, 0\ns_mul_i32 s{sT+5}, s{sX}, 18\ns_add_u32 s{sT+5}, s{sT+5}, s{sJ}\ns_add_u32 s{sT+5}, s{sT+5}, s{sT+4}")
    a(f"s_mul_i32 s{sRB2}, s{sT+5}, 7282\ns_lshr_b32 s{sRB2}, s{sRB2}, 16\ns_mul_i32 s{sT+4}, s{sRB2}, 9\ns_sub_u32 s{sCB}, s{sT+5}, s{sT+4}")
    a(f"s_mov_b32 s16, s{pWO}\ns_mov_b32 s17, s{pWO+1}\ns_mov_b32 s19, 0x20000")
    a(f"s_sub_u32 s92, s{pW}, 2048\ns_subb_u32 s93, s{pW+1}, 0\ns_mov_b32 s94, {576*3456+2048}\ns_mov_b32 s95, 0x20000")
    srd(a, 20, pWS, SENT_SIZE)
    srd(a, 24, pDBG, 256)
    srd(a, 28, pOUT, 2048 * 2304)
    a(f"v_lshrrev_b32 v{t0}, 3, v0\nv_and_b32 v{t1}, 7, v0\nv_and_b32 v{t2}, 6, v{t0}\nv_xor_b32 v{t1}, v{t1}, v{t2}")
    a(f"s_lshl_b32 s{sT+4}, s{sCB}, 7\nv_lshl_add_u32 v{t1}, v{t1}, 4, s{sT+4}")
    a(f"v_mul_u32_u24 v{t2}, 1152, v{t0}\nv_add_u32 v{vDO}, v{t1}, v{t2}")
    a(f"v_bfe_u32 v{t2}, v{t0}, 2, 2\nv_lshrrev_b32 v{t3}, 4, v{t0}\nv_lshl_add_u32 v{t2}, v{t2}, 1, v{t3}\nv_mul_u32_u24 v{t2}, 36, v{t2}")
    a(f"v_and_b32 v{t3}, 3, v{t0}\nv_add3_u32 v{t2}, v{t2}, v{t3}, 32\nv_mul_u32_u24 v{t2}, 1152, v{t2}\nv_add_u32 v{vDO+1}, v{t1}, v{t2}")
    a(f"s_lshr_b32 s{sT+4}, s{sW}, 1\ns_mul_i32 s{sT+4}, s{sT+4}, 5120\ns_and_b32 s{sT+5}, s{sW}, 1\ns_lshl_b32 s{sT+5}, s{sT+5}, 3\ns_add_u32 s{sT+4}, s{sT+4}, s{sT+5}\ns_add_u32 s{sT+4}, s{sT+4}, {EX+20480}")
    a(f"v_lshl_add_u32 v{vEW2}, v{vL}, 4, s{sT+4}\ns_mul_i32 s{sT+4}, s{sW}, 5120\ns_add_u32 s{sT+4}, s{sT+4}, {EX}\nv_lshl_add_u32 v{vEW}, v{vL}, 4, s{sT+4}")
    a(f"s_lshl_b32 s{sT+5}, s{sW}, 2")
    for q in range(4):
        pk = sum(PAIRS[w][q // 2][q % 2] << (4 * w) for w in range(4))
        a(f"s_lshr_b32 s{sT+4}, {pk}, s{sT+5}\ns_and_b32 s{sT+4}, s{sT+4}, 15\ns_lshl_b32 s{sT+4}, s{sT+4}, 10\ns_add_u32 s{sT+4}, s{sT+4}, {EX}\nv_lshl_add_u32 v{vER+q}, v{vL}, 4, s{sT+4}")
    a(f"s_mul_i32 s{sT+4}, s{sP}, {11*S1_SLOT}\nv_lshl_add_u32 v{t0}, v0, 4, s{sT+4}\nv_mov_b32 v{t1}, {OOB}")
    a(f"v_cmp_gt_u32 vcc, 190, v0\nv_cndmask_b32 v{vGA}, v{t1}, v{t0}, vcc")
    a(f"v_mul_u32_u24 v{t0}, 96, v{vI}\nv_lshl_add_u32 v{t0}, v{vG}, 3, v{t0}\nv_add_u32 v{vFR}, {FM}, v{t0}")
    a(f"v_and_b32 v{t0}, 1, v{vI}\nv_mul_u32_u24 v{t0}, 96, v{t0}\nv_lshl_add_u32 v{t0}, v{vG}, 3, v{t0}\nv_add_u32 v{vFD}, {FM+36*96}, v{t0}")
    a(f"s_mul_i32 s{sT+4}, s{sRB}, 12\ns_add_u32 s{sT+4}, s{sT+4}, s{sW}\ns_lshl_b32 s{sT+4}, s{sT+4}, 4")
    a(f"s_lshr_b32 s34, s{sP}, 3\ns_xor_b32 s34, s34, s{sP}\ns_and_b32 s34, s34, 1\ns_lshl_b32 s34, s34, 3\ns_lshr_b32 s35, s{sP}, 1\ns_add_u32 s34, s34, s35")
    a(f"s_add_u32 s34, s34, s{sT+4}\ns_add_u32 s{sT+4}, s{sT+4}, s{sP}")
    a(f"s_lshl_b32 s{sT+5}, s34, 10\ns_add_u32 s{sT+5}, s{sT+5}, {S2_OFF}\nv_lshl_add_u32 v{vS2}, v{vL}, 4, s{sT+5}")
    a(f"s_lshl_b32 s{sT+5}, s{sT+4}, 7\ns_add_u32 s{sT+5}, s{sT+5}, {S2T_OFF}\nv_lshl_add_u32 v{t0}, v{vI}, 3, s{sT+5}")
    a(f"v_cndmask_b32 v{vS2T}, v{t1}, v{t0}, {S(sMG0,2)}")
    a(f"s_lshl_b32 s{sT+4}, s{sRB2}, 2\ns_add_u32 s{sT+4}, s{sT+4}, s{sW}")
    a(f"s_lshl_b32 s{sT+5}, s{sT+4}, 15\ns_add_u32 s{sT+5}, s{sT+5}, {S2_OFF}\nv_lshl_add_u32 v{vOL}, v{vL}, 4, s{sT+5}")
    a(f"s_lshl_b32 s{sT+5}, s{sT+4}, 12\ns_add_u32 s{sT+5}, s{sT+5}, {S2T_OFF}\nv_lshl_add_u32 v{t0}, v{vI}, 3, s{sT+5}\nv_lshl_add_u32 v{vOLT}, v{vG}, 8, v{t0}")
    if 'oldepi' in EXP:
        a(f"s_lshl_b32 s{sT+4}, s{sT+4}, 5\nv_add_u32 v{t0}, s{sT+4}, v{vI}\nv_mul_u32_u24 v{t0}, 2304, v{t0}")
        a(f"v_and_b32 v{t1}, 1, v{vG}\nv_lshl_add_u32 v{t0}, v{t1}, 5, v{t0}\nv_lshrrev_b32 v{t1}, 1, v{vG}\nv_lshl_add_u32 v{t0}, v{t1}, 4, v{t0}")
        a(f"s_lshl_b32 s{sT+4}, s{sCB}, 7\ns_add_u32 s{sT+4}, s{sT+4}, 1152\nv_add_u32 v{vOUT}, s{sT+4}, v{t0}")

    else:
        a(f"s_lshl_b32 s{sT+4}, s{sT+4}, 5\nv_lshrrev_b32 v{t1}, 3, v{vL}\nv_add_u32 v{t0}, s{sT+4}, v{t1}\nv_mul_u32_u24 v{t0}, 2304, v{t0}")
        a(f"v_and_b32 v{t2}, 7, v{vL}\nv_lshl_add_u32 v{t0}, v{t2}, 4, v{t0}\ns_lshl_b32 s{sT+4}, s{sCB}, 7\ns_add_u32 s{sT+4}, s{sT+4}, 1152\nv_add_u32 v{vOUT}, s{sT+4}, v{t0}")
        a(f"s_mul_i32 s{sT+4}, s{sW}, {32*144}\nv_mul_u32_u24 v{t1}, 144, v{t1}\nv_lshl_add_u32 v{t1}, v{t2}, 4, v{t1}\nv_add_u32 v{vBR}, s{sT+4}, v{t1}")
        a(f"v_mul_u32_u24 v{t1}, 144, v{vI}\nv_lshl_add_u32 v{t1}, v{vG}, 3, v{t1}\nv_add_u32 v{vBW}, s{sT+4}, v{t1}")
    a(f"v_mov_b32 v{vDBA}, 0")
    for q in range(4):
        b0, b1 = [0, 9, 1, 8][q], [0, 9, 1, 8][q ^ 1]
        a(f"s_bitcmp1_b32 s{sCB}, 0\ns_cselect_b32 s{sT+4}, {b1}, {b0}\ns_mul_i32 s{sWB+q}, s{sT+4}, {36*1152}")
    a(f"s_add_u32 s6, s4, L_TABB-L_PC\ns_addc_u32 s7, s5, 0\ns_mov_b32 s{sRETRY}, 0")
    a(f"v_mov_b32 v{t2}, 0\nv_mov_b32 v{t3}, 0\nv_mov_b32 v{t4}, 0\nv_mov_b32 v{t5}, 0\nv_lshlrev_b32 v{t0}, 4, v0\nv_add_u32 v{t1}, {FM}, v{t0}")
    a(f"ds_write_b128 v{t1}, {V(t2,4)}\nds_write_b128 v{t1}, {V(t2,4)} offset:4096")
    deferred, a = a.ins, main
    dd, deferred = take(deferred, max(n_crit, N_PRE)); a.ext(dd)
    print("address instructions:", n_crit, len(dd), len(deferred))
    prof(a, 0)
    for x in dx(1) + dk(1):
        a.ext(x)

    def rd_kv(s):
        o = Asm()
        fb = vFB + 20 * (s & 1)
        base = ((s >> 1) % NW) * 16384 + (s & 1) * 2048
        for T in range(5):
            for rd in range(2):
                o(f"ds_read_b64_tr_b16 {V(fb+4*T+2*rd,2)}, v{vRK+T} offset:{base+1024*rd}", tag=f"wr{s}")
        return o.ins

    def rd_x(P):
        o = Asm()
        for h in range(2):
            for tau in range(3):
                o(f"ds_read_b128 {A(xreg(2*P+h,tau),4)}, v{vXR+h} offset:{XR+(P % NX)*24576+tau*2048}", tag=f"xr{P}")
        return o.ins

    def mm_kv(s):
        o = Asm()
        o.wait(f"wr{s}")
        fb = vFB + 20 * (s & 1)
        for T in range(5):
            for tau in range(3):
                d = V(vACC + 4 * (5 * tau + T), 4)
                c = d if s else (V(vEPS, 4) if T < 2 else V(vEPS + 4, 4) if T == 2 else "0" if T == 3 else V(vC4 + 4 * (tau == 2), 4))
                o(f"v_mfma_f32_16x16x32_bf16 {d}, {A(xreg(s,tau),4)}, {V(fb+4*T,4)}, {c}")
        return o

    def rd_q(s):
        o = Asm()
        if s == 16:
            for dl in range(3):
                o(f"v_add_u32 v{vRQ+dl}, v{vQD}, v{vRQ+dl}")
        for dl in range(3):
            for rd in range(2):
                o(f"ds_read_b64_tr_b16 {V(vFQ+12*(s % 3)+4*dl+2*rd,2)}, v{vRQ+dl} offset:{qoff(s, rd)}", tag=f"qr{s}")
        return o.ins if s < 18 else []

    def mm_q(s):
        o = Asm()
        o.wait(f"qr{s}")
        for dl in range(3):
            for tau in range(3):
                d = V(vAQ + 4 * (3 * tau + dl), 4)
                o(f"v_mfma_f32_16x16x32_bf16 {d}, {V(vFQ+12*(s % 3)+4*dl,4)}, {A(xreg(s,tau),4)}, {d if s else V(vEPS,4)}")
        return o.ins
    flat = lambda L: [i for x in L for i in x]
    a.wait("x0", "k0"); prof(a, 36); a("s_barrier")
    rx = rd_x(0)
    a.ext(rx[:3] + rd_kv(0) + rx[3:])
    for P in range(9):
        w = Asm(); w.wait(f"xr{P}")
        if P < RAMP:
            ld = flat(dx(P + 2)) if P + 2 < 9 else []
        elif P == RAMP:
            ld = flat(dx(P + 2) + dk(P + 2)) if P + 2 < 9 else []
        elif P < 6:
            ld = w.ins + flat(dx(P + 3))
        else:
            ld = []
        if P == 7:
            ld += Asm()(f"v_lshlrev_b32 v{t0}, 4, v0\nglobal_load_dwordx4 {V(vTAB,4)}, v{t0}, s[6:7]").ins
        dd = []
        if 1 <= P < 6:
            dd, deferred = take(deferred, -(-len(deferred) // (12 - 2 * P)))
        a.ext(interleave(interleave(interleave(mm_kv(2 * P), dd, per=len(dd) / 14.0), ld, per=max(LDP, len(ld) / (14.0 - LDS_)), start=LDS_), rd_kv(2 * P + 1), per=KVP))
        fill, ld = [], []
        if P < 8:
            a.wait(f"x{P+1}", f"k{P+1}")
        if P >= 6:
            a.wait(f"xr{P}")
        if P == 8:
            a.wait("q3")
        a("s_barrier")
        if P < 8:
            rx = rd_x(P + 1)
            fill = rx[:3] + rd_kv(2 * P + 2) + rx[3:]
        else:
            fill = rd_q(0)
        if P < RAMP:
            ld = flat(dk(P + 2)) if P + 2 < 9 else []
        elif P < 6:
            ld = (w.ins + flat(dx(P + 3)) if P == RAMP else []) + flat(dk(P + 3))
        if P >= 6:
            ld += flat([dq(k) for k in range([0, 4, Q7][P - 6], [4, Q7, Q8][P - 6])])
        if P == 8:
            ld += Asm()(f"buffer_load_dword v{vDBG}, v{vDBA}, s[24:27], 0 offen sc1").ins
        dd = []
        if 1 <= P < 6:
            dd, deferred = take(deferred, -(-len(deferred) // (11 - 2 * P)))
        a.ext(interleave(interleave(interleave(mm_kv(2 * P + 1), dd, per=len(dd) / 14.0), ld, per=max(LDP, len(ld) / (14.0 - LDS_)), start=LDS_), fill, per=KVP * 1.2))
        if P in (0, 2, 4, 6):
            prof(a, 20 + P // 2)
    assert not deferred
    prof(a, 2)
    qstep = lambda s: spread(mm_q(s), rd_q(s + 1))
    fg = a
    bg = qstep(0) + qstep(1) + qstep(2) + mm_q(3)

    def slot(cnt):
        while bg and cnt:
            i = bg.pop(0); fg.ins.append(i)
            cnt -= i.kind == "mfma"
        while bg and bg[0].kind == "ds":
            fg.ins.append(bg.pop(0))
    n = 0
    qrest = [dq(k) for k in range(Q8, 18)]
    for T, tau in [(T, tau) for T in (3, 4, 0, 1, 2) for tau in (0, 1)] + [(T, 2) for T in (3, 4, 0, 1, 2)]:
        src = vACC + 4 * (5 * tau + T)
        pk = (vPK if (n >> 1) & 1 else vPH + 12) + 2 * (n & 1)
        if T >= 3:
            if n > 1:
                slot(1)
            fg(f"v_cvt_pk_bf16_f32 v{pk}, v{src}, v{src+1}\nv_cvt_pk_bf16_f32 v{pk+1}, v{src+2}, v{src+3}")
        else:
            phi4(fg, src, pk, vPH + 4 * (n & 1), keep=T == 2, slot=slot)
        if qrest and n >= 2:
            fg.ext(qrest.pop(0))
        if tau == 1:
            fg(f"ds_write_b128 v{vEW}, {V(pk-2,4)} offset:{1024*T}")
        elif tau == 2:
            fg(f"ds_write_b64 v{vEW2}, {V(pk,2)} offset:{1024*T}")
        n += 1
    a.ext(bg)
    assert not qrest
    a.wait("q7")
    a("s_waitcnt lgkmcnt(0)\ns_barrier")
    prof(a, 3)
    ef = lambda j, q: A(216 + 16 * j + 4 * q, 4) if j < 2 else V(56 + 16 * (j - 2) + 4 * q, 4) if j < 5 else V(156 + 4 * q, 4)
    a.ext(rd_q(4))
    er = Asm()
    for j in range(6):
        for q in range(4):
            er(f"ds_read_b128 {ef(j,q)}, v{vER+q} offset:{5120*j}")
    a.ext(er.ins[:8])
    a.ext(spread(mm_q(4), er.ins[8:]))
    a(f"s_mul_i32 s{sT}, s{sP}, 11\ns_add_u32 s{sT}, s{sT}, s{sRB}\ns_mul_i32 s{sT}, s{sT}, {S1_SLOT}")
    km = Asm()
    for j in range(6):
        for q in range(2):
            d = V(vKD + 4 * q, 4)
            km(f"v_mfma_f32_16x16x32_bf16 {d}, {ef(j,2*q)}, {ef(j,2*q+1)}, {'0' if j == 0 else d}")
    a.ext(spread(km, rd_q(5) + rd_q(6)))
    a(f"v_cmp_gt_u32 vcc, 8, v{vDBG}")
    m5 = mm_q(5)
    a.ext(spread(m5[:5], rd_q(7)))
    a(f"s_cbranch_vccnz L_B_INIT\nL_B_INIT_OK:")
    slow("L_B_INIT:")
    slow(f"buffer_load_dword v{vDBG}, v{vDBA}, s[24:27], 0 offen sc1\ns_add_u32 s{sRETRY}, s{sRETRY}, 1\ns_cmp_gt_u32 s{sRETRY}, 0x100000")
    slow(f"s_waitcnt vmcnt(0)\ns_cbranch_scc1 L_B_INIT_OK\nv_cmp_gt_u32 vcc, 8, v{vDBG}\ns_nop 1\ns_cbranch_vccnz L_B_INIT\ns_branch L_B_INIT_OK")
    st = Asm()
    for q in range(2):
        st(f"buffer_store_dwordx4 {V(vKD+4*q,4)}, v{vTAB+q}, s[20:23], s{sT} offen sc1")
    a.ext(spread(st, m5[5:]))
    a.wait("q17")
    a("s_barrier")
    prof(a, 4)

    def gather():
        o = Asm()
        for r in range(11):
            if r:
                o(f"s_mov_b32 s{sSO}, {r*S1_SLOT}")
            o(f"buffer_load_dwordx4 {V(vGAT+4*r,4)}, v{vGA}, s[20:23], {'s%d' % sSO if r else '0'} offen sc1")
        return o.ins
    ld = []
    for k in range(18):
        ld.append(dquad(16, vDO, "", sWB + (k >> 2), 72 * 1152 * (k & 3), WO, k, f"o{k}") if k < 16 else
                  dquad(16, vDO + 1, "", None, 288 * 1152 * (k - 16), WO, k, f"o{k}"))
    ga = gather()
    for s in range(6, 18):
        ex = []
        if GS <= s < GS + 3:
            ex += ga[:7]; ga = ga[7:]
        else:
            ex += flat(ld[:2]); ld = ld[2:]
        if s == 17:
            ex += Asm()(f"buffer_load_dword v{vDBG}, v{vDBA}, s[24:27], 0 offen offset:64 sc1").ins
        a.ext(spread(spread(mm_q(s), ex), rd_q(s + 2)))
    assert not ld and not ga
    prof(a, 5)
    for tau in range(3):
        for dl in range(3):
            phi4(a, vAQ + 4 * (3 * tau + dl), vPQ + 6 * tau + 2 * dl, 128 + 4 * (dl & 1))
    prof(a, 6)

    def check(o, regs, label):
        r = list(regs)
        o(f"v_max3_u32 v{vCK}, v{r[0]}, v{r[1]}, v{r[2]}")
        r = r[3:]
        while len(r) >= 2:
            o(f"v_max3_u32 v{vCK}, v{r[0]}, v{r[1]}, v{vCK}"); r = r[2:]
        if r:
            o(f"v_max_u32 v{vCK}, v{r[0]}, v{vCK}")
        o(f"v_cmp_eq_u32 vcc, -1, v{vCK}\ns_cbranch_vccnz {label}")

    def slow_path(name, loads, regs):
        slow(f"{name}:")
        slow.ext(loads)
        slow(f"s_add_u32 s{sRETRY}, s{sRETRY}, 1\ns_cmp_gt_u32 s{sRETRY}, 0x100000\ns_waitcnt vmcnt(0)\ns_cbranch_scc1 {name}_OK")
        check(slow, regs, name)
        slow(f"s_branch {name}_OK")
    def gsum(o):
        step = 1
        while step < 11:
            for r in range(0, 11 - step, 2 * step):
                for h in range(2):
                    o(f"v_pk_add_f32 {V(vGAT+4*r+2*h,2)}, {V(vGAT+4*r+2*h,2)}, {V(vGAT+4*(r+step)+2*h,2)}")
            step *= 2
    gsum(a)
    a(f"v_cmp_u_f32 vcc, v{vGAT}, v{vGAT+1}\nv_cmp_u_f32 {S(sT+4,2)}, v{vGAT+2}, v{vGAT+3}\ns_or_b64 vcc, vcc, {S(sT+4,2)}\ns_cbranch_vccnz L_B_GA\nL_B_GA_OK:")
    slow("L_B_GA:")
    slow.ext(gather())
    slow(f"s_add_u32 s{sRETRY}, s{sRETRY}, 1\ns_cmp_gt_u32 s{sRETRY}, 0x100000\ns_waitcnt vmcnt(0)\ns_cbranch_scc1 L_B_GA_OK")
    check(slow, range(vGAT, vGAT + 44), "L_B_GA")
    gsum(slow)
    slow("s_branch L_B_GA_OK")
    a(f"v_bfe_i32 v{t0}, v{vTAB+3}, 0, 1\nv_bfe_i32 v{t1}, v{vTAB+3}, 1, 1")
    a(f"v_cvt_pk_bf16_f32 v{t2}, v{vGAT}, v{vGAT+1}\nv_cvt_pk_bf16_f32 v{t3}, v{vGAT+2}, v{vGAT+3}")
    a(f"v_and_b32 v{t2}, v{t2}, v{t0}\nv_and_b32 v{t3}, v{t3}, v{t1}\nds_write_b64 v{vTAB+2}, {V(t2,2)}")
    a.wait("o17")
    a("s_waitcnt lgkmcnt(0)\ns_barrier")
    prof(a, 7)
    for h in range(2):
        a(f"ds_read_b64 {V(vFA+12+2*h,2)}, v{vFD} offset:{32*h}")
    a(f"ds_read_b64 {V(vFA+20,2)}, v{vFD} offset:64")
    for ep in range(3):
        for h in range(2):
            a(f"ds_read_b64 {V(vFA+4*ep+2*h,2)}, v{vFR} offset:{1536*ep+32*h}")
        if ep:
            a(f"ds_read_b64 {V(vFA+14+2*ep,2)}, v{vFR} offset:{1536*ep+64}")
    om_ = []
    for tau in range(3):
        o = Asm()
        b1, b2 = V(vPQ + 6 * tau, 4), V(vPQ + 6 * tau + 4, 2)
        for ep in (3, 0, 1, 2):
            d = V(vON + 16 * tau + 4 * ep, 4)
            o(f"v_mfma_f32_16x16x32_bf16 {d}, {V(vFA+4*ep,4)}, {b1}, {V(vEPS,4) if ep == 3 else '0'}")
        for ep in (3, 1, 2):
            d = V(vON + 16 * tau + 4 * ep, 4)
            o(f"v_mfma_f32_16x16x16_bf16 {d}, {V(vFA+14+2*ep,2)}, {b2}, {d}")
        om_.append(o.ins)
    su = Asm()
    for q in range(4):
        su(f"s_and_b32 s{sT+4}, s{sCB}, 1\ns_xor_b32 s{sT+4}, s{sT+4}, {q}\ns_lshl_b32 s{sOB+q}, s{sT+4}, 12\ns_add_u32 s{sWB+q}, s{sOB+q}, 16384")
    a.ext(spread(om_[0] + om_[1][:4], su.ins))
    a(f"v_cmp_gt_u32 vcc, 8, v{vDBG}\ns_cbranch_vccnz L_B_INI2\nL_B_INI2_OK:")
    slow("L_B_INI2:")
    slow(f"buffer_load_dword v{vDBG}, v{vDBA}, s[24:27], 0 offen offset:64 sc1\ns_add_u32 s{sRETRY}, s{sRETRY}, 1\ns_cmp_gt_u32 s{sRETRY}, 0x100000")
    slow(f"s_waitcnt vmcnt(0)\ns_cbranch_scc1 L_B_INI2_OK\nv_cmp_gt_u32 vcc, 8, v{vDBG}\ns_nop 1\ns_cbranch_vccnz L_B_INI2\ns_branch L_B_INI2_OK")
    for tau in range(3):
        n0 = vON + 16 * tau; of = vOF + 6 * tau; r = vR
        o = Asm()
        o(f"v_rcp_f32 v{r}, v{n0+12}\nv_rcp_f32 v{r+1}, v{n0+13}")
        if tau == 2:
            o(f"s_cmp_lt_u32 s{sRB}, 10\ns_cselect_b32 s{sT}, {2*65536}, {OOB}\ns_cselect_b32 s{sT+1}, {2*8192}, {OOB}") if False else None
            o(f"s_cmp_lt_u32 s{sRB}, 10\ns_cselect_b32 s{sT}, 0, {OOB}\ns_add_u32 s{sT+1}, s{sT}, {2*8192}\ns_add_u32 s{sT}, s{sT}, {2*65536}")
        else:
            o(f"s_mov_b32 s{sT}, {65536*tau}\ns_mov_b32 s{sT+1}, {8192*tau}")
        o(f"v_cndmask_b32 v{r+2}, v{r+1}, v{r}, {S(sMG0,2)}")
        if tau == 0:
            for q in range(12):
                o(f"v_mul_f32 v{n0+q}, v{r + (0 if q < 4 else 2 if q < 6 else 1)}, v{n0+q}")
        else:
            o(f"v_pk_mul_f32 {V(n0,2)}, {V(n0,2)}, {V(r,2)} op_sel_hi:[1,0]\nv_pk_mul_f32 {V(n0+2,2)}, {V(n0+2,2)}, {V(r,2)} op_sel_hi:[1,0]")
            o(f"v_pk_mul_f32 {V(n0+4,2)}, {V(n0+4,2)}, {V(r+2,2)} op_sel_hi:[1,0]")
            for q in (6, 8, 10):
                o(f"v_pk_mul_f32 {V(n0+q,2)}, {V(n0+q,2)}, {V(r,2)} op_sel:[0,1] op_sel_hi:[1,1]")
        for q in range(6):
            o(f"v_cvt_pk_bf16_f32 v{of+q}, v{n0+2*q}, v{n0+2*q+1}")
        o(f"buffer_store_dwordx4 {V(of,4)}, v{vS2}, s[20:23], s{sT} offen sc1")
        o(f"buffer_store_dwordx2 {V(of+4,2)}, v{vS2T}, s[20:23], s{sT+1} offen sc1")
        a.ext(spread(o, om_[1][4:] + om_[2]) if tau == 0 else o.ins)
    if prof.on:
        a(f"s_cmp_eq_u32 s{sG2}, 0\ns_cbranch_scc1 L_B_EXIT")
        pv = prof.prev
        slow("L_B_EXIT:"); prof(slow, 8, final=True); slow("s_endpgm")
        prof.prev = pv
    else:
        a(f"s_cmp_eq_u32 s{sG2}, 0\ns_cbranch_scc1 L_END")
    prof(a, 8)

    def wreg(k, T, n=4, o=0):
        return A(16 * k + 4 * T + o, n) if k < 16 else V(vWV + 16 * (k - 16) + 4 * T + o, n)
    om = lambda k, rt: vOM + 4 * (2 * k + rt)

    def oloads(ks):
        o = Asm()
        cur = None
        for k in ks:
            for rt in range(2):
                if k < 16:
                    o(f"buffer_load_dwordx4 {V(om(k,rt),4)}, v{vOL}, s[20:23], s{(sWB if rt else sOB) + (k >> 2)} offen offset:{1024*(k & 3)} sc1")
                else:
                    for hf in range(2):
                        o(f"buffer_load_dwordx2 {V(om(k,rt)+2*hf,2)}, v{vOLT}, s[20:23], 0 offen offset:{2048*rt+1024*(k-16)+128*hf} sc1")
        return o.ins
    def rd_o(ks):
        rd = Asm()
        for k in ks:
            if k == 16:
                for T in range(4):
                    rd(f"v_add_u32 v{vRO+T}, v{vQD}, v{vRO+T}")
            for T in range(4):
                for h in range(2):
                    rd(f"ds_read_b64_tr_b16 {wreg(k,T,2,2*h)}, v{vRO+T} offset:{qoff(k, h)}")
        return rd.ins
    rd = rd_o(range(RD0))
    late = rd_o(range(RD0, 18))
    groups = [list(range(4 * q, 4 * q + 4)) for q in range(4)] + [[16, 17]]
    gregs = lambda ks: [om(k, rt) + i for k in ks for rt in range(2) for i in range(4)]
    z = Asm()
    vCN = 10
    z(f"v_and_b32 v{vCK}, 63, v0\nv_lshlrev_b32 v{vCN}, 4, v{vCK}\nv_sub_u32 v{vCN}, v{vOL}, v{vCN}\nv_and_b32 v{vCN+1}, 1, v{vCK}\nv_lshl_add_u32 v{vCN}, v{vCN+1}, 14, v{vCN}")
    z(f"v_bfe_u32 v{vCN+1}, v{vCK}, 1, 2\nv_lshl_add_u32 v{vCN}, v{vCN+1}, 10, v{vCN}\nv_add_u32 v{vCN}, 1020, v{vCN}")
    z(f"v_readfirstlane_b32 s{sT+1}, v{vOLT}\nv_and_b32 v{vCN+1}, 31, v{vCK}\nv_lshlrev_b32 v{vCN+1}, 7, v{vCN+1}\nv_add_u32 v{vCN+1}, s{sT+1}, v{vCN+1}\nv_add_u32 v{vCN+1}, 124, v{vCN+1}")
    for i in range(32):
        z(f"v_mov_b32 v{vA2+i}, 0")
    isds = lambda i: i.kind == "ds"
    a.ext(interleave(interleave(rd, z, per=1, start=8 * RD0 - 48, pred=isds), oloads(groups[0] + groups[1]), per=OL_PER, start=OL_START, pred=isds))
    prof(a, 9)

    def mm_o(ks):
        o = Asm()
        for k in ks:
            for rt in range(2):
                for T in range(4):
                    d = V(vA2 + 4 * (4 * rt + T), 4)
                    o(f"v_mfma_f32_16x16x32_bf16 {d}, {wreg(k,T)}, {V(om(k,rt),4)}, {d}")
        return o

    def epilogue(rt):
        o = Asm()
        for T in range(4):
            n0 = vA2 + 4 * (4 * rt + T); p0 = vOM + 2 * (4 * rt + T)
            o(f"v_cvt_pk_bf16_f32 v{p0}, v{n0}, v{n0+1}\nv_cvt_pk_bf16_f32 v{p0+1}, v{n0+2}, v{n0+3}")
            o(f"ds_write_b64 v{vBW}, {V(p0,2)} offset:{16*144*rt+32*T}")
        for q in (2 * rt, 2 * rt + 1):
            o(f"ds_read_b128 {V(vOM+16+4*q,4)}, v{vBR} offset:{8*144*q}")
        for q in (2 * rt, 2 * rt + 1):
            if q:
                o(f"s_mov_b32 s{sT}, {8*2304*q}")
            o(f"buffer_store_dwordx4 {V(vOM+16+4*q,4)}, v{vOUT}, s[28:31], {'s%d' % sT if q else '0'} offen {OUT_FLAGS}")
        return o
    if 'oldepi' in EXP:
        def epilogue(rt):
            o = Asm()
            for u in range(2):
                p0 = vOM + 4 * (2 * rt + u)
                for h in range(2):
                    n0 = vA2 + 4 * (4 * rt + 2 * u + h)
                    o(f"v_cvt_pk_bf16_f32 v{p0+2*h}, v{n0}, v{n0+1}\nv_cvt_pk_bf16_f32 v{p0+2*h+1}, v{n0+2}, v{n0+3}")
                o(f"v_permlane16_swap_b32 v{p0}, v{p0+2}\nv_permlane16_swap_b32 v{p0+1}, v{p0+3}")
                o(f"buffer_store_dwordx4 {V(p0,4)}, v{vOUT}, s[28:31], {'s%d' % sT if rt else '0'} offen offset:{64*u} {OUT_FLAGS}")
            return o

    sPEND, sFORCE, sREADY = 83, 84, 85
    a(f"s_mov_b32 s{sT}, {16*2304}")
    taken = 0
    check(a, gregs(groups[0]), "L_B_R0")
    a("L_B_R0_OK:")
    for gi, ks in enumerate(groups):
        m = mm_o(ks).ins
        if gi < 4:
            c = Asm(); check(c, gregs(groups[gi + 1]), f"L_B_R{gi+1}")
            if gi + 2 < 5:
                m = interleave(m, oloads(groups[gi + 2]), per=0.3)
            need = max(0, 8 * (min(18, 4 * gi + 12) - RD0) + (4 if 4 * gi + 12 > 16 else 0) - taken)
            m = interleave(m, late[taken:taken + need], per=need / 30.0); taken += need
            a.ext(interleave(m, c.ins[:-1], per=1, start=32 - len(c.ins)))
            a.ext(c.ins[-1:])
            a(f"L_B_R{gi+1}_OK:")
        else:
            m0 = [i for n, i in enumerate(m) if (n >> 2) & 1 == 0]; m1 = [i for n, i in enumerate(m) if (n >> 2) & 1]
            a.ext(m0 + m1[:3])
            a.ext(spread(epilogue(0), m1[3:]))
            a.ext(epilogue(1))
        prof(a, 10 + gi)
    pv = prof.prev
    prof(a, 16, final=True)
    a("s_endpgm")
    dyn = Asm()
    for gi, ks in enumerate(groups):
        dyn(f"L_B_R{gi}:")
        if 'nocanary' not in EXP:
            if gi < 4:
                dyn(f"buffer_load_dword v{vCK}, v{vCN}, s[20:23], s{sOB+gi} offen sc1")
            else:
                dyn(f"buffer_load_dword v{vCK}, v{vCN+1}, s[20:23], 0 offen sc1")
            dyn(f"s_add_u32 s{sRETRY}, s{sRETRY}, 1\ns_cmp_gt_u32 s{sRETRY}, 0x100000\ns_waitcnt vmcnt(0)\ns_cbranch_scc1 L_B_R{gi}_OK")
            dyn(f"v_cmp_eq_u32 vcc, -1, v{vCK}\ns_cbranch_vccnz L_B_R{gi}")
        dyn.ext(oloads(ks + (groups[gi + 1] if gi < 4 and 'norefresh' not in EXP else [])))
        dyn(f"s_add_u32 s{sRETRY}, s{sRETRY}, 1\ns_cmp_gt_u32 s{sRETRY}, 0x100000\ns_waitcnt vmcnt({(8 if gi < 4 and 'norefresh' not in EXP else 0)})\ns_cbranch_scc1 L_B_R{gi}_OK")
        check(dyn, gregs(ks), f"L_B_R{gi}")
        dyn(f"s_waitcnt vmcnt(0)\ns_branch L_B_R{gi}_OK")
    return finish(a) + finish(slow) + finish(dyn)
```

```python
from asmlib import *
NAME = "concat_heads__ssm_conv_s4__linear_attn_block__prompt_kernel"
pLOGDT, pDSKIP, pX, pW, pWO, pOUT, pDBG, pWS = 36, 38, 40, 42, 44, 46, 48, 50
sX, sJ, sNA = 3, 33, 32
S1_SLOT = 3072
S1_OFF = 0
S2_OFF = 16 * 11 * S1_SLOT
S2T_OFF = S2_OFF + 128 * 16 * 1024
SENT_SIZE = S2T_OFF + 128 * 16 * 128
PROF_OFF = 4 << 20
OOB = 0x40000000

def srd(a, r, p, size):
    a(f"s_mov_b32 s{r}, s{p}\ns_mov_b32 s{r+1}, s{p+1}\ns_mov_b32 s{r+2}, {size}\ns_mov_b32 s{r+3}, 0x20000")

class Prof:
    def __init__(self, on): self.on = on; self.prev = None
    def start(self, a):
        if self.on: a("s_memrealtime s[96:97]\ns_memtime s[100:101]\nv_mov_b32 v255, 0")
    def reset(self): self.prev = None
    def __call__(self, a, k, final=False):
        if not self.on: return
        if self.prev is not None: a(f"v_writelane_b32 v255, s98, {self.prev}")
        a("s_memtime s[98:99]"); a.ins[-1].kind = "other"; a.ins[-1].dst = []
        self.prev = k
        if final:
            a(f"s_waitcnt vmcnt(0) lgkmcnt(0)\nv_writelane_b32 v255, s98, {k}\ns_memtime s[98:99]\ns_memrealtime s[90:91]\ns_waitcnt lgkmcnt(0)")
            a("v_writelane_b32 v255, s98, 60\nv_writelane_b32 v255, s90, 61\nv_writelane_b32 v255, s96, 62\nv_writelane_b32 v255, s100, 63")
            a(f"s_mov_b32 s92, s{pWS}\ns_mov_b32 s93, s{pWS+1}\ns_mov_b32 s94, {PROF_OFF + (1 << 20)}\ns_mov_b32 s95, 0x20000")
            a(f"s_lshl_b32 s98, s2, 10\ns_add_u32 s98, s98, {PROF_OFF}\nv_lshl_add_u32 v254, v0, 2, s98")
            a("buffer_store_dword v255, v254, s[92:95], 0 offen\ns_waitcnt vmcnt(0)")
            self.prev = None


def pf_load(a, vaddr, srdreg, so):
    a(f"buffer_load_dword v252, v{vaddr}, s[{srdreg}:{srdreg+3}], s{so} offen")
    a.ins[-1].dst = []


def take(lst, n):
    n = min(n, len(lst))
    while 0 < n < len(lst) and (lst[n].op.startswith(("s_cselect", "s_addc", "s_subb", "s_cbranch")) or lst[n - 1].op.startswith(("s_cmp", "s_bitcmp"))):
        n += 1
    return lst[:n], lst[n:]


class Probe:
    on = False
    def __init__(self, role, k): self.role, self.k, self.prev, self.cur, self.n = role, k, None, None, 0
    def start(self, a): pass
    def __call__(self, a, k, final=False):
        if self.cur == self.role and k == self.k:
            if final: a("s_waitcnt vmcnt(0)")
            a("s_memrealtime s[96:97]"); a.ins[-1].kind = "other"; a.ins[-1].dst = []
        if final and self.cur == self.role:
            self.n += 1
            a(f"s_waitcnt vmcnt(0) lgkmcnt(0)\ns_add_u32 s96, s96, 3000\nL_PRB{self.n}:\ns_memrealtime s[98:99]\ns_waitcnt lgkmcnt(0)\ns_sub_u32 s98, s98, s96\ns_cmp_lt_i32 s98, 0\ns_cbranch_scc1 L_PRB{self.n}")
```

```python
import sys
from asmlib import *
from gen_common import *
import gen_a
def build(prof_on=False, with_b=True):
    prof = Prof(prof_on)
    import os
    if os.environ.get('PROBE'):
        r, k = os.environ['PROBE'].split(',')
        prof = Probe(r, int(k))
    e = Asm()
    prof.start(e)
    e("s_load_dwordx16 s[36:51], s[0:1], 56")
    e("s_cmp_ge_u32 s2, 256\ns_cbranch_scc1 L_END")
    e("s_getpc_b64 s[4:5]\nL_PC:")
    e(f"s_lshr_b32 s{sJ}, s2, 3\ns_and_b32 s{sX}, s2, 7\ns_cmp_ge_u32 s{sJ}, 2\ns_cbranch_scc1 L_NOPF")
    e(f"s_lshl_b32 s6, s{sJ}, 15\nv_lshl_add_u32 v1, v0, 7, s6\nv_min_u32 v1, L_LAST-L_PC, v1\nglobal_load_dword v253, v1, s[4:5]")
    e("L_NOPF:")
    e(f"s_and_b32 s6, s{sX}, 3\ns_cmp_eq_u32 s6, 3\ns_cselect_b32 s{sNA}, 16, 8\ns_cmp_ge_u32 s{sJ}, s{sNA}\ns_cbranch_scc1 L_B")
    prof.cur = 'A'
    a_head, a_rest = gen_a.gen_a(prof)
    prof.cur = 'B'
    ins = e.ins + a_head + Asm()(f"L_B:\ns_sub_u32 s{sJ}, s{sJ}, s{sNA}").ins
    tabs = []
    if with_b:
        import gen_b
        ins = ins + gen_b.gen_b(prof)
        tabs.append(("L_TABB", gen_b.table_b()))
    else:
        ins = ins + Asm()("s_endpgm").ins
    ins = ins + a_rest
    tabs.append(("L_TABA", gen_a.table_a()[[5, 4, 0, 1, 2, 3]]))
    head = open("concat_heads__ssm_conv_s4__linear_attn_block__prompt.s.ref").read().split("\n")
    hdr = [l for l in head if l.startswith(";") and "@launch" not in l and "Override" not in l and "grid=ceil" not in l]
    hdr = hdr[:17]
    out = hdr + ["; @launch grid=(256,1,1) block=(256,1,1) lds=163840", '.amdgcn_target "amdgcn-amd-amdhsa--gfx950"', ".text",
                 f".globl {NAME}", ".p2align 12", ".p2align 8", f".type {NAME},@function", f"{NAME}:"]
    out.append(text_of(ins))
    out.append("L_END:\ns_endpgm")
    for lab, T in tabs:
        out.append(f".p2align 7\n.type {lab},@object\n{lab}:")
        fl = T.reshape(-1)
        for i in range(0, len(fl), 8):
            out.append(".long " + ", ".join(hex(int(x)) for x in fl[i:i+8]))
        out.append(f".size {lab}, {4*len(fl)}")
    out.append(".type L_LAST,@object\nL_LAST:\n.long 0\n.size L_LAST, 4")
    out.append(f'.section .rodata,"a"\n.p2align 6\n.amdhsa_kernel {NAME}\n  .amdhsa_next_free_vgpr 512\n  .amdhsa_next_free_sgpr 102\n  .amdhsa_accum_offset 256\n  .amdhsa_group_segment_fixed_size 0\n  .amdhsa_kernarg_size 120\n  .amdhsa_user_sgpr_count 2\n  .amdhsa_user_sgpr_kernarg_segment_ptr 1\n  .amdhsa_system_sgpr_workgroup_id_x 1\n.end_amdhsa_kernel')
    return "\n".join(out) + "\n"
if __name__ == "__main__":
    path = sys.argv[1]
    s = build(prof_on="prof" in sys.argv, with_b="noB" not in sys.argv)
    open(path, "w").write(s)
    print("wrote", path, len(s), "bytes")
```

```python
from asmlib import *
from gen_common import *
import numpy as np

SU = 4640
SY = 4160
KGW = 32 * 528
KG = 0
UT = 4 * KGW
U0 = UT + 8 * SU
YT = U0
KA0 = U0 + 8 * SY
KASZ = 3712
A_LDS_END = KA0 + 4 * KASZ
KE, KO, K2, K3 = 0, 1216, 2432, 2944
XC = list(range(9)) + [256, 258, 260, 262, 264, 516, 520, 772, 776, 1032, 1288, 1544, 1800]


def table_a():
    T = np.zeros((6, 64, 4), np.uint32)
    one = 0x3F80
    for l in range(64):
        r, g = l % 16, l // 16
        for bi, (ctr, w) in enumerate([(8, 2), (12, 1), (8, 4), (8, 3)]):
            for dw in range(4):
                v = 0
                for hf in range(2):
                    k = 8 * g + 2 * dw + hf
                    if abs(k - (r + ctr)) <= w:
                        v |= one << (16 * hf)
                T[bi, l, dw] = v
        for dw in range(4):
            v = 0
            for hf in range(2):
                if 8 * g + 2 * dw + hf - r in (12, 13):
                    v |= 0xFFFF << (16 * hf)
            T[4, l, dw] = v
        io, hh = l % 32, l // 32
        rho, h = 4 * (io // 8) + io % 4, (io // 4) % 2
        if rho < 5:
            c = 4 * h + rho
        elif rho < 8:
            c = 256 + 4 * h + 2 * (rho - 5)
        elif rho < 12:
            c = [(516, 772), (520, 776), (1032, 1544), (1288, 1800)][rho - 8][h]
        else:
            c = 0
        T[5, l, 0] = XC.index(c) * 528 + 16 * hh
    return T


vLANE = 1
vP = 2
vTAB5 = 14
vMASK = 18
vKGW, vKGB, vKGA = 22, 23, 24
vT0, vT1, vT2, vT3 = 25, 26, 27, 28
vKW, vK2W, vK3W = 29, 30, 31
vW = 32
vD = 96
vKFA, vKFB, vHK2, vHK3, vUF, vA2, vA3, vYW = 112, 113, 114, 115, 116, 117, 118, 119
vACC = 120
vBXD = 152
vBX = 168
vKFX = 184
vEP = 188
vZ = 192
vDMA, vTR0, vTR1, vTW, vOR, vOS = 196, 197, 198, 199, 200, 201
vTB = 204
vKA = 228
aBAND = 0
aY = 16
aX = 80
aKFS = (184, 16)
aHK2 = 84
aHK3 = 108
aUF = 140
aAP = 168
sW, sAG, sIDX, sJJ, sWI = 68, 69, 70, 71, 77
sLDT, sDSK = 72, 73
sT0, sT1, sT2 = 74, 75, 76
sKG, sU0 = 78, 79
sEX = 80


import os
Y_FLAGS = os.environ.get("YF", "")
EXP = os.environ.get("EXP", "").split(",")
sUB, sTB = 84, 85
vFP = 244
FARW = int(os.environ.get('FARW', 1))
FAR_AT = int(os.environ.get('FAR', 44))
NT = os.environ.get("NT", "none").split(",")
nt = lambda k: " nt" if k in NT else ""
_PLANS = {
    "0": ([(0, 2), (0, 36), (0, 46), (0, 55), (1, 8), (1, 19), (1, 30), (1, 41)], [(0, 50), (0, 55), (1, 3), (1, 13), (1, 24), (1, 35), (1, 46), (1, 55)]),
    "1": ([(0, 30), (0, 55), (1, 5), (1, 13), (1, 21), (1, 29), (1, 37), (1, 45)], [(1, 2), (1, 9), (1, 17), (1, 25), (1, 33), (1, 41), (1, 49), (1, 55)]),
    "2": ([(0, 2), (0, 24), (0, 33), (0, 42), (0, 51), (1, 2), (1, 11), (1, 20)], [(0, 37), (0, 46), (0, 55), (1, 6), (1, 15), (1, 24), (1, 33), (1, 42)]),
    "3": ([(0, 44), (1, 2), (1, 9), (1, 16), (1, 23), (1, 30), (1, 37), (1, 44)], [(1, 5), (1, 12), (1, 19), (1, 26), (1, 33), (1, 40), (1, 48), (1, 55)]),
}
DMA_PLAN, TR_PLAN = _PLANS[os.environ.get("UPLAN", "0")]


def far_pf(a, st, va, tmp):
    u = id(a) % 100000 + len(a.ins)
    a(f"s_cmp_ge_u32 s{st}, 81\ns_cbranch_scc1 L_FP{u}")
    a(f"s_mul_i32 s{tmp}, s{st}, 7282\ns_lshr_b32 s{tmp}, s{tmp}, 16\ns_mul_i32 s{tmp}, s{tmp}, {64*27-9}\ns_add_u32 s{tmp}, s{tmp}, s{st}\ns_lshl_b32 s{tmp}, s{tmp}, 7")
    pf_load(a, va, 12, tmp); a.ins[-1].kind = "other"
    a(f"s_branch L_FQ{u}\nL_FP{u}:\ns_sub_u32 s{tmp}, s{st}, 81\ns_lshl_b32 s{tmp}, s{tmp}, 13")
    pf_load(a, va + 1, 24, tmp); a.ins[-1].kind = "other"
    a(f"L_FQ{u}:")


def cmul(a, z, x, y, t, conj=False):
    n = "neg_hi:[1,0,0]" if conj else "neg_lo:[1,0,0]"
    return [f"v_pk_mul_f32 {V(t,2)}, {V(x,2)}, {V(y,2)} op_sel_hi:[1,0]",
            f"v_pk_fma_f32 {V(z,2)}, {V(x,2)}, {V(y,2)}, {V(t,2)} op_sel:[1,1,0] op_sel_hi:[0,1,1] {n}"]


base = [vW, vW + 30]
AB, E1, E8, G, X, T, S0, S1, U = 0, 2, 4, 6, 8, 10, 12, 14, 16
CC, BB = 18, 20
PK = vW + 60


def ksetup(ch):
    a = Asm()
    p = vP + 6 * ch
    dt = vW + 24
    if ch == 0:
        a(f"s_lshl_b32 s{sT0}, s{sLDT}, 16")
    else:
        a(f"s_and_b32 s{sT0}, s{sLDT}, 0xffff0000")
    a(f"v_mov_b32 v{dt}, s{sT0}\nv_mul_f32 v{dt}, 0x3fb8aa3b, v{dt}\nv_exp_f32 v{dt}, v{dt}")
    for n in range(2):
        b = base[n]
        un = (lambda d, s: f"v_lshlrev_b32 v{d}, 16, v{s}") if n == 0 else (lambda d, s: f"v_and_b32 v{d}, 0xffff0000, v{s}")
        a(un(b + AB, p + 0)); a(un(b + AB + 1, p + 1))
        if n == 0:
            a(f"v_cvt_pk_bf16_f32 v{dt}, v{dt}, v{dt}\nv_lshlrev_b32 v{dt}, 16, v{dt}")
        a(un(b + BB, p + 2)); a(un(b + BB + 1, p + 3))
        a(un(b + CC, p + 4)); a(un(b + CC + 1, p + 5))
    for n in range(2):
        b = base[n]
        a(f"v_mul_f32 v{b+AB}, v{dt}, v{b+AB}\nv_mul_f32 v{b+AB+1}, v{dt}, v{b+AB+1}")
        a(f"v_mul_f32 v{b+AB}, 0x3fb8aa3b, v{b+AB}\nv_mul_f32 v{b+AB+1}, 0x3e22f983, v{b+AB+1}")
    for dst, mul in ((E8, "0x41000000"), (E1, None), (G, "0x43800000")):
        for n in range(2):
            b = base[n]
            if mul is None:
                a(f"v_exp_f32 v{b+U}, v{b+AB}\nv_fract_f32 v{b+T}, v{b+AB+1}")
            else:
                a(f"v_mul_f32 v{b+U}, {mul}, v{b+AB}\nv_mul_f32 v{b+T}, {mul}, v{b+AB+1}")
                a(f"v_exp_f32 v{b+U}, v{b+U}\nv_fract_f32 v{b+T}, v{b+T}")
        for n in range(2):
            b = base[n]
            a(f"v_cos_f32 v{b+dst}, v{b+T}\nv_sin_f32 v{b+dst+1}, v{b+T}")
        if dst == E8:
            for n in range(2):
                b = base[n]
                a(f"v_mul_f32 v{b+BB}, v{dt}, v{b+BB}\nv_mul_f32 v{b+BB+1}, v{dt}, v{b+BB+1}")
                a(f"v_mul_f32 v{b+X}, v{b+CC}, v{b+BB}\nv_mul_f32 v{b+X+1}, v{b+CC}, v{b+BB+1}")
                a(f"v_fma_f32 v{b+X}, -v{b+CC+1}, v{b+BB+1}, v{b+X}\nv_fma_f32 v{b+X+1}, -v{b+CC+1}, v{b+BB}, -v{b+X+1}")
        for n in range(2):
            b = base[n]
            a(f"v_mul_f32 v{b+dst}, v{b+dst}, v{b+U}\nv_mul_f32 v{b+dst+1}, v{b+dst+1}, v{b+U}")
    return a


def kgen(a, ch, prof, hook, shadow):
    cnt = [0]

    def put(reg, row):
        pk = PK + 2 * (cnt[0] & 1); cnt[0] += 1
        a(f"v_cvt_pk_bf16_f32 v{pk}, v{base[0]+reg}, v{base[0]+reg+1}")
        a(f"v_cvt_pk_bf16_f32 v{pk+1}, v{base[1]+reg}, v{base[1]+reg+1}")
        a(f"ds_write_addtid_b32 v{pk} offset:{row*528}\nds_write_addtid_b32 v{pk+1} offset:{row*528+256}")
        hook(a, ch, cnt[0])

    def mul2(z, x, y, conj):
        m = [cmul(a, base[n] + z, base[n] + x, base[n] + y, base[n] + T, conj) for n in range(2)]
        a(m[0][0]); a(m[1][0]); a(m[0][1]); a(m[1][1])
    prof(a, 10 + 5 * ch)
    a(f"v_mov_b32 v{PK}, 0x3f80\nds_write_addtid_b32 v{PK}\nds_write_addtid_b32 v{PK} offset:256")
    cnt[0] = 1
    put(E8, 1)
    mul2(S0, E8, E8, False); put(S0, 2)
    for j in range(3, 32):
        mul2(S0, S0, E8, False); put(S0, j)
    prof(a, 11 + 5 * ch)
    for k in range(16):
        a(f"ds_read_b128 {A(aY+4*k,4)}, v{vKGB} offset:{32*k}")
        if k == 7:
            mul2(U, X, G, True)
    prof(a, 12 + 5 * ch)
    for c in range(9):
        if c:
            mul2(X, X, E1, True)
        put(X, c)
        if c % 2 == 0:
            d = S0 if c == 4 else (S1 if c == 8 else U)
            if c:
                mul2(d, X, G, True)
            put(d, XC.index(256 + c))
    for c in (516, 772):
        mul2(S0, S0, G, True); put(S0, XC.index(c))
        mul2(S1, S1, G, True); put(S1, XC.index(c + 4))
    for c in (1032, 1288, 1544, 1800):
        mul2(S1, S1, G, True); put(S1, XC.index(c))
    prof(a, 13 + 5 * ch)
    for k in range(4):
        a(f"ds_read_b128 {A(aX+4*k,4)}, v{vKGA} offset:{32*k}")
    if ch == 0:
        a(f"s_mul_i32 s{sT2}, s{sW}, {KASZ}\ns_add_u32 s{sT2}, s{sT2}, {KA0}")
    else:
        a(f"s_mul_i32 s{sT2}, s{sW}, {KGW}\ns_add_u32 s{sT2}, s{sT2}, {KG}")
    a(f"v_lshl_add_u32 v{vT0}, v{vLANE}, 4, s{sT2}")
    a(f"v_add_u32 v{vT1}, s{sT2}, v{vKW}\nv_add_u32 v{vT2}, s{sT2}, v{vK2W}\nv_add_u32 v{vT3}, s{sT2}, v{vK3W}")
    if ch == 0:
        a(f"s_lshl_b32 s{sT1}, s{sDSK}, 16")
    else:
        a(f"s_and_b32 s{sT1}, s{sDSK}, 0xffff0000")
    m = Asm()
    sh = list(shadow)
    for k in range(16):
        m(f"v_mfma_f32_32x32x16_bf16 {V(vD,16)}, {A(aX+4*k,4)}, {A(aY+4*k,4)}, {'0' if k == 0 else V(vD,16)}")
        if k < 12:
            m(f"ds_read_b128 {A(aX+4*k+16,4)}, v{vKGA} offset:{32*k+128}")
        if k in (12, 13, 14):
            m(f"ds_write_b128 v{vT0}, {V(vZ,4)} offset:{(k-12)*1024}")
        n = -(-len(sh) // (16 - k))
        dd, sh = take(sh, n); m.ext(dd)
    a.ext(m)
    prof(a, 14 + 5 * ch)
    hook(a, ch, 55)
    a(f"s_mov_b32 exec_hi, 0xff\nds_write_b128 v{vT0}, {V(vZ,4)} offset:3072\ns_mov_b64 exec, 1")
    a(f"v_add_f32 v{vD}, s{sT1}, v{vD}\ns_mov_b64 exec, -1")
    t = vACC
    d = vD
    a(f"v_cvt_pk_bf16_f32 v{t}, v{d+3}, v{d+2}\nv_cvt_pk_bf16_f32 v{t+1}, v{d+1}, v{d}")
    a(f"v_cvt_pk_bf16_f32 v{t+2}, v{d+4}, v{d+3}\nv_cvt_pk_bf16_f32 v{t+3}, v{d+2}, v{d+1}")
    a(f"ds_write_b64 v{vT1}, {V(t,2)} offset:{KO+512}\nds_write_b64 v{vT1}, {V(t+2,2)} offset:{KE+512}")
    a(f"v_cvt_pk_bf16_f32 v{t+4}, v{d+7}, v{d+6}\nv_cvt_pk_bf16_f32 v{t+5}, v{d+5}, v{d+5}")
    a(f"v_cvt_pk_bf16_f32 v{t+6}, v{d+7}, v{d+7}\nv_cvt_pk_bf16_f32 v{t+7}, v{d+6}, v{d+5}")
    a(f"ds_write_b64 v{vT1}, {V(t+4,2)} offset:{KO}\nds_write_b64 v{vT1}, {V(t+6,2)} offset:{KE}")
    a(f"v_cvt_pk_bf16_f32 v{t+8}, v{d+8}, v{d+9}\nv_cvt_pk_bf16_f32 v{t+9}, v{d+10}, v{d+11}")
    a(f"ds_write_b16 v{vT2}, v{t+8} offset:{K2+256}\nds_write_b16_d16_hi v{vT2}, v{t+8} offset:{K2}")
    a(f"ds_write_b16 v{vT3}, v{t+9} offset:{K3+32}\nds_write_b16 v{vT3}, v{t+9} offset:{K3+32+190}")
    a(f"ds_write_b16_d16_hi v{vT3}, v{t+9} offset:{K3}\nds_write_b16_d16_hi v{vT3}, v{t+9} offset:{K3+190}")
    a(f"v_and_b32 v{t+10}, 0xffff0000, v{t+6}\nv_mov_b32 v{t+11}, v{t+6}\nv_lshrrev_b32 v{t+12}, 16, v{t+1}")
    a(f"v_mov_b32 v{t+13}, s{sT2}")
    a(f"s_mov_b32 exec_lo, 0\ns_mov_b32 exec_hi, 0x80000000")
    a(f"ds_write_b32 v{t+13}, v{t+6} offset:{KE+60}\nds_write_b64 v{t+13}, {V(t+10,2)} offset:{KO+56}")
    a(f"s_mov_b64 exec, 1\nds_write_b32 v{t+13}, v{t+12} offset:{KE+1088}\ns_mov_b64 exec, -1")
    a(f"v_readlane_b32 s{82+ch}, v{t+8}, 63")
    hook(a, ch, 57)


def conv_addr():
    a = Asm()
    for ch in range(2):
        if ch == 0:
            a(f"s_mul_i32 s34, s{sW}, {KASZ}\ns_add_u32 s34, s34, {KA0}")
        else:
            a(f"s_mul_i32 s34, s{sW}, {KGW}")
        kfa, kfb, hk2, hk3, uf, a2, a3, yw = range(vKA + 8 * ch, vKA + 8 * ch + 8)
        a(f"v_add_u32 v{kfa}, s34, v{vKFA}\nv_add_u32 v{kfb}, s34, v{vKFB}\nv_add_u32 v{hk2}, s34, v{vHK2}\nv_add_u32 v{hk3}, s34, v{vHK3}")
        a(f"s_lshl_b32 s34, s{sW}, 1\ns_add_u32 s34, s34, {ch}\ns_mul_i32 s35, s34, {SY}\ns_mul_i32 s34, s34, {SU}")
        a(f"v_add_u32 v{uf}, s34, v{vUF}\nv_add_u32 v{a2}, s34, v{vA2}\nv_add_u32 v{a3}, s34, v{vA3}\nv_add_u32 v{yw}, s35, v{vYW}")
    return a


def rd_kf(ch, s):
    r = aKFS[ch] + 4 * s
    ad, o = (vKA + 8 * ch + 1, 0) if s == 0 else (vKA + 8 * ch, 16 * (16 - s))
    return [f"ds_read2_b32 {A(r,2)}, v{ad} offset0:{o} offset1:{o+1}", f"ds_read2_b32 {A(r+2,2)}, v{ad} offset0:{o+2} offset1:{o+3}"]


def kfx(ch):
    o = [f"s_lshr_b32 s34, s{82+ch}, 16", f"s_and_b32 s35, s{82+ch}, 0xffff0000", "s_or_b32 s34, s34, s35"]
    return o + [f"v_and_b32 v{vKFX+k}, s34, v{vMASK+k}" for k in range(4)]


def conv(a, ch, prof):
    kfa, kfb, hk2, hk3, uf, a2, a3, yw = range(vKA + 8 * ch, vKA + 8 * ch + 8)
    aKF = aKFS[ch]

    def rd_hk2(pi, dl):
        r = aHK2 + 4 * (3 * pi + dl); o = 16 * (2 - dl) + 64 * pi
        return [f"ds_read2_b32 {A(r,2)}, v{hk2} offset0:{o} offset1:{o+1}", f"ds_read2_b32 {A(r+2,2)}, v{hk2} offset0:{o+2} offset1:{o+3}"]

    def rd_hk3(pi, q):
        r = aHK3 + 4 * (4 * pi + q); o = (48 - 16 * q) // 2 + 96 * pi
        return [f"ds_read2_b32 {A(r,2)}, v{hk3} offset0:{o} offset1:{o+1}", f"ds_read2_b32 {A(r+2,2)}, v{hk3} offset0:{o+2} offset1:{o+3}"]
    NR = 7
    rd_uf = lambda n: f"ds_read_b128 {A(aUF+4*(n % NR),4)}, v{uf} offset:{64*n}"
    touched = set()

    def mm(t, x, y):
        c = V(vACC + 4 * t, 4) if t in touched else "0"
        touched.add(t)
        return f"v_mfma_f32_16x16x32_bf16 {V(vACC+4*t,4)}, {x}, {y}, {c}"
    NS = 64
    extra = [[] for _ in range(NS + 12)]
    last = [8 * t + 7 for t in range(8)]
    items = []

    def add(e, d, ins, cost=1, chain=None):
        items.append([max(e, 0), d, cost, [I(x) if isinstance(x, str) else x for x in (ins if isinstance(ins, list) else [ins])], chain])
    LA = 4
    head = [rd_uf(n) for n in range(LA + 1)]
    for m in range(LA + 1, NS):
        add(m - NR + 1, m - LA + 1, rd_uf(m))
    k = kfx(ch)
    add(0, 3, k[:3], 2, "kx")
    for x in k[3:]:
        add(0, 6, x, 1, "kx")
    if ch == 0:
        for x in sum([rd_kf(1, s) for s in range(17)], []):
            add(14, 63, x)
    jobs = [("2", 0), ("2", 1), ("3", 0, 0), ("3", 0, 1), ("2", 2), ("2", 3), ("3", 1, 0), ("3", 1, 1), ("2", 4), ("2", 5)]
    nb = 8
    seen = set()
    for ji, jb in enumerate(jobs):
        ap = aAP + 8 * (ji & 1); bx = vBX + 8 * (ji & 1)
        F = jb[1]
        if jb[0] == "2":
            for om in range(2):
                add(nb - 8, nb - 3, f"ds_read_b128 {A(ap+4*om,4)}, v{a2} offset:{512*F+64*om}")
            for pi in range(2):
                for om in range(2):
                    extra[nb + pi].append(f"v_mfma_f32_16x16x32_bf16 {V(vBXD+8*pi+4*om,4)}, {A(ap+4*om,4)}, {A(aBAND+4*pi,4)}, 0")
                for q in range(4):
                    add(nb + pi + 2, nb + pi + 4, f"v_cvt_pk_bf16_f32 v{bx+4*pi+q}, v{vBXD+8*pi+2*q}, v{vBXD+8*pi+2*q+1}")
                for dl in range(3):
                    t = F + dl + 2
                    if ("2", pi, dl) not in seen:
                        seen.add(("2", pi, dl))
                        for x in rd_hk2(pi, dl):
                            add(0, nb + pi + 1, x)
                    if t < 8:
                        extra[nb + 4 + pi].append((t, V(bx + 4 * pi, 4), A(aHK2 + 4 * (3 * pi + dl), 4)))
                        last[t] = max(last[t], nb + 4 + pi)
        else:
            pi = jb[2]
            for om in range(2):
                add(nb - 8, nb - 3, f"ds_read_b128 {A(ap+4*om,4)}, v{a3} offset:{1024*F+128*om+16*pi}")
                extra[nb].append(f"v_mfma_f32_16x16x32_bf16 {V(vBXD+4*om,4)}, {A(ap+4*om,4)}, {A(aBAND+8+4*pi,4)}, 0")
            for q in range(4):
                add(nb + 2, nb + 4, f"v_cvt_pk_bf16_f32 v{bx+q}, v{vBXD+2*q}, v{vBXD+2*q+1}")
            for a2_ in range(4):
                q = a2_ - 2 * F
                if q >= 0:
                    if ("3", pi, q) not in seen:
                        seen.add(("3", pi, q))
                        for x in rd_hk3(pi, q):
                            add(nb - 12, nb + 1, x)
                    extra[nb + 4].append((a2_ + 4, V(bx, 4), A(aHK3 + 4 * (4 * pi + q), 4)))
                    last[a2_ + 4] = max(last[a2_ + 4], nb + 4)
        nb += 5
    for t in range(8):
        n = last[t] + 3
        e = vEP + 2 * (t & 1)
        c = f"ep{t}"
        add(n, n + 3, f"v_cvt_pk_bf16_f32 v{e}, v{vACC+4*t}, v{vACC+4*t+1}", 1, c)
        add(n, n + 3, f"v_cvt_pk_bf16_f32 v{e+1}, v{vACC+4*t+2}, v{vACC+4*t+3}", 1, c)
        add(n, n + 3, I(f"ds_write_b64 v{yw}, {V(e,2)} offset:{512*t}", tag=f"y{ch}{t}"), 2, c)
        if ch == 1:
            w = Asm(); w.wait(f"y1{t}"); w("s_barrier")
            tb = vTB + 4 * (t & 1)
            w(f"ds_read_b64_tr_b16 {V(tb,2)}, v{vOR} offset:{512*t}\nds_read_b64_tr_b16 {V(tb+2,2)}, v{vOR} offset:{512*t+4*SY}", tag=f"yr{t}")
            add(n + 3, n + 5, w.ins, 2, c)
            add(n + 6, n + 8, [f"s_mov_b32 s{sT0}, {256*2304*t}", f"buffer_store_dwordx4 {V(tb,4)}, v{vOS}, s[20:23], s{sT0} offen {Y_FLAGS}"], 2, c)
    for s in head:
        a(s)

    def pick(n, budget, force):
        lds = 1 if budget < 10 else 99
        while True:
            blocked, best = set(), None
            for it in items:
                if it[4] is not None and it[4] in blocked:
                    continue
                urgent = force and it[1] <= n + 1
                fits = it[2] <= budget and (lds > 0 or it[3][-1].kind != "ds")
                if it[0] <= n and (urgent or fits) and (best is None or it[1] < best[1]):
                    best = it
                if it[4] is not None:
                    blocked.add(it[4])
            if best is None:
                return
            a.ext(best[3]); items.remove(best); budget -= best[2]
            lds -= best[3][-1].kind == "ds"
    for n in range(NS + 12):
        ms = []
        if ch == 0 and n % 8 == 0 and n <= 64: prof(a, 20 + n // 8)
        if n < NS:
            phi = n - 7
            for s in list(range(17)) + [32]:
                if (phi + s) % 8 == 0 and 0 <= (phi + s) // 8 < 8:
                    ms.append(((phi + s) // 8, V(vKFX, 4) if s == 32 else A(aKF + 4 * s, 4), A(aUF + 4 * (n % NR), 4)))
        ms += extra[n]
        for k_, m in enumerate(ms):
            a(m if isinstance(m, str) else mm(*m))
            pick(n, 2, k_ == len(ms) - 1)
        if not ms:
            pick(n, 99, True)
    assert not items


def gen_a(prof):
    a = Asm()
    a("s_load_dwordx16 s[52:67], s[0:1], 0")
    a(f"v_lshrrev_b32 v{vT0}, 6, v0\nv_and_b32 v{vLANE}, 63, v0\ns_lshr_b32 s{sT0}, s{sX}, 2\nv_readfirstlane_b32 s{sW}, v{vT0}")
    a(f"s_sub_u32 s{sAG}, s{sX}, s{sT0}\ns_lshl_b32 s{sAG}, s{sAG}, 3\ns_mul_i32 s{sT1}, s{sT0}, 12\ns_add_u32 s{sT1}, s{sT1}, 48")
    a(f"s_cmp_eq_u32 s{sNA}, 16\ns_cselect_b32 s{sAG}, s{sT1}, s{sAG}\ns_add_u32 s{sAG}, s{sAG}, s{sJ}")
    a(f"s_lshl_b32 s{sT1}, s{sAG}, 2\ns_add_u32 s{sT1}, s{sT1}, s{sW}\ns_lshl_b32 s{sT2}, s{sT1}, 2\ns_lshl_b32 s{sT1}, s{sT1}, 9")
    a(f"v_lshl_add_u32 v{vT1}, v{vLANE}, 2, s{sT1}\nv_lshlrev_b32 v{vT2}, 4, v{vLANE}")
    a(f"s_cmp_ge_u32 s{sJ}, 12")
    prof(a, 30)
    a("s_waitcnt lgkmcnt(0)\ns_cbranch_scc1 L_SPARE")
    a(f"s_load_dword s{sLDT}, s[{pLOGDT}:{pLOGDT+1}], s{sT2}\ns_load_dword s{sDSK}, s[{pDSKIP}:{pDSKIP+1}], s{sT2}")
    for k in range(6):
        a(f"global_load_dword v{vP+k}, v{vT1}, s[{54+2*k}:{55+2*k}]{nt('p')}")
    a("s_branch L_A\nL_A:")
    prof(a, 31)
    a(f"s_mov_b32 s{sJJ}, s{sJ}\ns_add_u32 s6, s4, L_TABA-L_PC\ns_addc_u32 s7, s5, 0")
    a(f"global_load_dwordx4 {V(vTAB5,4)}, v{vT2}, s[6:7]")
    for k in range(6):
        a(f"global_load_dword v{vP+6+k}, v{vT1}, s[{54+2*k}:{55+2*k}] offset:256{nt('p')}")
    a(f"global_load_dwordx4 {V(vMASK,4)}, v{vT2}, s[6:7] offset:1024")
    a(f"s_add_u32 s6, s6, 2048\ns_addc_u32 s7, s7, 0")
    for k in range(4):
        a(f"global_load_dwordx4 {A(aBAND+4*k,4)}, v{vT2}, s[6:7] offset:{1024*k}")
    prof(a, 32)
    if "nopf" not in EXP:
        srd(a, 12, pW, 576 * 3456)
        t, ln, blk = 34, 35, sEX
        a(f"s_lshl_b32 s{t}, s{sJ}, 2\ns_add_u32 s{t}, s{t}, s{sW}\nv_mul_u32_u24 v{vW}, 3456, v{vLANE}")
        a(f"s_and_b32 s{ln}, s{t}, 1\ns_mul_i32 s{ln}, s{ln}, 9\ns_add_u32 s{ln}, s{ln}, 9\ns_lshr_b32 s{blk}, s{t}, 1")
        a(f"s_sub_u32 s{sT0}, s{blk}, 9\ns_mul_i32 s{sT0}, s{sT0}, 3\ns_add_u32 s{sT0}, s{sT0}, 2\ns_and_b32 s{sT1}, s{sX}, 4\ns_lshl_b32 s{sT1}, s{sT1}, 1")
        a(f"s_cmp_lt_u32 s{t}, 18\ns_cselect_b32 s{blk}, s{blk}, s{sT0}\ns_cselect_b32 s{sT1}, 4, s{sT1}\ns_add_u32 s{ln}, s{ln}, s{sT1}")
        a(f"s_sub_u32 s{sT0}, s{t}, 24\ns_cmp_ge_u32 s{t}, 24\ns_cselect_b32 s{blk}, s{sT0}, s{blk}\ns_cselect_b32 s{ln}, 4, s{ln}")
        a(f"s_mul_i32 s{blk}, s{blk}, {64*27}\ns_add_u32 s{ln}, s{ln}, s{blk}\ns_lshl_b32 s{ln}, s{ln}, 7")
        pf_load(a, vW, 12, ln)
    prof(a, 0)
    srd(a, 16, 52, 2048 * 1152)
    srd(a, 20, pOUT, 2048 * 2304)
    srd(a, 12, pW, 576 * 3456)
    srd(a, 24, pWO, 576 * 1152)
    a(f"v_mul_u32_u24 v{vFP}, 3456, v{vLANE}\nv_lshlrev_b32 v{vFP+1}, 7, v{vLANE}")
    L = vLANE
    t0, t1, t2, t3 = vW, vW + 1, vW + 2, vW + 3
    r16, g = vW + 4, vW + 5
    a(f"v_and_b32 v{r16}, 15, v{L}\nv_lshrrev_b32 v{g}, 4, v{L}")
    a(f"s_mul_i32 s{sT0}, s{sW}, {KGW}\ns_mov_b32 s{sKG}, s{sT0}\ns_mov_b32 m0, s{sT0}")
    a(f"v_and_b32 v{t0}, 31, v{L}\nv_lshrrev_b32 v{t1}, 5, v{L}")
    a(f"v_mul_u32_u24 v{t2}, 528, v{t0}\nv_lshl_add_u32 v{t2}, v{t1}, 4, v{t2}\nv_add_u32 v{vKGB}, s{sT0}, v{t2}")
    a(f"v_lshlrev_b32 v{t2}, 4, v{t0}\nv_lshl_add_u32 v{t2}, v{t1}, 3, v{t2}\nv_sub_u32 v{vKW}, 568, v{t2}")
    a(f"v_lshlrev_b32 v{t2}, 1, v{L}\nv_sub_u32 v{vK2W}, 190, v{t2}")
    a(f"v_and_b32 v{t2}, 1, v{t0}\nv_mul_u32_u24 v{t2}, 384, v{t2}\nv_and_b32 v{t3}, 30, v{t0}\nv_add_u32 v{t2}, v{t2}, v{t3}")
    a(f"v_lshl_add_u32 v{t2}, v{t1}, 6, v{t2}\nv_sub_u32 v{vK3W}, {384+96}, v{t2}")
    a(f"v_and_b32 v{t0}, 1, v{r16}\nv_add_u32 v{t1}, v{r16}, v{t0}\nv_lshlrev_b32 v{t2}, 3, v{g}\nv_sub_u32 v{t1}, v{t2}, v{t1}")
    a(f"v_lshlrev_b32 v{t1}, 1, v{t1}")
    a(f"v_mul_u32_u24 v{t2}, {KO-KE}, v{t0}\nv_add3_u32 v{vKFA}, v{t1}, v{t2}, 32\nv_add_u32 v{vKFB}, 1024, v{vKFA}")
    a(f"v_mul_u32_u24 v{t2}, 192, v{t0}\nv_add_u32 v{t2}, {K3+32}, v{t2}\nv_add_u32 v{vHK3}, v{t1}, v{t2}")
    a(f"v_lshlrev_b32 v{t1}, 4, v{g}\nv_lshlrev_b32 v{t2}, 2, v{r16}\nv_sub_u32 v{t2}, v{t1}, v{t2}\nv_add_u32 v{vHK2}, {K2+60}, v{t2}")
    a(f"v_lshl_add_u32 v{t2}, v{r16}, 5, v{t1}\nv_add_u32 v{vUF}, {UT+32}, v{t2}")
    a(f"v_lshrrev_b32 v{t2}, 2, v{r16}\nv_and_b32 v{t3}, 3, v{r16}\nv_lshl_add_u32 v{t0}, v{t2}, 3, v{t3}")
    a(f"v_lshl_add_u32 v{vA2}, v{t0}, 4, v{t1}\nv_add_u32 v{vA2}, {UT+464}, v{vA2}")
    a(f"v_lshl_add_u32 v{vA3}, v{t0}, 5, v{t1}\nv_add_u32 v{vA3}, {UT+464}, v{vA3}")
    a(f"v_lshlrev_b32 v{t0}, 3, v{g}\nv_lshl_add_u32 v{t0}, v{r16}, 5, v{t0}\nv_add_u32 v{vYW}, {YT}, v{t0}")
    a(f"v_lshrrev_b32 v{t0}, 2, v{L}\nv_and_b32 v{t0}, 4, v{t0}\nv_xor_b32 v{t0}, v{t0}, v{L}\nv_mul_u32_u24 v{t0}, 1152, v{t0}")
    a(f"s_mul_i32 s{sT0}, s{sW}, {512*1152}\ns_lshl_b32 s{sT1}, s{sAG}, 4\ns_add_u32 s{sT0}, s{sT0}, s{sT1}\nv_add_u32 v{vDMA}, s{sT0}, v{t0}")
    a(f"v_lshrrev_b32 v{t0}, 1, v{g}\nv_lshlrev_b32 v{t0}, 5, v{t0}\nv_lshl_add_u32 v{t0}, v{t3}, 3, v{t0}\nv_add_u32 v{t0}, v{t0}, v{t2}")
    a(f"v_and_b32 v{t1}, 2, v{t3}\nv_lshlrev_b32 v{t1}, 1, v{t1}")
    a(f"v_xor_b32 v{vTR0}, v{t0}, v{t1}\nv_xor_b32 v{vTR1}, 4, v{vTR0}")
    a(f"s_lshl_b32 s{sT0}, s{sW}, 13\ns_add_u32 s{sT0}, s{sT0}, {U0}")
    a(f"v_and_b32 v{t1}, 1, v{g}\nv_lshl_add_u32 v{t0}, v{t1}, 3, s{sT0}")
    a(f"v_lshl_add_u32 v{vTR0}, v{vTR0}, 4, v{t0}\nv_lshl_add_u32 v{vTR1}, v{vTR1}, 4, v{t0}")
    a(f"v_lshl_add_u32 v{t1}, v{t1}, 2, v{t3}\nv_mul_u32_u24 v{t1}, {SU}, v{t1}")
    a(f"v_lshrrev_b32 v{t0}, 1, v{g}\nv_lshlrev_b32 v{t0}, 6, v{t0}\nv_lshl_add_u32 v{t0}, v{t2}, 4, v{t0}")
    a(f"s_lshl_b32 s{sT0}, s{sW}, 10\ns_add_u32 s{sT0}, s{sT0}, {UT+512}\nv_add3_u32 v{vTW}, v{t0}, v{t1}, s{sT0}")
    a(f"v_mul_u32_u24 v{t0}, {SY}, v{t2}\nv_lshl_add_u32 v{t0}, v{g}, 5, v{t0}\nv_lshl_add_u32 v{t0}, v{t3}, 3, v{t0}")
    a(f"s_lshl_b32 s{sT0}, s{sW}, 7\ns_add_u32 s{sT0}, s{sT0}, {YT}\nv_add_u32 v{vOR}, s{sT0}, v{t0}")
    a(f"s_mul_i32 s{sT0}, s{sW}, {64*2304}\ns_lshl_b32 s{sT1}, s{sAG}, 4\ns_add_u32 s{sT0}, s{sT0}, s{sT1}")
    a(f"v_mul_u32_u24 v{t0}, 2304, v{L}\nv_add_u32 v{vOS}, s{sT0}, v{t0}")
    a(f"v_mov_b32 v{vZ}, 0\nv_mov_b32 v{vZ+1}, 0\nv_mov_b32 v{vZ+2}, 0\nv_mov_b32 v{vZ+3}, 0")
    a(f"v_lshrrev_b32 v{t0}, 5, v{L}\nv_mul_u32_u24 v{t0}, {SU}, v{t0}\nv_and_b32 v{t1}, 31, v{L}\nv_lshl_add_u32 v{t0}, v{t1}, 4, v{t0}")
    a(f"s_mul_i32 s{sT0}, s{sW}, {2*SU}\nv_add_u32 v{t0}, s{sT0}, v{t0}\nv_add_u32 v{t0}, {UT}, v{t0}\nds_write_b128 v{t0}, {V(vZ,4)}")
    a(f"s_mul_i32 s{sT0}, s{sW}, {KGW}\ns_add_u32 s{sT0}, s{sT0}, {KG}\nv_add_u32 v{vKGA}, s{sT0}, v{vTAB5}")
    a("s_waitcnt lgkmcnt(0)")
    prof(a, 1)

    a(f"s_lshl_b32 s{sU0}, s{sW}, 13\ns_add_u32 s{sU0}, s{sU0}, {U0}")
    a(f"s_and_b32 s{sUB}, s{sJJ}, 7\ns_mov_b32 s{sTB}, s{sUB}\ns_lshl_b32 s34, s{sUB}, 7\nv_add_u32 v{vTW}, s34, v{vTW}")
    DMA_AT = DMA_PLAN
    TR_AT = TR_PLAN
    kf0 = sum([rd_kf(0, s_) for s_ in range(17)], [])

    def hook(a, ch, n):
        if (ch, n) in DMA_AT:
            i = DMA_AT.index((ch, n))
            a(f"s_add_u32 m0, s{sU0}, {1024*i}\ns_mul_i32 s34, s{sUB}, {64*1152}")
            a(f"buffer_load_dwordx4 v{vDMA}, s[16:19], s34 offen{nt('u')} lds", tag=f"u{i}")
            a(f"s_mov_b32 m0, s{sKG}\ns_add_u32 s{sUB}, s{sUB}, 1\ns_and_b32 s{sUB}, s{sUB}, 7")
        if (ch, n) in TR_AT:
            i = TR_AT.index((ch, n)); a.wait(f"u{i}")
            a(f"ds_read_b64_tr_b16 {V(vTB,2)}, v{vTR0} offset:{1024*i}\nds_read_b64_tr_b16 {V(vTB+2,2)}, v{vTR1} offset:{1024*i}")
        if (ch, n - 2) in TR_AT:
            a(f"ds_write_b128 v{vTW}, {V(vTB,4)}")
            a(f"s_cmp_eq_u32 s{sTB}, 7\ns_cselect_b32 s34, 0x400, 0\ns_sub_u32 s34, 0x80, s34\ns_add_u32 s{sTB}, s{sTB}, 1\nv_add_u32 v{vTW}, s34, v{vTW}")
        if (ch, n) == (1, FAR_AT) and "nofar" not in EXP:
            a(f"s_lshl_b32 s34, s{sAG}, 2\ns_add_u32 s34, s34, s{sW}\ns_add_u32 s34, s34, 96")
            far_pf(a, 34, vFP, 35)
        if ch == 1 and kf0 and n < 55:
            a(kf0.pop(0))
    a.ext(ksetup(0))
    kgen(a, 0, prof, hook, ksetup(1).ins)
    a.ext(conv_addr())
    prof(a, 2)
    kgen(a, 1, prof, hook, [])
    assert not kf0
    prof(a, 3)
    a("s_waitcnt lgkmcnt(0)\ns_barrier")
    prof(a, 4)
    conv(a, 0, prof)
    prof(a, 5)
    conv(a, 1, prof)
    if "wb1" in EXP:
        a(f"s_waitcnt vmcnt(0)\ns_barrier\ns_cmp_lg_u32 s{sW}, 0\ns_cbranch_scc1 L_END\nbuffer_wbl2 sc1")
    if "wb2" in EXP:
        a(f"s_waitcnt vmcnt(0)\ns_barrier\ns_cmp_lg_u32 s{sW}, 0\ns_cbranch_scc1 L_END\ns_and_b32 s34, s{sJJ}, 3\ns_cmp_lg_u32 s34, 3\ns_cbranch_scc1 L_END\nbuffer_wbl2 sc1")
    prof(a, 7, final=True)
    a("s_endpgm")
    main = finish(a)
    b = Asm()
    b("L_SPARE:")
    b(f"s_lshl_b32 s{sIDX}, s{sT0}, 2\ns_add_u32 s{sIDX}, s{sIDX}, s{sJ}\ns_sub_u32 s{sIDX}, s{sIDX}, 12")
    if "nofar" not in EXP:
        srd(b, 12, pW, 576 * 3456)
        srd(b, 24, pWO, 576 * 1152)
        b(f"v_mul_u32_u24 v{vFP}, 3456, v{vLANE}\nv_lshlrev_b32 v{vFP+1}, 7, v{vLANE}")
        for r in range(3):
            b(f"s_lshl_b32 s34, s{sIDX}, 2\ns_add_u32 s34, s34, s{sW}\ns_add_u32 s34, s34, {32*r}")
            far_pf(b, 34, vFP, 35)
            if r < FARW:
                b("s_waitcnt vmcnt(0)")
    srd(b, 16, pWS, S2_OFF)
    srd(b, 20, pWS, SENT_SIZE)
    srd(b, 24, pDBG, 256)
    b(f"v_mov_b32 v{vZ}, -1\nv_mov_b32 v{vZ+1}, -1\nv_mov_b32 v{vZ+2}, -1\nv_mov_b32 v{vZ+3}, -1\nv_mov_b32 v{vT0}, 1\nv_mov_b32 v{vT1}, 0")
    b(f"s_lshl_b32 s{sT2}, s{sIDX}, 2\ns_add_u32 s{sT2}, s{sT2}, s{sW}")
    for part, (r, n, base) in enumerate(((16, 17, 0), (20, 72, S2_OFF))):
        b(f"s_mul_i32 s{sT0}, s{sT2}, {n*1024}\ns_add_u32 s{sT0}, s{sT0}, {base}\ns_add_u32 s{sT1}, s{sT0}, {n*1024}")
        b(f"L_FILL{part}:\nbuffer_store_dwordx4 {V(vZ,4)}, v{vT2}, s[{r}:{r+3}], s{sT0} offen sc1")
        b(f"s_add_u32 s{sT0}, s{sT0}, 1024\ns_cmp_lt_u32 s{sT0}, s{sT1}\ns_cbranch_scc1 L_FILL{part}")
        b(f"s_waitcnt vmcnt(0)\ns_barrier\ns_cmp_lg_u32 s{sW}, 0\ns_cbranch_scc1 L_FILLED{part}")
        b(f"s_mov_b64 exec, 1\nbuffer_atomic_add v{vT0}, v{vT1}, s[24:27], 0 offen offset:{64*part} sc1\ns_mov_b64 exec, -1\nL_FILLED{part}:")
    b("s_endpgm")
    k = [i.text for i in main].index("L_A:")
    return main[:k], main[k:] + finish(b)
```

```python
from asmlib import *
from gen_common import *
import numpy as np

XR = 0
WQ = 0
WR = 73728
EX = WR + 16384
WO = WR
FM = 147456
FDUMMY = FM + 4608
NX, NW = 3, 4
PAIRS = [[(0, 2), (0, 3)], [(0, 4), (1, 4)], [(1, 2), (1, 3)], [(2, 3), (2, 4)]]


def head_of(e):
    return 0 if (e < 18 or e == 36) else 1


def table_b():
    T = np.zeros((256, 4), np.uint32)
    T[:, 0] = OOB; T[:, 1] = OOB
    cons = []
    for w in range(4):
        for q in range(2):
            kt, vt = PAIRS[w][q]
            for l in range(64):
                c, g = l % 16, l // 16
                e, ch = 16 * vt + c - 36, 4 * kt + g
                if 0 <= e < 38 and 4 * head_of(e) <= ch <= 4 * head_of(e) + 4:
                    T[64 * w + l, q] = 16 * len(cons)
                    cons.append((e, ch))
    assert len(cons) == 190
    for t in range(256):
        if t < 190:
            e, ch = cons[t]
            fl = 3 if ch != 4 else (1 if head_of(e) == 0 else 2)
            T[t, 2] = FM + 96 * e + 8 * ch; T[t, 3] = fl
        else:
            T[t, 2] = FDUMMY + 8 * (t - 190); T[t, 3] = 0
    return T


vQD = 1
vRO = 2
vOL, vOLT, vOUT, vCK = 6, 7, 8, 9
vL, vI, vG, vX = 10, 11, 12, 13
vDQ = 16
vXR = 17
vXD = 176
vDK = 182
vRK = 22
vRQ = 27
vEW, vGA = 30, 31
vTAB = 32
vT = 36
vONE = 42
vER = 44
vDO = 48
vFR, vFD, vS2, vS2T, vDBG, vDBA = 50, 51, 52, 53, 54, 55
vACC = 56
vFB = 116
vPH = 156
vPK = 172
vKD = 104
vAQ = 186
vFQ = 116
vGAT = 56
vPQ = 222
vFA = 156
vON = 56
vOF = 104
vR = 124
vMM, vLO = 248, 249
vBW, vBR = 250, 251
vEW2 = 42
vC4 = 186
vEPS = 240
vA2 = 12
vWV = 44
vOM = 76
sW, sRB, sP, sRB2, sCB, sG2 = 52, 53, 54, 55, 56, 57
sT = 58
sB, sMX = 64, 65
sM0 = 66
sMK4, sMK89, sMG0 = 68, 70, 72
sLOG, sEPS = 74, 76
sRETRY = 78
sSO = 79
sSX, sSK, sMW = 80, 81, 82
sPC, sPQ, sQK = 83, 84, 85
sWB, sOB = 86, 64


_E = __import__('os').environ
OL_START, OL_PER, OL_AHEAD = int(_E.get('OLS', 100)), float(_E.get('OLP', 0.4)), int(_E.get('OLA', 2))
GS = int(_E.get('GS', 15))
RD0 = int(_E.get('RD0', 18))
LDP, LDS_ = float(_E.get('LDP', 0)), int(_E.get('LDS', 0))
RAMP = int(_E.get('RAMP', 0))
Q7, Q8 = int(_E.get('Q7', 8)), int(_E.get('Q8', 10))
NT = _E.get('NT', 'u,p,x').split(',')
nt = lambda k: ' nt' if k in NT else ''
KVP = float(_E.get('KVP', 1))
N_PRE = int(__import__('os').environ.get('NPRE', '999'))
import os
OUT_FLAGS = os.environ.get("OUTF", "")
EXP = os.environ.get('EXP', '').split(',')


def xreg(s, tau):
    return (3 * s + tau) * 4


def mneed(s):
    return -(-(5 * s + 5) // 4)


def phi4(a, src, dst, tmp, keep=None, slot=lambda n: None):
    e = tmp
    a(f"v_pk_mul_f32 {V(e,2)}, {V(src,2)}, {S(sLOG,2)}\nv_pk_mul_f32 {V(e+2,2)}, {V(src+2,2)}, {S(sLOG,2)}")
    m = src
    for i in range(4):
        if i in (0, 2):
            slot(1)
        a(f"v_exp_f32_e64 v{e+i}, v{e+i} clamp\nv_max_f32 v{m+i}, {'v%d' % vLO if keep else 's%d' % sEPS}, v{src+i}")
    for h in (0, 2):
        if keep:
            a(f"v_pk_fma_f32 {V(e+h,2)}, {V(e+h,2)}, {V(vMM,2)}, {V(m+h,2)} op_sel_hi:[1,0,1]")
        else:
            a(f"v_pk_add_f32 {V(e+h,2)}, {V(e+h,2)}, {V(m+h,2)}")
    slot(1)
    a(f"v_cvt_pk_bf16_f32 v{dst}, v{e}, v{e+1}\nv_cvt_pk_bf16_f32 v{dst+1}, v{e+2}, v{e+3}")


def spread(fg, bg):
    fg = atoms(fg.ins if isinstance(fg, Asm) else fg)
    bg = atoms(bg)
    out, k = [], 0
    for n, i in enumerate(fg):
        out.extend(i)
        while k < len(bg) and (k + 1) * len(fg) <= (n + 1) * len(bg):
            out.extend(bg[k]); k += 1
    return out + [x for g in bg[k:] for x in g]


def gen_b(prof):
    a = Asm()
    slow = Asm()
    t0, t1, t2, t3, t4, t5 = range(vT, vT + 6)
    a(f"s_load_dwordx2 s[8:9], s[0:1], 72\ns_load_dwordx2 s[12:13], s[0:1], 80")
    a(f"s_mov_b32 s10, {2048*1152}\ns_mov_b32 s11, 0x20000\ns_mov_b32 s14, {576*3456}\ns_mov_b32 s15, 0x20000")
    a(f"s_mul_i32 s{sRB}, s6, 3\ns_lshr_b32 s{sT}, s{sJ}, 3\ns_add_u32 s{sRB}, s{sRB}, s{sT}")
    a(f"s_and_b32 s{sT}, s{sJ}, 7\ns_lshr_b32 s{sP}, s{sX}, 2\ns_lshl_b32 s{sP}, s{sP}, 3\ns_add_u32 s{sP}, s{sP}, s{sT}")
    a(f"v_lshrrev_b32 v{t0}, 6, v0\nv_bfe_u32 v{vG}, v0, 4, 2\nv_bfe_u32 v{t1}, v0, 3, 3\nv_readfirstlane_b32 s{sW}, v{t0}")
    a(f"s_mul_i32 s{sT}, s{sRB}, 192\nv_lshl_add_u32 v{t1}, v{t0}, 4, v{t1}\nv_add_u32 v{t1}, s{sT}, v{t1}\nv_mul_u32_u24 v{t1}, 1152, v{t1}")
    a(f"v_and_b32 v{t2}, 7, v0\nv_xor_b32 v{t2}, v{t2}, v{vG}\nv_lshl_add_u32 v{vXD}, v{t2}, 4, v{t1}")
    a(f"v_xor_b32 v{t2}, 4, v{t2}\nv_lshl_add_u32 v{vXD+1}, v{t2}, 4, v{t1}\nv_add_u32 v{vXD+1}, {8*1152-1024}, v{vXD+1}")
    a(f"v_add_u32 v{vXD+2}, {64*1152-2048}, v{vXD}\nv_add_u32 v{vXD+3}, {64*1152-2048}, v{vXD+1}")
    a(f"v_add_u32 v{vXD+4}, {128*1152}, v{vXD}\nv_add_u32 v{vXD+5}, {128*1152}, v{vXD+1}")
    a(f"s_mul_i32 s{sMX}, s{sW}, 6144\ns_lshl_b32 s{sMW}, s{sW}, 12")
    a(f"s_and_b32 s{sT}, s{sP}, 1\ns_lshl_b32 s{sT}, s{sT}, 3\ns_mul_i32 s{sT+1}, s{sP}, 72\ns_sub_u32 s{sT+1}, s{sT+1}, s{sT}")
    a(f"s_and_b32 s{sB}, s{sT+1}, 127\ns_sub_u32 s{sB}, 128, s{sB}\ns_lshr_b32 s{sB}, s{sB}, 4\ns_min_u32 s{sB}, s{sB}, 4")
    a(f"s_sub_u32 s{sT+2}, 5, s{sB}\ns_mov_b32 s{sT+3}, 3456")
    if 'rot1' in EXP:
        a(f"s_lshr_b32 s{sPC}, s{sJ}, 3\ns_mul_i32 s{sPC}, s{sPC}, 3\ns_and_b32 s{sPQ}, s{sJ}, 7\ns_add_u32 s{sPC}, s{sPC}, s{sPQ}")
    else:
        offs = [1, 0, 4, 0, 7, 0, 1, 0] if 'rot3' not in EXP else [1, 0, 4, 0, 7, 0, 2, 0]
        pk0 = sum(o << (4 * i) for i, o in enumerate(offs)); pk1 = sum(o << (4 * (7 - i)) for i, o in enumerate(offs))
        a(f"s_mov_b32 s{sPC}, {pk0}\ns_cmp_ge_u32 s{sP}, 8\ns_cselect_b32 s{sPC}, {pk1}, s{sPC}\ns_and_b32 s{sPQ}, s{sJ}, 7\ns_lshl_b32 s{sPQ}, s{sPQ}, 2")
        a(f"s_lshr_b32 s{sPQ}, s{sPC}, s{sPQ}\ns_and_b32 s{sPQ}, s{sPQ}, 15\ns_lshr_b32 s{sPC}, s{sJ}, 3\ns_mul_i32 s{sPC}, s{sPC}, 3\ns_add_u32 s{sPC}, s{sPC}, s{sPQ}")
    a(f"s_sub_u32 s{sPQ}, s{sPC}, 9\ns_cmp_ge_u32 s{sPC}, 9\ns_cselect_b32 s{sPC}, s{sPQ}, s{sPC}\ns_mov_b32 s{sPQ}, s{sPC}")
    a(f"s_lshl_b32 s{sSX}, s{sPC}, 7\ns_mul_i32 s{sSK}, s{sPC}, {64*3456}")
    def slot_to_col(dst, q, e, tmp):
        a(f"v_mov_b32 v{tmp}, s{sB}\nv_mul_u32_u24 v{dst}, v{q}, v{tmp}\nv_add_u32 v{dst}, v{dst}, v{e}")
        a(f"v_cmp_eq_u32 vcc, 0, v{q}\nv_mov_b32 v{q}, s{sT+2}\nv_cndmask_b32 v{tmp}, v{q}, v{tmp}, vcc\nv_cmp_lt_u32 vcc, v{e}, v{tmp}")
    a(f"v_bfe_u32 v{t1}, v0, 2, 2\nv_xor_b32 v{t1}, v{t1}, v{vG}")
    a(f"v_and_b32 v{t2}, 3, v0\nv_bfe_u32 v{t3}, v0, 6, 1\nv_lshlrev_b32 v{t3}, 1, v{t3}\nv_xor_b32 v{t2}, v{t2}, v{t3}")
    a(f"v_lshrrev_b32 v{t3}, 1, v{t1}\nv_and_b32 v{t1}, 1, v{t1}\nv_mul_u32_u24 v{t3}, 1152, v{t3}")
    slot_to_col(t4, t1, t2, t5)
    a(f"v_lshl_add_u32 v{t3}, v{t4}, 4, v{t3}\nv_lshl_add_u32 v{t0}, v{t0}, 3, v{vG}\nv_mad_u32_u24 v{t3}, v{t0}, s{sT+3}, v{t3}")
    a(f"s_add_u32 s{sT+4}, s{sT+1}, 1152\nv_add_u32 v{t3}, s{sT+4}, v{t3}\nv_mov_b32 v{t4}, {OOB}\nv_cndmask_b32 v{vDK}, v{t4}, v{t3}, vcc")
    for m in range(1, 4):
        a(f"v_add_u32 v{vDK+m}, {(32*(m >> 1)+4*(m & 1))*3456-1024*m}, v{vDK}")
    prof(a, 30)
    a("s_waitcnt lgkmcnt(0)")
    prof(a, 31)

    def dx(P):
        o = []
        for n in range(6):
            x = Asm()
            if n % 4 == 0:
                x(f"s_add_u32 m0, s{sMX}, {XR + (P % NX) * 24576 + 1024 * n}")
            if n == 0 and P:
                x(f"s_add_u32 s{sPC}, s{sPC}, 1\ns_cmp_eq_u32 s{sPC}, 9\ns_cselect_b32 s{sPC}, 0, s{sPC}\ns_lshl_b32 s{sSX}, s{sPC}, 7")
            x(f"buffer_load_dwordx4 v{vXD+n}, s[8:11], s{sSX} offen offset:{1024*(n % 4)}{nt('x')} lds", tag=f"x{P}")
            o.append(x.ins)
        return o

    def dk(P):
        o = []
        for m in range(4):
            x = Asm()
            if m == 0:
                x(f"s_add_u32 m0, s{sMW}, {WR + (P % NW) * 16384}")
                if P:
                    x(f"s_mul_i32 s{sSK}, s{sPC}, {64*3456}")
            x(f"buffer_load_dwordx4 v{vDK+m}, s[12:15], s{sSK} offen offset:{1024*m}{nt('w')} lds", tag=f"k{P}")
            o.append(x.ins)
        return o

    def dquad(srdreg, vaddr, pre, sbase, so, ldsbase, k, tag):
        x = Asm()
        if k == 16:
            x(f"s_lshr_b32 s{sSO}, s{sMW}, 1\ns_add_u32 m0, s{sSO}, {ldsbase + 65536}")
        elif k % 4 == 0:
            x(f"s_add_u32 m0, s{sMW}, {ldsbase + 4096 * k}")
        x(pre)
        so -= 1024 * (k % 4)
        if sbase is None:
            x(f"s_mov_b32 s{sSO}, {so}")
        elif so:
            x(f"s_add_u32 s{sSO}, s{sbase}, {so & 0xffffffff}")
        x(f"buffer_load_dwordx4 v{vaddr}, s[{srdreg}:{srdreg+3}], s{sSO if so or sbase is None else sbase} offen offset:{1024*(k % 4)}{nt(tag[0])} lds", tag=tag)
        return x.ins

    def dq(k):
        pre = ""
        if k % 2 == 0:
            if k:
                pre = f"s_add_u32 s{sPQ}, s{sPQ}, 1\ns_cmp_eq_u32 s{sPQ}, 9\ns_cselect_b32 s{sPQ}, 0, s{sPQ}\n"
            pre += f"s_mul_i32 s{sQK}, s{sPQ}, {64*3456}\ns_add_u32 s{sQK}, s{sQK}, 2048"
        return dquad(92, vDQ, pre, sQK, 32 * 3456 * (k & 1), WQ, k, f"q{k}")
    qoff = lambda k, rd: 16384 * (k >> 2) + 8192 * rd + 1024 * (k & 3) if k < 16 else 4096 * rd + 1024 * (k & 1)

    for x in dx(0):
        a.ext(x)
    prof(a, 32)
    prof(a, 33)
    for x in dk(0):
        a.ext(x)
    prof(a, 34)
    main, a = a, Asm()
    a(f"v_and_b32 v{vL}, 63, v0\nv_and_b32 v{vI}, 15, v0")
    a(f"v_lshrrev_b32 v{t0}, 1, v{vI}\nv_xor_b32 v{t0}, v{t0}, v{vG}\nv_lshl_add_u32 v{t1}, v{vI}, 7, s{sMX}")
    a(f"v_lshl_add_u32 v{vXR}, v{t0}, 4, v{t1}\nv_xor_b32 v{vXR+1}, 64, v{vXR}")
    a(f"v_lshrrev_b32 v{t0}, 2, v{vL}\nv_and_b32 v{t1}, 3, v{vL}")
    u0, u1, u2, u3, u4, u5, u6 = range(vPH, vPH + 7)
    a(f"v_and_b32 v{u0}, 3, v{t0}\nv_and_b32 v{u1}, 1, v{vG}\nv_lshlrev_b32 v{u1}, 1, v{u1}\nv_bfe_u32 v{u5}, v{t0}, 1, 1")

    def col_to_slot(cc):
        a(f"v_lshl_add_u32 v{u2}, v{cc}, 3, s{sT}\nv_and_b32 v{u4}, 8, v{u2}\nv_lshrrev_b32 v{u3}, 4, v{u2}")
        a(f"v_cmp_le_u32 vcc, s{sB}, v{u3}\nv_subrev_u32 v{u2}, s{sB}, v{u3}\nv_cndmask_b32 v{u3}, v{u3}, v{u2}, vcc\nv_cndmask_b32 v{u2}, 0, 1, vcc")
        a(f"v_xor_b32 v{u3}, v{u3}, v{u1}\nv_lshl_add_u32 v{u3}, v{u3}, 4, v{u4}")
    for T in range(5):
        if T < 2:
            a(f"v_add_u32 v{t3}, {4*T}, v{t1}\nv_mov_b32 v{t4}, 0")
        elif T == 2:
            a(f"v_cmp_eq_u32 vcc, 0, v{t1}\nv_add_u32 v{t3}, -1, v{t1}\nv_cndmask_b32 v{t3}, v{t3}, 8, vcc\nv_cndmask_b32 v{t4}, 2, 0, vcc")
        else:
            a(f"v_add_u32 v{t3}, {4*T-9}, v{t1}\nv_min_u32 v{t3}, 8, v{t3}\nv_mov_b32 v{t4}, 2")
        col_to_slot(t3)
        if T == 4:
            a(f"s_cmp_eq_u32 s{sB}, 1\ns_cselect_b32 s{sT+4}, 0, 1\nv_cmp_gt_u32 vcc, 2, v{t1}\nv_mov_b32 v{u4}, s{sT+4}\nv_xor_b32 v{t5}, 3, v{u1}\nv_lshlrev_b32 v{t5}, 4, v{t5}")
            a(f"v_cndmask_b32 v{u2}, v{u4}, v{u2}, vcc\nv_cndmask_b32 v{u3}, v{t5}, v{u3}, vcc")
        a(f"v_or_b32 v{u2}, v{u2}, v{t4}\nv_xor_b32 v{u2}, v{u2}, v{u0}\nv_lshl_add_u32 v{u3}, v{u2}, 6, v{u3}")
        a(f"v_lshl_add_u32 v{u3}, v{u0}, 8, v{u3}\nv_lshl_add_u32 v{u3}, v{vG}, 12, v{u3}\nv_add_u32 v{vRK+T}, {WR}, v{u3}")
    a(f"v_cmp_gt_u32 {S(sMK4,2)}, 4, v{vI}\nv_and_b32 v{t5}, 14, v{vI}\nv_cmp_eq_u32 {S(sMK89,2)}, 8, v{t5}\nv_cmp_eq_u32 {S(sMG0,2)}, 0, v{vG}")
    a(f"s_mov_b32 s{sLOG}, 0x3fb8aa3b\ns_mov_b32 s{sLOG+1}, 0x3fb8aa3b\ns_mov_b32 s{sEPS}, 0x358637bd\ns_mov_b32 s{sEPS+1}, 0x358637bd")
    for i in range(4):
        a(f"v_mov_b32 v{vEPS+i}, s{sEPS}\nv_cndmask_b32 v{vEPS+4+i}, 0, v{vEPS+i}, {S(sMK4,2)}")
    a(f"v_cndmask_b32 v{vMM}, 0, 1.0, {S(sMK4,2)}\nv_mov_b32 v{vLO}, 0xff800000\nv_cndmask_b32 v{vLO}, v{vLO}, v{vEPS}, {S(sMK4,2)}")
    a(f"s_cmp_lt_u32 s{sRB}, 10\ns_cselect_b32 s{sT+4}, 1.0, 0\nv_cndmask_b32 v{vC4}, 0, 1.0, {S(sMK89,2)}\nv_mul_f32 v{vC4+4}, s{sT+4}, v{vC4}")
    for i in range(1, 4):
        a(f"v_mov_b32 v{vC4+i}, v{vC4}\nv_mov_b32 v{vC4+4+i}, v{vC4+4}")
    n_crit = len(a.ins)
    a(f"v_and_b32 v{u6}, 7, v{t0}\nv_lshlrev_b32 v{u6}, 7, v{u6}\nv_lshrrev_b32 v{u2}, 1, v{vG}\nv_lshl_add_u32 v{u6}, v{u2}, 12, v{u6}")
    a(f"v_lshlrev_b32 v{u2}, 11, v{u2}\nv_sub_u32 v{vQD}, 0x10000, v{u2}")
    a(f"s_cmp_eq_u32 s{sB}, 1\ns_cselect_b32 s{sT+4}, 0, 1")
    for dl in range(3):
        a(f"v_add_u32 v{t3}, {4*dl}, v{t1}")
        col_to_slot(t3)
        if dl == 2:
            a(f"v_cmp_eq_u32 vcc, 0, v{t1}\nv_mov_b32 v{t4}, s{sT+4}\nv_xor_b32 v{t5}, 3, v{u1}\nv_lshlrev_b32 v{t5}, 4, v{t5}")
            a(f"v_cndmask_b32 v{u2}, v{t4}, v{u2}, vcc\nv_cndmask_b32 v{u3}, v{t5}, v{u3}, vcc")
        a(f"v_xor_b32 v{u2}, v{u2}, v{u5}\nv_lshl_add_u32 v{u3}, v{u2}, 6, v{u3}\nv_add_u32 v{vRQ+dl}, v{u6}, v{u3}")
    a(f"v_and_b32 v{t2}, 6, v{t0}\nv_lshrrev_b32 v{t3}, 1, v{t1}\nv_and_b32 v{t4}, 1, v{t1}")
    a(f"v_lshlrev_b32 v{t4}, 3, v{t4}\nv_add_u32 v{t4}, v{u6}, v{t4}\nv_lshl_add_u32 v{t4}, v{t3}, 4, v{t4}")
    for T in range(4):
        a(f"v_xor_b32 v{t3}, {2*T}, v{t2}\nv_lshl_add_u32 v{vRO+T}, v{t3}, 4, v{t4}\nv_add_u32 v{vRO+T}, {WO}, v{vRO+T}")
    a(f"v_lshrrev_b32 v{t0}, 3, v0\nv_bfe_u32 v{t1}, v0, 2, 1\nv_bfe_u32 v{t2}, v0, 4, 1\nv_xor_b32 v{t1}, v{t1}, v{t2}")
    a(f"v_and_b32 v{t2}, 3, v0\nv_bfe_u32 v{t3}, v0, 5, 1\nv_lshlrev_b32 v{t3}, 1, v{t3}\nv_xor_b32 v{t2}, v{t2}, v{t3}")
    slot_to_col(t4, t1, t2, t5)
    a(f"v_and_b32 v{t1}, 3, v{t0}\nv_and_b32 v{t2}, 12, v{t0}\nv_lshl_or_b32 v{t1}, v{t2}, 1, v{t1}\nv_lshrrev_b32 v{t2}, 4, v{t0}\nv_lshl_or_b32 v{t1}, v{t2}, 2, v{t1}")
    a(f"v_lshl_add_u32 v{t4}, v{t4}, 4, s{sT+1}\nv_mad_u32_u24 v{t4}, v{t1}, s{sT+3}, v{t4}\nv_mov_b32 v{t1}, {OOB}\nv_cndmask_b32 v{vDQ}, v{t1}, v{t4}, vcc")
    a(f"s_and_b32 s{sT+4}, s{sX}, 3\ns_cmp_eq_u32 s{sT+4}, 2\ns_cselect_b32 s{sT+4}, 20, 18\ns_cmp_lt_u32 s{sJ}, s{sT+4}")
    a(f"s_cselect_b32 s{sG2}, 1, 0\ns_cselect_b32 s18, {576*1152}, 0")
    a(f"s_cmp_ge_u32 s{sJ}, 18\ns_cselect_b32 s{sT+4}, 16, 0\ns_mul_i32 s{sT+5}, s{sX}, 18\ns_add_u32 s{sT+5}, s{sT+5}, s{sJ}\ns_add_u32 s{sT+5}, s{sT+5}, s{sT+4}")
    a(f"s_mul_i32 s{sRB2}, s{sT+5}, 7282\ns_lshr_b32 s{sRB2}, s{sRB2}, 16\ns_mul_i32 s{sT+4}, s{sRB2}, 9\ns_sub_u32 s{sCB}, s{sT+5}, s{sT+4}")
    a(f"s_mov_b32 s16, s{pWO}\ns_mov_b32 s17, s{pWO+1}\ns_mov_b32 s19, 0x20000")
    a(f"s_sub_u32 s92, s{pW}, 2048\ns_subb_u32 s93, s{pW+1}, 0\ns_mov_b32 s94, {576*3456+2048}\ns_mov_b32 s95, 0x20000")
    srd(a, 20, pWS, SENT_SIZE)
    srd(a, 24, pDBG, 256)
    srd(a, 28, pOUT, 2048 * 2304)
    a(f"v_lshrrev_b32 v{t0}, 3, v0\nv_and_b32 v{t1}, 7, v0\nv_and_b32 v{t2}, 6, v{t0}\nv_xor_b32 v{t1}, v{t1}, v{t2}")
    a(f"s_lshl_b32 s{sT+4}, s{sCB}, 7\nv_lshl_add_u32 v{t1}, v{t1}, 4, s{sT+4}")
    a(f"v_mul_u32_u24 v{t2}, 1152, v{t0}\nv_add_u32 v{vDO}, v{t1}, v{t2}")
    a(f"v_bfe_u32 v{t2}, v{t0}, 2, 2\nv_lshrrev_b32 v{t3}, 4, v{t0}\nv_lshl_add_u32 v{t2}, v{t2}, 1, v{t3}\nv_mul_u32_u24 v{t2}, 36, v{t2}")
    a(f"v_and_b32 v{t3}, 3, v{t0}\nv_add3_u32 v{t2}, v{t2}, v{t3}, 32\nv_mul_u32_u24 v{t2}, 1152, v{t2}\nv_add_u32 v{vDO+1}, v{t1}, v{t2}")
    a(f"s_lshr_b32 s{sT+4}, s{sW}, 1\ns_mul_i32 s{sT+4}, s{sT+4}, 5120\ns_and_b32 s{sT+5}, s{sW}, 1\ns_lshl_b32 s{sT+5}, s{sT+5}, 3\ns_add_u32 s{sT+4}, s{sT+4}, s{sT+5}\ns_add_u32 s{sT+4}, s{sT+4}, {EX+20480}")
    a(f"v_lshl_add_u32 v{vEW2}, v{vL}, 4, s{sT+4}\ns_mul_i32 s{sT+4}, s{sW}, 5120\ns_add_u32 s{sT+4}, s{sT+4}, {EX}\nv_lshl_add_u32 v{vEW}, v{vL}, 4, s{sT+4}")
    a(f"s_lshl_b32 s{sT+5}, s{sW}, 2")
    for q in range(4):
        pk = sum(PAIRS[w][q // 2][q % 2] << (4 * w) for w in range(4))
        a(f"s_lshr_b32 s{sT+4}, {pk}, s{sT+5}\ns_and_b32 s{sT+4}, s{sT+4}, 15\ns_lshl_b32 s{sT+4}, s{sT+4}, 10\ns_add_u32 s{sT+4}, s{sT+4}, {EX}\nv_lshl_add_u32 v{vER+q}, v{vL}, 4, s{sT+4}")
    a(f"s_mul_i32 s{sT+4}, s{sP}, {11*S1_SLOT}\nv_lshl_add_u32 v{t0}, v0, 4, s{sT+4}\nv_mov_b32 v{t1}, {OOB}")
    a(f"v_cmp_gt_u32 vcc, 190, v0\nv_cndmask_b32 v{vGA}, v{t1}, v{t0}, vcc")
    a(f"v_mul_u32_u24 v{t0}, 96, v{vI}\nv_lshl_add_u32 v{t0}, v{vG}, 3, v{t0}\nv_add_u32 v{vFR}, {FM}, v{t0}")
    a(f"v_and_b32 v{t0}, 1, v{vI}\nv_mul_u32_u24 v{t0}, 96, v{t0}\nv_lshl_add_u32 v{t0}, v{vG}, 3, v{t0}\nv_add_u32 v{vFD}, {FM+36*96}, v{t0}")
    a(f"s_mul_i32 s{sT+4}, s{sRB}, 12\ns_add_u32 s{sT+4}, s{sT+4}, s{sW}\ns_lshl_b32 s{sT+4}, s{sT+4}, 4")
    a(f"s_lshr_b32 s34, s{sP}, 3\ns_xor_b32 s34, s34, s{sP}\ns_and_b32 s34, s34, 1\ns_lshl_b32 s34, s34, 3\ns_lshr_b32 s35, s{sP}, 1\ns_add_u32 s34, s34, s35")
    a(f"s_add_u32 s34, s34, s{sT+4}\ns_add_u32 s{sT+4}, s{sT+4}, s{sP}")
    a(f"s_lshl_b32 s{sT+5}, s34, 10\ns_add_u32 s{sT+5}, s{sT+5}, {S2_OFF}\nv_lshl_add_u32 v{vS2}, v{vL}, 4, s{sT+5}")
    a(f"s_lshl_b32 s{sT+5}, s{sT+4}, 7\ns_add_u32 s{sT+5}, s{sT+5}, {S2T_OFF}\nv_lshl_add_u32 v{t0}, v{vI}, 3, s{sT+5}")
    a(f"v_cndmask_b32 v{vS2T}, v{t1}, v{t0}, {S(sMG0,2)}")
    a(f"s_lshl_b32 s{sT+4}, s{sRB2}, 2\ns_add_u32 s{sT+4}, s{sT+4}, s{sW}")
    a(f"s_lshl_b32 s{sT+5}, s{sT+4}, 15\ns_add_u32 s{sT+5}, s{sT+5}, {S2_OFF}\nv_lshl_add_u32 v{vOL}, v{vL}, 4, s{sT+5}")
    a(f"s_lshl_b32 s{sT+5}, s{sT+4}, 12\ns_add_u32 s{sT+5}, s{sT+5}, {S2T_OFF}\nv_lshl_add_u32 v{t0}, v{vI}, 3, s{sT+5}\nv_lshl_add_u32 v{vOLT}, v{vG}, 8, v{t0}")
    if 'oldepi' in EXP:
        a(f"s_lshl_b32 s{sT+4}, s{sT+4}, 5\nv_add_u32 v{t0}, s{sT+4}, v{vI}\nv_mul_u32_u24 v{t0}, 2304, v{t0}")
        a(f"v_and_b32 v{t1}, 1, v{vG}\nv_lshl_add_u32 v{t0}, v{t1}, 5, v{t0}\nv_lshrrev_b32 v{t1}, 1, v{vG}\nv_lshl_add_u32 v{t0}, v{t1}, 4, v{t0}")
        a(f"s_lshl_b32 s{sT+4}, s{sCB}, 7\ns_add_u32 s{sT+4}, s{sT+4}, 1152\nv_add_u32 v{vOUT}, s{sT+4}, v{t0}")

    else:
        a(f"s_lshl_b32 s{sT+4}, s{sT+4}, 5\nv_lshrrev_b32 v{t1}, 3, v{vL}\nv_add_u32 v{t0}, s{sT+4}, v{t1}\nv_mul_u32_u24 v{t0}, 2304, v{t0}")
        a(f"v_and_b32 v{t2}, 7, v{vL}\nv_lshl_add_u32 v{t0}, v{t2}, 4, v{t0}\ns_lshl_b32 s{sT+4}, s{sCB}, 7\ns_add_u32 s{sT+4}, s{sT+4}, 1152\nv_add_u32 v{vOUT}, s{sT+4}, v{t0}")
        a(f"s_mul_i32 s{sT+4}, s{sW}, {32*144}\nv_mul_u32_u24 v{t1}, 144, v{t1}\nv_lshl_add_u32 v{t1}, v{t2}, 4, v{t1}\nv_add_u32 v{vBR}, s{sT+4}, v{t1}")
        a(f"v_mul_u32_u24 v{t1}, 144, v{vI}\nv_lshl_add_u32 v{t1}, v{vG}, 3, v{t1}\nv_add_u32 v{vBW}, s{sT+4}, v{t1}")
    a(f"v_mov_b32 v{vDBA}, 0")
    for q in range(4):
        b0, b1 = [0, 9, 1, 8][q], [0, 9, 1, 8][q ^ 1]
        a(f"s_bitcmp1_b32 s{sCB}, 0\ns_cselect_b32 s{sT+4}, {b1}, {b0}\ns_mul_i32 s{sWB+q}, s{sT+4}, {36*1152}")
    a(f"s_add_u32 s6, s4, L_TABB-L_PC\ns_addc_u32 s7, s5, 0\ns_mov_b32 s{sRETRY}, 0")
    a(f"v_mov_b32 v{t2}, 0\nv_mov_b32 v{t3}, 0\nv_mov_b32 v{t4}, 0\nv_mov_b32 v{t5}, 0\nv_lshlrev_b32 v{t0}, 4, v0\nv_add_u32 v{t1}, {FM}, v{t0}")
    a(f"ds_write_b128 v{t1}, {V(t2,4)}\nds_write_b128 v{t1}, {V(t2,4)} offset:4096")
    deferred, a = a.ins, main
    dd, deferred = take(deferred, max(n_crit, N_PRE)); a.ext(dd)
    print("address instructions:", n_crit, len(dd), len(deferred))
    prof(a, 0)
    for x in dx(1) + dk(1):
        a.ext(x)

    def rd_kv(s):
        o = Asm()
        fb = vFB + 20 * (s & 1)
        base = ((s >> 1) % NW) * 16384 + (s & 1) * 2048
        for T in range(5):
            for rd in range(2):
                o(f"ds_read_b64_tr_b16 {V(fb+4*T+2*rd,2)}, v{vRK+T} offset:{base+1024*rd}", tag=f"wr{s}")
        return o.ins

    def rd_x(P):
        o = Asm()
        for h in range(2):
            for tau in range(3):
                o(f"ds_read_b128 {A(xreg(2*P+h,tau),4)}, v{vXR+h} offset:{XR+(P % NX)*24576+tau*2048}", tag=f"xr{P}")
        return o.ins

    def mm_kv(s):
        o = Asm()
        o.wait(f"wr{s}")
        fb = vFB + 20 * (s & 1)
        for T in range(5):
            for tau in range(3):
                d = V(vACC + 4 * (5 * tau + T), 4)
                c = d if s else (V(vEPS, 4) if T < 2 else V(vEPS + 4, 4) if T == 2 else "0" if T == 3 else V(vC4 + 4 * (tau == 2), 4))
                o(f"v_mfma_f32_16x16x32_bf16 {d}, {A(xreg(s,tau),4)}, {V(fb+4*T,4)}, {c}")
        return o

    def rd_q(s):
        o = Asm()
        if s == 16:
            for dl in range(3):
                o(f"v_add_u32 v{vRQ+dl}, v{vQD}, v{vRQ+dl}")
        for dl in range(3):
            for rd in range(2):
                o(f"ds_read_b64_tr_b16 {V(vFQ+12*(s % 3)+4*dl+2*rd,2)}, v{vRQ+dl} offset:{qoff(s, rd)}", tag=f"qr{s}")
        return o.ins if s < 18 else []

    def mm_q(s):
        o = Asm()
        o.wait(f"qr{s}")
        for dl in range(3):
            for tau in range(3):
                d = V(vAQ + 4 * (3 * tau + dl), 4)
                o(f"v_mfma_f32_16x16x32_bf16 {d}, {V(vFQ+12*(s % 3)+4*dl,4)}, {A(xreg(s,tau),4)}, {d if s else V(vEPS,4)}")
        return o.ins
    flat = lambda L: [i for x in L for i in x]
    a.wait("x0", "k0"); prof(a, 36); a("s_barrier")
    rx = rd_x(0)
    a.ext(rx[:3] + rd_kv(0) + rx[3:])
    for P in range(9):
        w = Asm(); w.wait(f"xr{P}")
        if P < RAMP:
            ld = flat(dx(P + 2)) if P + 2 < 9 else []
        elif P == RAMP:
            ld = flat(dx(P + 2) + dk(P + 2)) if P + 2 < 9 else []
        elif P < 6:
            ld = w.ins + flat(dx(P + 3))
        else:
            ld = []
        if P == 7:
            ld += Asm()(f"v_lshlrev_b32 v{t0}, 4, v0\nglobal_load_dwordx4 {V(vTAB,4)}, v{t0}, s[6:7]").ins
        dd = []
        if 1 <= P < 6:
            dd, deferred = take(deferred, -(-len(deferred) // (12 - 2 * P)))
        a.ext(interleave(interleave(interleave(mm_kv(2 * P), dd, per=len(dd) / 14.0), ld, per=max(LDP, len(ld) / (14.0 - LDS_)), start=LDS_), rd_kv(2 * P + 1), per=KVP))
        fill, ld = [], []
        if P < 8:
            a.wait(f"x{P+1}", f"k{P+1}")
        if P >= 6:
            a.wait(f"xr{P}")
        if P == 8:
            a.wait("q3")
        a("s_barrier")
        if P < 8:
            rx = rd_x(P + 1)
            fill = rx[:3] + rd_kv(2 * P + 2) + rx[3:]
        else:
            fill = rd_q(0)
        if P < RAMP:
            ld = flat(dk(P + 2)) if P + 2 < 9 else []
        elif P < 6:
            ld = (w.ins + flat(dx(P + 3)) if P == RAMP else []) + flat(dk(P + 3))
        if P >= 6:
            ld += flat([dq(k) for k in range([0, 4, Q7][P - 6], [4, Q7, Q8][P - 6])])
        if P == 8:
            ld += Asm()(f"buffer_load_dword v{vDBG}, v{vDBA}, s[24:27], 0 offen sc1").ins
        dd = []
        if 1 <= P < 6:
            dd, deferred = take(deferred, -(-len(deferred) // (11 - 2 * P)))
        a.ext(interleave(interleave(interleave(mm_kv(2 * P + 1), dd, per=len(dd) / 14.0), ld, per=max(LDP, len(ld) / (14.0 - LDS_)), start=LDS_), fill, per=KVP * 1.2))
        if P in (0, 2, 4, 6):
            prof(a, 20 + P // 2)
    assert not deferred
    prof(a, 2)
    qstep = lambda s: spread(mm_q(s), rd_q(s + 1))
    fg = a
    bg = qstep(0) + qstep(1) + qstep(2) + mm_q(3)

    def slot(cnt):
        while bg and cnt:
            i = bg.pop(0); fg.ins.append(i)
            cnt -= i.kind == "mfma"
        while bg and bg[0].kind == "ds":
            fg.ins.append(bg.pop(0))
    n = 0
    qrest = [dq(k) for k in range(Q8, 18)]
    for T, tau in [(T, tau) for T in (3, 4, 0, 1, 2) for tau in (0, 1)] + [(T, 2) for T in (3, 4, 0, 1, 2)]:
        src = vACC + 4 * (5 * tau + T)
        pk = (vPK if (n >> 1) & 1 else vPH + 12) + 2 * (n & 1)
        if T >= 3:
            if n > 1:
                slot(1)
            fg(f"v_cvt_pk_bf16_f32 v{pk}, v{src}, v{src+1}\nv_cvt_pk_bf16_f32 v{pk+1}, v{src+2}, v{src+3}")
        else:
            phi4(fg, src, pk, vPH + 4 * (n & 1), keep=T == 2, slot=slot)
        if qrest and n >= 2:
            fg.ext(qrest.pop(0))
        if tau == 1:
            fg(f"ds_write_b128 v{vEW}, {V(pk-2,4)} offset:{1024*T}")
        elif tau == 2:
            fg(f"ds_write_b64 v{vEW2}, {V(pk,2)} offset:{1024*T}")
        n += 1
    a.ext(bg)
    assert not qrest
    a.wait("q7")
    a("s_waitcnt lgkmcnt(0)\ns_barrier")
    prof(a, 3)
    ef = lambda j, q: A(216 + 16 * j + 4 * q, 4) if j < 2 else V(56 + 16 * (j - 2) + 4 * q, 4) if j < 5 else V(156 + 4 * q, 4)
    a.ext(rd_q(4))
    er = Asm()
    for j in range(6):
        for q in range(4):
            er(f"ds_read_b128 {ef(j,q)}, v{vER+q} offset:{5120*j}")
    a.ext(er.ins[:8])
    a.ext(spread(mm_q(4), er.ins[8:]))
    a(f"s_mul_i32 s{sT}, s{sP}, 11\ns_add_u32 s{sT}, s{sT}, s{sRB}\ns_mul_i32 s{sT}, s{sT}, {S1_SLOT}")
    km = Asm()
    for j in range(6):
        for q in range(2):
            d = V(vKD + 4 * q, 4)
            km(f"v_mfma_f32_16x16x32_bf16 {d}, {ef(j,2*q)}, {ef(j,2*q+1)}, {'0' if j == 0 else d}")
    a.ext(spread(km, rd_q(5) + rd_q(6)))
    a(f"v_cmp_gt_u32 vcc, 8, v{vDBG}")
    m5 = mm_q(5)
    a.ext(spread(m5[:5], rd_q(7)))
    a(f"s_cbranch_vccnz L_B_INIT\nL_B_INIT_OK:")
    slow("L_B_INIT:")
    slow(f"buffer_load_dword v{vDBG}, v{vDBA}, s[24:27], 0 offen sc1\ns_add_u32 s{sRETRY}, s{sRETRY}, 1\ns_cmp_gt_u32 s{sRETRY}, 0x100000")
    slow(f"s_waitcnt vmcnt(0)\ns_cbranch_scc1 L_B_INIT_OK\nv_cmp_gt_u32 vcc, 8, v{vDBG}\ns_nop 1\ns_cbranch_vccnz L_B_INIT\ns_branch L_B_INIT_OK")
    st = Asm()
    for q in range(2):
        st(f"buffer_store_dwordx4 {V(vKD+4*q,4)}, v{vTAB+q}, s[20:23], s{sT} offen sc1")
    a.ext(spread(st, m5[5:]))
    a.wait("q17")
    a("s_barrier")
    prof(a, 4)

    def gather():
        o = Asm()
        for r in range(11):
            if r:
                o(f"s_mov_b32 s{sSO}, {r*S1_SLOT}")
            o(f"buffer_load_dwordx4 {V(vGAT+4*r,4)}, v{vGA}, s[20:23], {'s%d' % sSO if r else '0'} offen sc1")
        return o.ins
    ld = []
    for k in range(18):
        ld.append(dquad(16, vDO, "", sWB + (k >> 2), 72 * 1152 * (k & 3), WO, k, f"o{k}") if k < 16 else
                  dquad(16, vDO + 1, "", None, 288 * 1152 * (k - 16), WO, k, f"o{k}"))
    ga = gather()
    for s in range(6, 18):
        ex = []
        if GS <= s < GS + 3:
            ex += ga[:7]; ga = ga[7:]
        else:
            ex += flat(ld[:2]); ld = ld[2:]
        if s == 17:
            ex += Asm()(f"buffer_load_dword v{vDBG}, v{vDBA}, s[24:27], 0 offen offset:64 sc1").ins
        a.ext(spread(spread(mm_q(s), ex), rd_q(s + 2)))
    assert not ld and not ga
    prof(a, 5)
    for tau in range(3):
        for dl in range(3):
            phi4(a, vAQ + 4 * (3 * tau + dl), vPQ + 6 * tau + 2 * dl, 128 + 4 * (dl & 1))
    prof(a, 6)

    def check(o, regs, label):
        r = list(regs)
        o(f"v_max3_u32 v{vCK}, v{r[0]}, v{r[1]}, v{r[2]}")
        r = r[3:]
        while len(r) >= 2:
            o(f"v_max3_u32 v{vCK}, v{r[0]}, v{r[1]}, v{vCK}"); r = r[2:]
        if r:
            o(f"v_max_u32 v{vCK}, v{r[0]}, v{vCK}")
        o(f"v_cmp_eq_u32 vcc, -1, v{vCK}\ns_cbranch_vccnz {label}")

    def slow_path(name, loads, regs):
        slow(f"{name}:")
        slow.ext(loads)
        slow(f"s_add_u32 s{sRETRY}, s{sRETRY}, 1\ns_cmp_gt_u32 s{sRETRY}, 0x100000\ns_waitcnt vmcnt(0)\ns_cbranch_scc1 {name}_OK")
        check(slow, regs, name)
        slow(f"s_branch {name}_OK")
    def gsum(o):
        step = 1
        while step < 11:
            for r in range(0, 11 - step, 2 * step):
                for h in range(2):
                    o(f"v_pk_add_f32 {V(vGAT+4*r+2*h,2)}, {V(vGAT+4*r+2*h,2)}, {V(vGAT+4*(r+step)+2*h,2)}")
            step *= 2
    gsum(a)
    a(f"v_cmp_u_f32 vcc, v{vGAT}, v{vGAT+1}\nv_cmp_u_f32 {S(sT+4,2)}, v{vGAT+2}, v{vGAT+3}\ns_or_b64 vcc, vcc, {S(sT+4,2)}\ns_cbranch_vccnz L_B_GA\nL_B_GA_OK:")
    slow("L_B_GA:")
    slow.ext(gather())
    slow(f"s_add_u32 s{sRETRY}, s{sRETRY}, 1\ns_cmp_gt_u32 s{sRETRY}, 0x100000\ns_waitcnt vmcnt(0)\ns_cbranch_scc1 L_B_GA_OK")
    check(slow, range(vGAT, vGAT + 44), "L_B_GA")
    gsum(slow)
    slow("s_branch L_B_GA_OK")
    a(f"v_bfe_i32 v{t0}, v{vTAB+3}, 0, 1\nv_bfe_i32 v{t1}, v{vTAB+3}, 1, 1")
    a(f"v_cvt_pk_bf16_f32 v{t2}, v{vGAT}, v{vGAT+1}\nv_cvt_pk_bf16_f32 v{t3}, v{vGAT+2}, v{vGAT+3}")
    a(f"v_and_b32 v{t2}, v{t2}, v{t0}\nv_and_b32 v{t3}, v{t3}, v{t1}\nds_write_b64 v{vTAB+2}, {V(t2,2)}")
    a.wait("o17")
    a("s_waitcnt lgkmcnt(0)\ns_barrier")
    prof(a, 7)
    for h in range(2):
        a(f"ds_read_b64 {V(vFA+12+2*h,2)}, v{vFD} offset:{32*h}")
    a(f"ds_read_b64 {V(vFA+20,2)}, v{vFD} offset:64")
    for ep in range(3):
        for h in range(2):
            a(f"ds_read_b64 {V(vFA+4*ep+2*h,2)}, v{vFR} offset:{1536*ep+32*h}")
        if ep:
            a(f"ds_read_b64 {V(vFA+14+2*ep,2)}, v{vFR} offset:{1536*ep+64}")
    om_ = []
    for tau in range(3):
        o = Asm()
        b1, b2 = V(vPQ + 6 * tau, 4), V(vPQ + 6 * tau + 4, 2)
        for ep in (3, 0, 1, 2):
            d = V(vON + 16 * tau + 4 * ep, 4)
            o(f"v_mfma_f32_16x16x32_bf16 {d}, {V(vFA+4*ep,4)}, {b1}, {V(vEPS,4) if ep == 3 else '0'}")
        for ep in (3, 1, 2):
            d = V(vON + 16 * tau + 4 * ep, 4)
            o(f"v_mfma_f32_16x16x16_bf16 {d}, {V(vFA+14+2*ep,2)}, {b2}, {d}")
        om_.append(o.ins)
    su = Asm()
    for q in range(4):
        su(f"s_and_b32 s{sT+4}, s{sCB}, 1\ns_xor_b32 s{sT+4}, s{sT+4}, {q}\ns_lshl_b32 s{sOB+q}, s{sT+4}, 12\ns_add_u32 s{sWB+q}, s{sOB+q}, 16384")
    a.ext(spread(om_[0] + om_[1][:4], su.ins))
    a(f"v_cmp_gt_u32 vcc, 8, v{vDBG}\ns_cbranch_vccnz L_B_INI2\nL_B_INI2_OK:")
    slow("L_B_INI2:")
    slow(f"buffer_load_dword v{vDBG}, v{vDBA}, s[24:27], 0 offen offset:64 sc1\ns_add_u32 s{sRETRY}, s{sRETRY}, 1\ns_cmp_gt_u32 s{sRETRY}, 0x100000")
    slow(f"s_waitcnt vmcnt(0)\ns_cbranch_scc1 L_B_INI2_OK\nv_cmp_gt_u32 vcc, 8, v{vDBG}\ns_nop 1\ns_cbranch_vccnz L_B_INI2\ns_branch L_B_INI2_OK")
    for tau in range(3):
        n0 = vON + 16 * tau; of = vOF + 6 * tau; r = vR
        o = Asm()
        o(f"v_rcp_f32 v{r}, v{n0+12}\nv_rcp_f32 v{r+1}, v{n0+13}")
        if tau == 2:
            o(f"s_cmp_lt_u32 s{sRB}, 10\ns_cselect_b32 s{sT}, {2*65536}, {OOB}\ns_cselect_b32 s{sT+1}, {2*8192}, {OOB}") if False else None
            o(f"s_cmp_lt_u32 s{sRB}, 10\ns_cselect_b32 s{sT}, 0, {OOB}\ns_add_u32 s{sT+1}, s{sT}, {2*8192}\ns_add_u32 s{sT}, s{sT}, {2*65536}")
        else:
            o(f"s_mov_b32 s{sT}, {65536*tau}\ns_mov_b32 s{sT+1}, {8192*tau}")
        o(f"v_cndmask_b32 v{r+2}, v{r+1}, v{r}, {S(sMG0,2)}")
        if tau == 0:
            for q in range(12):
                o(f"v_mul_f32 v{n0+q}, v{r + (0 if q < 4 else 2 if q < 6 else 1)}, v{n0+q}")
        else:
            o(f"v_pk_mul_f32 {V(n0,2)}, {V(n0,2)}, {V(r,2)} op_sel_hi:[1,0]\nv_pk_mul_f32 {V(n0+2,2)}, {V(n0+2,2)}, {V(r,2)} op_sel_hi:[1,0]")
            o(f"v_pk_mul_f32 {V(n0+4,2)}, {V(n0+4,2)}, {V(r+2,2)} op_sel_hi:[1,0]")
            for q in (6, 8, 10):
                o(f"v_pk_mul_f32 {V(n0+q,2)}, {V(n0+q,2)}, {V(r,2)} op_sel:[0,1] op_sel_hi:[1,1]")
        for q in range(6):
            o(f"v_cvt_pk_bf16_f32 v{of+q}, v{n0+2*q}, v{n0+2*q+1}")
        o(f"buffer_store_dwordx4 {V(of,4)}, v{vS2}, s[20:23], s{sT} offen sc1")
        o(f"buffer_store_dwordx2 {V(of+4,2)}, v{vS2T}, s[20:23], s{sT+1} offen sc1")
        a.ext(spread(o, om_[1][4:] + om_[2]) if tau == 0 else o.ins)
    if prof.on:
        a(f"s_cmp_eq_u32 s{sG2}, 0\ns_cbranch_scc1 L_B_EXIT")
        pv = prof.prev
        slow("L_B_EXIT:"); prof(slow, 8, final=True); slow("s_endpgm")
        prof.prev = pv
    else:
        a(f"s_cmp_eq_u32 s{sG2}, 0\ns_cbranch_scc1 L_END")
    prof(a, 8)

    def wreg(k, T, n=4, o=0):
        return A(16 * k + 4 * T + o, n) if k < 16 else V(vWV + 16 * (k - 16) + 4 * T + o, n)
    om = lambda k, rt: vOM + 4 * (2 * k + rt)

    def oloads(ks):
        o = Asm()
        cur = None
        for k in ks:
            for rt in range(2):
                if k < 16:
                    o(f"buffer_load_dwordx4 {V(om(k,rt),4)}, v{vOL}, s[20:23], s{(sWB if rt else sOB) + (k >> 2)} offen offset:{1024*(k & 3)} sc1")
                else:
                    for hf in range(2):
                        o(f"buffer_load_dwordx2 {V(om(k,rt)+2*hf,2)}, v{vOLT}, s[20:23], 0 offen offset:{2048*rt+1024*(k-16)+128*hf} sc1")
        return o.ins
    def rd_o(ks):
        rd = Asm()
        for k in ks:
            if k == 16:
                for T in range(4):
                    rd(f"v_add_u32 v{vRO+T}, v{vQD}, v{vRO+T}")
            for T in range(4):
                for h in range(2):
                    rd(f"ds_read_b64_tr_b16 {wreg(k,T,2,2*h)}, v{vRO+T} offset:{qoff(k, h)}")
        return rd.ins
    rd = rd_o(range(RD0))
    late = rd_o(range(RD0, 18))
    groups = [list(range(4 * q, 4 * q + 4)) for q in range(4)] + [[16, 17]]
    gregs = lambda ks: [om(k, rt) + i for k in ks for rt in range(2) for i in range(4)]
    z = Asm()
    vCN = 10
    z(f"v_and_b32 v{vCK}, 63, v0\nv_lshlrev_b32 v{vCN}, 4, v{vCK}\nv_sub_u32 v{vCN}, v{vOL}, v{vCN}\nv_and_b32 v{vCN+1}, 1, v{vCK}\nv_lshl_add_u32 v{vCN}, v{vCN+1}, 14, v{vCN}")
    z(f"v_bfe_u32 v{vCN+1}, v{vCK}, 1, 2\nv_lshl_add_u32 v{vCN}, v{vCN+1}, 10, v{vCN}\nv_add_u32 v{vCN}, 1020, v{vCN}")
    z(f"v_readfirstlane_b32 s{sT+1}, v{vOLT}\nv_and_b32 v{vCN+1}, 31, v{vCK}\nv_lshlrev_b32 v{vCN+1}, 7, v{vCN+1}\nv_add_u32 v{vCN+1}, s{sT+1}, v{vCN+1}\nv_add_u32 v{vCN+1}, 124, v{vCN+1}")
    for i in range(32):
        z(f"v_mov_b32 v{vA2+i}, 0")
    isds = lambda i: i.kind == "ds"
    a.ext(interleave(interleave(rd, z, per=1, start=8 * RD0 - 48, pred=isds), oloads(groups[0] + groups[1]), per=OL_PER, start=OL_START, pred=isds))
    prof(a, 9)

    def mm_o(ks):
        o = Asm()
        for k in ks:
            for rt in range(2):
                for T in range(4):
                    d = V(vA2 + 4 * (4 * rt + T), 4)
                    o(f"v_mfma_f32_16x16x32_bf16 {d}, {wreg(k,T)}, {V(om(k,rt),4)}, {d}")
        return o

    def epilogue(rt):
        o = Asm()
        for T in range(4):
            n0 = vA2 + 4 * (4 * rt + T); p0 = vOM + 2 * (4 * rt + T)
            o(f"v_cvt_pk_bf16_f32 v{p0}, v{n0}, v{n0+1}\nv_cvt_pk_bf16_f32 v{p0+1}, v{n0+2}, v{n0+3}")
            o(f"ds_write_b64 v{vBW}, {V(p0,2)} offset:{16*144*rt+32*T}")
        for q in (2 * rt, 2 * rt + 1):
            o(f"ds_read_b128 {V(vOM+16+4*q,4)}, v{vBR} offset:{8*144*q}")
        for q in (2 * rt, 2 * rt + 1):
            if q:
                o(f"s_mov_b32 s{sT}, {8*2304*q}")
            o(f"buffer_store_dwordx4 {V(vOM+16+4*q,4)}, v{vOUT}, s[28:31], {'s%d' % sT if q else '0'} offen {OUT_FLAGS}")
        return o
    if 'oldepi' in EXP:
        def epilogue(rt):
            o = Asm()
            for u in range(2):
                p0 = vOM + 4 * (2 * rt + u)
                for h in range(2):
                    n0 = vA2 + 4 * (4 * rt + 2 * u + h)
                    o(f"v_cvt_pk_bf16_f32 v{p0+2*h}, v{n0}, v{n0+1}\nv_cvt_pk_bf16_f32 v{p0+2*h+1}, v{n0+2}, v{n0+3}")
                o(f"v_permlane16_swap_b32 v{p0}, v{p0+2}\nv_permlane16_swap_b32 v{p0+1}, v{p0+3}")
                o(f"buffer_store_dwordx4 {V(p0,4)}, v{vOUT}, s[28:31], {'s%d' % sT if rt else '0'} offen offset:{64*u} {OUT_FLAGS}")
            return o

    sPEND, sFORCE, sREADY = 83, 84, 85
    a(f"s_mov_b32 s{sT}, {16*2304}")
    taken = 0
    check(a, gregs(groups[0]), "L_B_R0")
    a("L_B_R0_OK:")
    for gi, ks in enumerate(groups):
        m = mm_o(ks).ins
        if gi < 4:
            c = Asm(); check(c, gregs(groups[gi + 1]), f"L_B_R{gi+1}")
            if gi + 2 < 5:
                m = interleave(m, oloads(groups[gi + 2]), per=0.3)
            need = max(0, 8 * (min(18, 4 * gi + 12) - RD0) + (4 if 4 * gi + 12 > 16 else 0) - taken)
            m = interleave(m, late[taken:taken + need], per=need / 30.0); taken += need
            a.ext(interleave(m, c.ins[:-1], per=1, start=32 - len(c.ins)))
            a.ext(c.ins[-1:])
            a(f"L_B_R{gi+1}_OK:")
        else:
            m0 = [i for n, i in enumerate(m) if (n >> 2) & 1 == 0]; m1 = [i for n, i in enumerate(m) if (n >> 2) & 1]
            a.ext(m0 + m1[:3])
            a.ext(spread(epilogue(0), m1[3:]))
            a.ext(epilogue(1))
        prof(a, 10 + gi)
    pv = prof.prev
    prof(a, 16, final=True)
    a("s_endpgm")
    dyn = Asm()
    for gi, ks in enumerate(groups):
        dyn(f"L_B_R{gi}:")
        if 'nocanary' not in EXP:
            if gi < 4:
                dyn(f"buffer_load_dword v{vCK}, v{vCN}, s[20:23], s{sOB+gi} offen sc1")
            else:
                dyn(f"buffer_load_dword v{vCK}, v{vCN+1}, s[20:23], 0 offen sc1")
            dyn(f"s_add_u32 s{sRETRY}, s{sRETRY}, 1\ns_cmp_gt_u32 s{sRETRY}, 0x100000\ns_waitcnt vmcnt(0)\ns_cbranch_scc1 L_B_R{gi}_OK")
            dyn(f"v_cmp_eq_u32 vcc, -1, v{vCK}\ns_cbranch_vccnz L_B_R{gi}")
        dyn.ext(oloads(ks + (groups[gi + 1] if gi < 4 and 'norefresh' not in EXP else [])))
        dyn(f"s_add_u32 s{sRETRY}, s{sRETRY}, 1\ns_cmp_gt_u32 s{sRETRY}, 0x100000\ns_waitcnt vmcnt({(8 if gi < 4 and 'norefresh' not in EXP else 0)})\ns_cbranch_scc1 L_B_R{gi}_OK")
        check(dyn, gregs(ks), f"L_B_R{gi}")
        dyn(f"s_waitcnt vmcnt(0)\ns_branch L_B_R{gi}_OK")
    return finish(a) + finish(slow) + finish(dyn)
```

```python
from asmlib import *
from gen_common import *
import numpy as np

XR = 0
WQ = 0
WR = 73728
EX = WR + 16384
WO = WR
FM = 147456
FDUMMY = FM + 4608
NX, NW = 3, 4
PAIRS = [[(0, 2), (0, 3)], [(0, 4), (1, 4)], [(1, 2), (1, 3)], [(2, 3), (2, 4)]]


def head_of(e):
    return 0 if (e < 18 or e == 36) else 1


def table_b():
    T = np.zeros((256, 4), np.uint32)
    T[:, 0] = OOB; T[:, 1] = OOB
    cons = []
    for w in range(4):
        for q in range(2):
            kt, vt = PAIRS[w][q]
            for l in range(64):
                c, g = l % 16, l // 16
                e, ch = 16 * vt + c - 36, 4 * kt + g
                if 0 <= e < 38 and 4 * head_of(e) <= ch <= 4 * head_of(e) + 4:
                    T[64 * w + l, q] = 16 * len(cons)
                    cons.append((e, ch))
    assert len(cons) == 190
    for t in range(256):
        if t < 190:
            e, ch = cons[t]
            fl = 3 if ch != 4 else (1 if head_of(e) == 0 else 2)
            T[t, 2] = FM + 96 * e + 8 * ch; T[t, 3] = fl
        else:
            T[t, 2] = FDUMMY + 8 * (t - 190); T[t, 3] = 0
    return T


vQD = 1
vRO = 2
vOL, vOLT, vOUT, vCK = 6, 7, 8, 9
vL, vI, vG, vX = 10, 11, 12, 13
vDQ = 16
vXR = 17
vXD = 176
vDK = 182
vRK = 22
vRQ = 27
vEW, vGA = 30, 31
vTAB = 32
vT = 36
vONE = 42
vER = 44
vDO = 48
vFR, vFD, vS2, vS2T, vDBG, vDBA = 50, 51, 52, 53, 54, 55
vACC = 56
vFB = 116
vPH = 156
vPK = 172
vKD = 104
vAQ = 186
vFQ = 116
vGAT = 56
vPQ = 222
vFA = 156
vON = 56
vOF = 104
vR = 124
vMM, vLO = 248, 249
vBW, vBR = 250, 251
vEW2 = 42
vC4 = 186
vEPS = 240
vA2 = 12
vWV = 44
vOM = 76
sW, sRB, sP, sRB2, sCB, sG2 = 52, 53, 54, 55, 56, 57
sT = 58
sB, sMX = 64, 65
sM0 = 66
sMK4, sMK89, sMG0 = 68, 70, 72
sLOG, sEPS = 74, 76
sRETRY = 78
sSO = 79
sSX, sSK, sMW = 80, 81, 82
sPC, sPQ, sQK = 83, 84, 85
sWB, sOB = 86, 64


_E = __import__('os').environ
OL_START, OL_PER, OL_AHEAD = int(_E.get('OLS', 100)), float(_E.get('OLP', 0.4)), int(_E.get('OLA', 2))
GS = int(_E.get('GS', 15))
RD0 = int(_E.get('RD0', 18))
LDP, LDS_ = float(_E.get('LDP', 0)), int(_E.get('LDS', 0))
RAMP = int(_E.get('RAMP', 0))
Q7, Q8 = int(_E.get('Q7', 8)), int(_E.get('Q8', 10))
NT = _E.get('NT', 'none').split(',')
nt = lambda k: ' nt' if k in NT else ''
KVP = float(_E.get('KVP', 1))
N_PRE = int(__import__('os').environ.get('NPRE', '999'))
import os
OUT_FLAGS = os.environ.get("OUTF", "")
EXP = os.environ.get('EXP', '').split(',')


def xreg(s, tau):
    return (3 * s + tau) * 4


def mneed(s):
    return -(-(5 * s + 5) // 4)


def phi4(a, src, dst, tmp, keep=None, slot=lambda n: None):
    e = tmp
    a(f"v_pk_mul_f32 {V(e,2)}, {V(src,2)}, {S(sLOG,2)}\nv_pk_mul_f32 {V(e+2,2)}, {V(src+2,2)}, {S(sLOG,2)}")
    m = src
    for i in range(4):
        if i in (0, 2):
            slot(1)
        a(f"v_exp_f32_e64 v{e+i}, v{e+i} clamp\nv_max_f32 v{m+i}, {'v%d' % vLO if keep else 's%d' % sEPS}, v{src+i}")
    for h in (0, 2):
        if keep:
            a(f"v_pk_fma_f32 {V(e+h,2)}, {V(e+h,2)}, {V(vMM,2)}, {V(m+h,2)} op_sel_hi:[1,0,1]")
        else:
            a(f"v_pk_add_f32 {V(e+h,2)}, {V(e+h,2)}, {V(m+h,2)}")
    slot(1)
    a(f"v_cvt_pk_bf16_f32 v{dst}, v{e}, v{e+1}\nv_cvt_pk_bf16_f32 v{dst+1}, v{e+2}, v{e+3}")


def spread(fg, bg):
    fg = atoms(fg.ins if isinstance(fg, Asm) else fg)
    bg = atoms(bg)
    out, k = [], 0
    for n, i in enumerate(fg):
        out.extend(i)
        while k < len(bg) and (k + 1) * len(fg) <= (n + 1) * len(bg):
            out.extend(bg[k]); k += 1
    return out + [x for g in bg[k:] for x in g]


def gen_b(prof):
    a = Asm()
    slow = Asm()
    t0, t1, t2, t3, t4, t5 = range(vT, vT + 6)
    a(f"s_load_dwordx2 s[8:9], s[0:1], 72\ns_load_dwordx2 s[12:13], s[0:1], 80")
    a(f"s_mov_b32 s10, {2048*1152}\ns_mov_b32 s11, 0x20000\ns_mov_b32 s14, {576*3456}\ns_mov_b32 s15, 0x20000")
    a(f"s_mul_i32 s{sRB}, s6, 3\ns_lshr_b32 s{sT}, s{sJ}, 3\ns_add_u32 s{sRB}, s{sRB}, s{sT}")
    a(f"s_and_b32 s{sT}, s{sJ}, 7\ns_lshr_b32 s{sP}, s{sX}, 2\ns_lshl_b32 s{sP}, s{sP}, 3\ns_add_u32 s{sP}, s{sP}, s{sT}")
    a(f"v_lshrrev_b32 v{t0}, 6, v0\nv_bfe_u32 v{vG}, v0, 4, 2\nv_bfe_u32 v{t1}, v0, 3, 3\nv_readfirstlane_b32 s{sW}, v{t0}")
    a(f"s_mul_i32 s{sT}, s{sRB}, 192\nv_lshl_add_u32 v{t1}, v{t0}, 4, v{t1}\nv_add_u32 v{t1}, s{sT}, v{t1}\nv_mul_u32_u24 v{t1}, 1152, v{t1}")
    a(f"v_and_b32 v{t2}, 7, v0\nv_xor_b32 v{t2}, v{t2}, v{vG}\nv_lshl_add_u32 v{vXD}, v{t2}, 4, v{t1}")
    a(f"v_xor_b32 v{t2}, 4, v{t2}\nv_lshl_add_u32 v{vXD+1}, v{t2}, 4, v{t1}\nv_add_u32 v{vXD+1}, {8*1152-1024}, v{vXD+1}")
    a(f"v_add_u32 v{vXD+2}, {64*1152-2048}, v{vXD}\nv_add_u32 v{vXD+3}, {64*1152-2048}, v{vXD+1}")
    a(f"v_add_u32 v{vXD+4}, {128*1152}, v{vXD}\nv_add_u32 v{vXD+5}, {128*1152}, v{vXD+1}")
    a(f"s_mul_i32 s{sMX}, s{sW}, 6144\ns_lshl_b32 s{sMW}, s{sW}, 12")
    a(f"s_and_b32 s{sT}, s{sP}, 1\ns_lshl_b32 s{sT}, s{sT}, 3\ns_mul_i32 s{sT+1}, s{sP}, 72\ns_sub_u32 s{sT+1}, s{sT+1}, s{sT}")
    a(f"s_and_b32 s{sB}, s{sT+1}, 127\ns_sub_u32 s{sB}, 128, s{sB}\ns_lshr_b32 s{sB}, s{sB}, 4\ns_min_u32 s{sB}, s{sB}, 4")
    a(f"s_sub_u32 s{sT+2}, 5, s{sB}\ns_mov_b32 s{sT+3}, 3456")
    if 'rot1' in EXP:
        a(f"s_lshr_b32 s{sPC}, s{sJ}, 3\ns_mul_i32 s{sPC}, s{sPC}, 3\ns_and_b32 s{sPQ}, s{sJ}, 7\ns_add_u32 s{sPC}, s{sPC}, s{sPQ}")
    else:
        offs = [1, 0, 4, 0, 7, 0, 1, 0] if 'rot3' not in EXP else [1, 0, 4, 0, 7, 0, 2, 0]
        pk0 = sum(o << (4 * i) for i, o in enumerate(offs)); pk1 = sum(o << (4 * (7 - i)) for i, o in enumerate(offs))
        a(f"s_mov_b32 s{sPC}, {pk0}\ns_cmp_ge_u32 s{sP}, 8\ns_cselect_b32 s{sPC}, {pk1}, s{sPC}\ns_and_b32 s{sPQ}, s{sJ}, 7\ns_lshl_b32 s{sPQ}, s{sPQ}, 2")
        a(f"s_lshr_b32 s{sPQ}, s{sPC}, s{sPQ}\ns_and_b32 s{sPQ}, s{sPQ}, 15\ns_lshr_b32 s{sPC}, s{sJ}, 3\ns_mul_i32 s{sPC}, s{sPC}, 3\ns_add_u32 s{sPC}, s{sPC}, s{sPQ}")
    a(f"s_sub_u32 s{sPQ}, s{sPC}, 9\ns_cmp_ge_u32 s{sPC}, 9\ns_cselect_b32 s{sPC}, s{sPQ}, s{sPC}\ns_mov_b32 s{sPQ}, s{sPC}")
    a(f"s_lshl_b32 s{sSX}, s{sPC}, 7\ns_mul_i32 s{sSK}, s{sPC}, {64*3456}")
    def slot_to_col(dst, q, e, tmp):
        a(f"v_mov_b32 v{tmp}, s{sB}\nv_mul_u32_u24 v{dst}, v{q}, v{tmp}\nv_add_u32 v{dst}, v{dst}, v{e}")
        a(f"v_cmp_eq_u32 vcc, 0, v{q}\nv_mov_b32 v{q}, s{sT+2}\nv_cndmask_b32 v{tmp}, v{q}, v{tmp}, vcc\nv_cmp_lt_u32 vcc, v{e}, v{tmp}")
    a(f"v_bfe_u32 v{t1}, v0, 2, 2\nv_xor_b32 v{t1}, v{t1}, v{vG}")
    a(f"v_and_b32 v{t2}, 3, v0\nv_bfe_u32 v{t3}, v0, 6, 1\nv_lshlrev_b32 v{t3}, 1, v{t3}\nv_xor_b32 v{t2}, v{t2}, v{t3}")
    a(f"v_lshrrev_b32 v{t3}, 1, v{t1}\nv_and_b32 v{t1}, 1, v{t1}\nv_mul_u32_u24 v{t3}, 1152, v{t3}")
    slot_to_col(t4, t1, t2, t5)
    a(f"v_lshl_add_u32 v{t3}, v{t4}, 4, v{t3}\nv_lshl_add_u32 v{t0}, v{t0}, 3, v{vG}\nv_mad_u32_u24 v{t3}, v{t0}, s{sT+3}, v{t3}")
    a(f"s_add_u32 s{sT+4}, s{sT+1}, 1152\nv_add_u32 v{t3}, s{sT+4}, v{t3}\nv_mov_b32 v{t4}, {OOB}\nv_cndmask_b32 v{vDK}, v{t4}, v{t3}, vcc")
    for m in range(1, 4):
        a(f"v_add_u32 v{vDK+m}, {(32*(m >> 1)+4*(m & 1))*3456-1024*m}, v{vDK}")
    prof(a, 30)
    a("s_waitcnt lgkmcnt(0)")
    prof(a, 31)

    def dx(P):
        o = []
        for n in range(6):
            x = Asm()
            if n % 4 == 0:
                x(f"s_add_u32 m0, s{sMX}, {XR + (P % NX) * 24576 + 1024 * n}")
            if n == 0 and P:
                x(f"s_add_u32 s{sPC}, s{sPC}, 1\ns_cmp_eq_u32 s{sPC}, 9\ns_cselect_b32 s{sPC}, 0, s{sPC}\ns_lshl_b32 s{sSX}, s{sPC}, 7")
            x(f"buffer_load_dwordx4 v{vXD+n}, s[8:11], s{sSX} offen offset:{1024*(n % 4)}{nt('x')} lds", tag=f"x{P}")
            o.append(x.ins)
        return o

    def dk(P):
        o = []
        for m in range(4):
            x = Asm()
            if m == 0:
                x(f"s_add_u32 m0, s{sMW}, {WR + (P % NW) * 16384}")
                if P:
                    x(f"s_mul_i32 s{sSK}, s{sPC}, {64*3456}")
            x(f"buffer_load_dwordx4 v{vDK+m}, s[12:15], s{sSK} offen offset:{1024*m}{nt('w')} lds", tag=f"k{P}")
            o.append(x.ins)
        return o

    def dquad(srdreg, vaddr, pre, sbase, so, ldsbase, k, tag):
        x = Asm()
        if k == 16:
            x(f"s_lshr_b32 s{sSO}, s{sMW}, 1\ns_add_u32 m0, s{sSO}, {ldsbase + 65536}")
        elif k % 4 == 0:
            x(f"s_add_u32 m0, s{sMW}, {ldsbase + 4096 * k}")
        x(pre)
        so -= 1024 * (k % 4)
        if sbase is None:
            x(f"s_mov_b32 s{sSO}, {so}")
        elif so:
            x(f"s_add_u32 s{sSO}, s{sbase}, {so & 0xffffffff}")
        x(f"buffer_load_dwordx4 v{vaddr}, s[{srdreg}:{srdreg+3}], s{sSO if so or sbase is None else sbase} offen offset:{1024*(k % 4)}{nt(tag[0])} lds", tag=tag)
        return x.ins

    def dq(k):
        pre = ""
        if k % 2 == 0:
            if k:
                pre = f"s_add_u32 s{sPQ}, s{sPQ}, 1\ns_cmp_eq_u32 s{sPQ}, 9\ns_cselect_b32 s{sPQ}, 0, s{sPQ}\n"
            pre += f"s_mul_i32 s{sQK}, s{sPQ}, {64*3456}\ns_add_u32 s{sQK}, s{sQK}, 2048"
        return dquad(92, vDQ, pre, sQK, 32 * 3456 * (k & 1), WQ, k, f"q{k}")
    qoff = lambda k, rd: 16384 * (k >> 2) + 8192 * rd + 1024 * (k & 3) if k < 16 else 4096 * rd + 1024 * (k & 1)

    for x in dx(0):
        a.ext(x)
    prof(a, 32)
    prof(a, 33)
    for x in dk(0):
        a.ext(x)
    prof(a, 34)
    main, a = a, Asm()
    a(f"v_and_b32 v{vL}, 63, v0\nv_and_b32 v{vI}, 15, v0")
    a(f"v_lshrrev_b32 v{t0}, 1, v{vI}\nv_xor_b32 v{t0}, v{t0}, v{vG}\nv_lshl_add_u32 v{t1}, v{vI}, 7, s{sMX}")
    a(f"v_lshl_add_u32 v{vXR}, v{t0}, 4, v{t1}\nv_xor_b32 v{vXR+1}, 64, v{vXR}")
    a(f"v_lshrrev_b32 v{t0}, 2, v{vL}\nv_and_b32 v{t1}, 3, v{vL}")
    u0, u1, u2, u3, u4, u5, u6 = range(vPH, vPH + 7)
    a(f"v_and_b32 v{u0}, 3, v{t0}\nv_and_b32 v{u1}, 1, v{vG}\nv_lshlrev_b32 v{u1}, 1, v{u1}\nv_bfe_u32 v{u5}, v{t0}, 1, 1")

    def col_to_slot(cc):
        a(f"v_lshl_add_u32 v{u2}, v{cc}, 3, s{sT}\nv_and_b32 v{u4}, 8, v{u2}\nv_lshrrev_b32 v{u3}, 4, v{u2}")
        a(f"v_cmp_le_u32 vcc, s{sB}, v{u3}\nv_subrev_u32 v{u2}, s{sB}, v{u3}\nv_cndmask_b32 v{u3}, v{u3}, v{u2}, vcc\nv_cndmask_b32 v{u2}, 0, 1, vcc")
        a(f"v_xor_b32 v{u3}, v{u3}, v{u1}\nv_lshl_add_u32 v{u3}, v{u3}, 4, v{u4}")
    for T in range(5):
        if T < 2:
            a(f"v_add_u32 v{t3}, {4*T}, v{t1}\nv_mov_b32 v{t4}, 0")
        elif T == 2:
            a(f"v_cmp_eq_u32 vcc, 0, v{t1}\nv_add_u32 v{t3}, -1, v{t1}\nv_cndmask_b32 v{t3}, v{t3}, 8, vcc\nv_cndmask_b32 v{t4}, 2, 0, vcc")
        else:
            a(f"v_add_u32 v{t3}, {4*T-9}, v{t1}\nv_min_u32 v{t3}, 8, v{t3}\nv_mov_b32 v{t4}, 2")
        col_to_slot(t3)
        if T == 4:
            a(f"s_cmp_eq_u32 s{sB}, 1\ns_cselect_b32 s{sT+4}, 0, 1\nv_cmp_gt_u32 vcc, 2, v{t1}\nv_mov_b32 v{u4}, s{sT+4}\nv_xor_b32 v{t5}, 3, v{u1}\nv_lshlrev_b32 v{t5}, 4, v{t5}")
            a(f"v_cndmask_b32 v{u2}, v{u4}, v{u2}, vcc\nv_cndmask_b32 v{u3}, v{t5}, v{u3}, vcc")
        a(f"v_or_b32 v{u2}, v{u2}, v{t4}\nv_xor_b32 v{u2}, v{u2}, v{u0}\nv_lshl_add_u32 v{u3}, v{u2}, 6, v{u3}")
        a(f"v_lshl_add_u32 v{u3}, v{u0}, 8, v{u3}\nv_lshl_add_u32 v{u3}, v{vG}, 12, v{u3}\nv_add_u32 v{vRK+T}, {WR}, v{u3}")
    a(f"v_cmp_gt_u32 {S(sMK4,2)}, 4, v{vI}\nv_and_b32 v{t5}, 14, v{vI}\nv_cmp_eq_u32 {S(sMK89,2)}, 8, v{t5}\nv_cmp_eq_u32 {S(sMG0,2)}, 0, v{vG}")
    a(f"s_mov_b32 s{sLOG}, 0x3fb8aa3b\ns_mov_b32 s{sLOG+1}, 0x3fb8aa3b\ns_mov_b32 s{sEPS}, 0x358637bd\ns_mov_b32 s{sEPS+1}, 0x358637bd")
    for i in range(4):
        a(f"v_mov_b32 v{vEPS+i}, s{sEPS}\nv_cndmask_b32 v{vEPS+4+i}, 0, v{vEPS+i}, {S(sMK4,2)}")
    a(f"v_cndmask_b32 v{vMM}, 0, 1.0, {S(sMK4,2)}\nv_mov_b32 v{vLO}, 0xff800000\nv_cndmask_b32 v{vLO}, v{vLO}, v{vEPS}, {S(sMK4,2)}")
    a(f"s_cmp_lt_u32 s{sRB}, 10\ns_cselect_b32 s{sT+4}, 1.0, 0\nv_cndmask_b32 v{vC4}, 0, 1.0, {S(sMK89,2)}\nv_mul_f32 v{vC4+4}, s{sT+4}, v{vC4}")
    for i in range(1, 4):
        a(f"v_mov_b32 v{vC4+i}, v{vC4}\nv_mov_b32 v{vC4+4+i}, v{vC4+4}")
    n_crit = len(a.ins)
    a(f"v_and_b32 v{u6}, 7, v{t0}\nv_lshlrev_b32 v{u6}, 7, v{u6}\nv_lshrrev_b32 v{u2}, 1, v{vG}\nv_lshl_add_u32 v{u6}, v{u2}, 12, v{u6}")
    a(f"v_lshlrev_b32 v{u2}, 11, v{u2}\nv_sub_u32 v{vQD}, 0x10000, v{u2}")
    a(f"s_cmp_eq_u32 s{sB}, 1\ns_cselect_b32 s{sT+4}, 0, 1")
    for dl in range(3):
        a(f"v_add_u32 v{t3}, {4*dl}, v{t1}")
        col_to_slot(t3)
        if dl == 2:
            a(f"v_cmp_eq_u32 vcc, 0, v{t1}\nv_mov_b32 v{t4}, s{sT+4}\nv_xor_b32 v{t5}, 3, v{u1}\nv_lshlrev_b32 v{t5}, 4, v{t5}")
            a(f"v_cndmask_b32 v{u2}, v{t4}, v{u2}, vcc\nv_cndmask_b32 v{u3}, v{t5}, v{u3}, vcc")
        a(f"v_xor_b32 v{u2}, v{u2}, v{u5}\nv_lshl_add_u32 v{u3}, v{u2}, 6, v{u3}\nv_add_u32 v{vRQ+dl}, v{u6}, v{u3}")
    a(f"v_and_b32 v{t2}, 6, v{t0}\nv_lshrrev_b32 v{t3}, 1, v{t1}\nv_and_b32 v{t4}, 1, v{t1}")
    a(f"v_lshlrev_b32 v{t4}, 3, v{t4}\nv_add_u32 v{t4}, v{u6}, v{t4}\nv_lshl_add_u32 v{t4}, v{t3}, 4, v{t4}")
    for T in range(4):
        a(f"v_xor_b32 v{t3}, {2*T}, v{t2}\nv_lshl_add_u32 v{vRO+T}, v{t3}, 4, v{t4}\nv_add_u32 v{vRO+T}, {WO}, v{vRO+T}")
    a(f"v_lshrrev_b32 v{t0}, 3, v0\nv_bfe_u32 v{t1}, v0, 2, 1\nv_bfe_u32 v{t2}, v0, 4, 1\nv_xor_b32 v{t1}, v{t1}, v{t2}")
    a(f"v_and_b32 v{t2}, 3, v0\nv_bfe_u32 v{t3}, v0, 5, 1\nv_lshlrev_b32 v{t3}, 1, v{t3}\nv_xor_b32 v{t2}, v{t2}, v{t3}")
    slot_to_col(t4, t1, t2, t5)
    a(f"v_and_b32 v{t1}, 3, v{t0}\nv_and_b32 v{t2}, 12, v{t0}\nv_lshl_or_b32 v{t1}, v{t2}, 1, v{t1}\nv_lshrrev_b32 v{t2}, 4, v{t0}\nv_lshl_or_b32 v{t1}, v{t2}, 2, v{t1}")
    a(f"v_lshl_add_u32 v{t4}, v{t4}, 4, s{sT+1}\nv_mad_u32_u24 v{t4}, v{t1}, s{sT+3}, v{t4}\nv_mov_b32 v{t1}, {OOB}\nv_cndmask_b32 v{vDQ}, v{t1}, v{t4}, vcc")
    a(f"s_and_b32 s{sT+4}, s{sX}, 3\ns_cmp_eq_u32 s{sT+4}, 2\ns_cselect_b32 s{sT+4}, 20, 18\ns_cmp_lt_u32 s{sJ}, s{sT+4}")
    a(f"s_cselect_b32 s{sG2}, 1, 0\ns_cselect_b32 s18, {576*1152}, 0")
    a(f"s_cmp_ge_u32 s{sJ}, 18\ns_cselect_b32 s{sT+4}, 16, 0\ns_mul_i32 s{sT+5}, s{sX}, 18\ns_add_u32 s{sT+5}, s{sT+5}, s{sJ}\ns_add_u32 s{sT+5}, s{sT+5}, s{sT+4}")
    a(f"s_mul_i32 s{sRB2}, s{sT+5}, 7282\ns_lshr_b32 s{sRB2}, s{sRB2}, 16\ns_mul_i32 s{sT+4}, s{sRB2}, 9\ns_sub_u32 s{sCB}, s{sT+5}, s{sT+4}")
    a(f"s_mov_b32 s16, s{pWO}\ns_mov_b32 s17, s{pWO+1}\ns_mov_b32 s19, 0x20000")
    a(f"s_sub_u32 s92, s{pW}, 2048\ns_subb_u32 s93, s{pW+1}, 0\ns_mov_b32 s94, {576*3456+2048}\ns_mov_b32 s95, 0x20000")
    srd(a, 20, pWS, SENT_SIZE)
    srd(a, 24, pDBG, 256)
    srd(a, 28, pOUT, 2048 * 2304)
    a(f"v_lshrrev_b32 v{t0}, 3, v0\nv_and_b32 v{t1}, 7, v0\nv_and_b32 v{t2}, 6, v{t0}\nv_xor_b32 v{t1}, v{t1}, v{t2}")
    a(f"s_lshl_b32 s{sT+4}, s{sCB}, 7\nv_lshl_add_u32 v{t1}, v{t1}, 4, s{sT+4}")
    a(f"v_mul_u32_u24 v{t2}, 1152, v{t0}\nv_add_u32 v{vDO}, v{t1}, v{t2}")
    a(f"v_bfe_u32 v{t2}, v{t0}, 2, 2\nv_lshrrev_b32 v{t3}, 4, v{t0}\nv_lshl_add_u32 v{t2}, v{t2}, 1, v{t3}\nv_mul_u32_u24 v{t2}, 36, v{t2}")
    a(f"v_and_b32 v{t3}, 3, v{t0}\nv_add3_u32 v{t2}, v{t2}, v{t3}, 32\nv_mul_u32_u24 v{t2}, 1152, v{t2}\nv_add_u32 v{vDO+1}, v{t1}, v{t2}")
    a(f"s_lshr_b32 s{sT+4}, s{sW}, 1\ns_mul_i32 s{sT+4}, s{sT+4}, 5120\ns_and_b32 s{sT+5}, s{sW}, 1\ns_lshl_b32 s{sT+5}, s{sT+5}, 3\ns_add_u32 s{sT+4}, s{sT+4}, s{sT+5}\ns_add_u32 s{sT+4}, s{sT+4}, {EX+20480}")
    a(f"v_lshl_add_u32 v{vEW2}, v{vL}, 4, s{sT+4}\ns_mul_i32 s{sT+4}, s{sW}, 5120\ns_add_u32 s{sT+4}, s{sT+4}, {EX}\nv_lshl_add_u32 v{vEW}, v{vL}, 4, s{sT+4}")
    a(f"s_lshl_b32 s{sT+5}, s{sW}, 2")
    for q in range(4):
        pk = sum(PAIRS[w][q // 2][q % 2] << (4 * w) for w in range(4))
        a(f"s_lshr_b32 s{sT+4}, {pk}, s{sT+5}\ns_and_b32 s{sT+4}, s{sT+4}, 15\ns_lshl_b32 s{sT+4}, s{sT+4}, 10\ns_add_u32 s{sT+4}, s{sT+4}, {EX}\nv_lshl_add_u32 v{vER+q}, v{vL}, 4, s{sT+4}")
    a(f"s_mul_i32 s{sT+4}, s{sP}, {11*S1_SLOT}\nv_lshl_add_u32 v{t0}, v0, 4, s{sT+4}\nv_mov_b32 v{t1}, {OOB}")
    a(f"v_cmp_gt_u32 vcc, 190, v0\nv_cndmask_b32 v{vGA}, v{t1}, v{t0}, vcc")
    a(f"v_mul_u32_u24 v{t0}, 96, v{vI}\nv_lshl_add_u32 v{t0}, v{vG}, 3, v{t0}\nv_add_u32 v{vFR}, {FM}, v{t0}")
    a(f"v_and_b32 v{t0}, 1, v{vI}\nv_mul_u32_u24 v{t0}, 96, v{t0}\nv_lshl_add_u32 v{t0}, v{vG}, 3, v{t0}\nv_add_u32 v{vFD}, {FM+36*96}, v{t0}")
    a(f"s_mul_i32 s{sT+4}, s{sRB}, 12\ns_add_u32 s{sT+4}, s{sT+4}, s{sW}\ns_lshl_b32 s{sT+4}, s{sT+4}, 4")
    a(f"s_lshr_b32 s34, s{sP}, 3\ns_xor_b32 s34, s34, s{sP}\ns_and_b32 s34, s34, 1\ns_lshl_b32 s34, s34, 3\ns_lshr_b32 s35, s{sP}, 1\ns_add_u32 s34, s34, s35")
    a(f"s_add_u32 s34, s34, s{sT+4}\ns_add_u32 s{sT+4}, s{sT+4}, s{sP}")
    a(f"s_lshl_b32 s{sT+5}, s34, 10\ns_add_u32 s{sT+5}, s{sT+5}, {S2_OFF}\nv_lshl_add_u32 v{vS2}, v{vL}, 4, s{sT+5}")
    a(f"s_lshl_b32 s{sT+5}, s{sT+4}, 7\ns_add_u32 s{sT+5}, s{sT+5}, {S2T_OFF}\nv_lshl_add_u32 v{t0}, v{vI}, 3, s{sT+5}")
    a(f"v_cndmask_b32 v{vS2T}, v{t1}, v{t0}, {S(sMG0,2)}")
    a(f"s_lshl_b32 s{sT+4}, s{sRB2}, 2\ns_add_u32 s{sT+4}, s{sT+4}, s{sW}")
    a(f"s_lshl_b32 s{sT+5}, s{sT+4}, 15\ns_add_u32 s{sT+5}, s{sT+5}, {S2_OFF}\nv_lshl_add_u32 v{vOL}, v{vL}, 4, s{sT+5}")
    a(f"s_lshl_b32 s{sT+5}, s{sT+4}, 12\ns_add_u32 s{sT+5}, s{sT+5}, {S2T_OFF}\nv_lshl_add_u32 v{t0}, v{vI}, 3, s{sT+5}\nv_lshl_add_u32 v{vOLT}, v{vG}, 8, v{t0}")
    if 'oldepi' in EXP:
        a(f"s_lshl_b32 s{sT+4}, s{sT+4}, 5\nv_add_u32 v{t0}, s{sT+4}, v{vI}\nv_mul_u32_u24 v{t0}, 2304, v{t0}")
        a(f"v_and_b32 v{t1}, 1, v{vG}\nv_lshl_add_u32 v{t0}, v{t1}, 5, v{t0}\nv_lshrrev_b32 v{t1}, 1, v{vG}\nv_lshl_add_u32 v{t0}, v{t1}, 4, v{t0}")
        a(f"s_lshl_b32 s{sT+4}, s{sCB}, 7\ns_add_u32 s{sT+4}, s{sT+4}, 1152\nv_add_u32 v{vOUT}, s{sT+4}, v{t0}")

    else:
        a(f"s_lshl_b32 s{sT+4}, s{sT+4}, 5\nv_lshrrev_b32 v{t1}, 3, v{vL}\nv_add_u32 v{t0}, s{sT+4}, v{t1}\nv_mul_u32_u24 v{t0}, 2304, v{t0}")
        a(f"v_and_b32 v{t2}, 7, v{vL}\nv_lshl_add_u32 v{t0}, v{t2}, 4, v{t0}\ns_lshl_b32 s{sT+4}, s{sCB}, 7\ns_add_u32 s{sT+4}, s{sT+4}, 1152\nv_add_u32 v{vOUT}, s{sT+4}, v{t0}")
        a(f"s_mul_i32 s{sT+4}, s{sW}, {32*144}\nv_mul_u32_u24 v{t1}, 144, v{t1}\nv_lshl_add_u32 v{t1}, v{t2}, 4, v{t1}\nv_add_u32 v{vBR}, s{sT+4}, v{t1}")
        a(f"v_mul_u32_u24 v{t1}, 144, v{vI}\nv_lshl_add_u32 v{t1}, v{vG}, 3, v{t1}\nv_add_u32 v{vBW}, s{sT+4}, v{t1}")
    a(f"v_mov_b32 v{vDBA}, 0")
    for q in range(4):
        b0, b1 = [0, 9, 1, 8][q], [0, 9, 1, 8][q ^ 1]
        a(f"s_bitcmp1_b32 s{sCB}, 0\ns_cselect_b32 s{sT+4}, {b1}, {b0}\ns_mul_i32 s{sWB+q}, s{sT+4}, {36*1152}")
    a(f"s_add_u32 s6, s4, L_TABB-L_PC\ns_addc_u32 s7, s5, 0\ns_mov_b32 s{sRETRY}, 0")
    a(f"v_mov_b32 v{t2}, 0\nv_mov_b32 v{t3}, 0\nv_mov_b32 v{t4}, 0\nv_mov_b32 v{t5}, 0\nv_lshlrev_b32 v{t0}, 4, v0\nv_add_u32 v{t1}, {FM}, v{t0}")
    a(f"ds_write_b128 v{t1}, {V(t2,4)}\nds_write_b128 v{t1}, {V(t2,4)} offset:4096")
    deferred, a = a.ins, main
    dd, deferred = take(deferred, max(n_crit, N_PRE)); a.ext(dd)
    print("address instructions:", n_crit, len(dd), len(deferred))
    prof(a, 0)
    for x in dx(1) + dk(1):
        a.ext(x)

    def rd_kv(s):
        o = Asm()
        fb = vFB + 20 * (s & 1)
        base = ((s >> 1) % NW) * 16384 + (s & 1) * 2048
        for T in range(5):
            for rd in range(2):
                o(f"ds_read_b64_tr_b16 {V(fb+4*T+2*rd,2)}, v{vRK+T} offset:{base+1024*rd}", tag=f"wr{s}")
        return o.ins

    def rd_x(P):
        o = Asm()
        for h in range(2):
            for tau in range(3):
                o(f"ds_read_b128 {A(xreg(2*P+h,tau),4)}, v{vXR+h} offset:{XR+(P % NX)*24576+tau*2048}", tag=f"xr{P}")
        return o.ins

    def mm_kv(s):
        o = Asm()
        o.wait(f"wr{s}")
        fb = vFB + 20 * (s & 1)
        for T in range(5):
            for tau in range(3):
                d = V(vACC + 4 * (5 * tau + T), 4)
                c = d if s else (V(vEPS, 4) if T < 2 else V(vEPS + 4, 4) if T == 2 else "0" if T == 3 else V(vC4 + 4 * (tau == 2), 4))
                o(f"v_mfma_f32_16x16x32_bf16 {d}, {A(xreg(s,tau),4)}, {V(fb+4*T,4)}, {c}")
        return o

    def rd_q(s):
        o = Asm()
        if s == 16:
            for dl in range(3):
                o(f"v_add_u32 v{vRQ+dl}, v{vQD}, v{vRQ+dl}")
        for dl in range(3):
            for rd in range(2):
                o(f"ds_read_b64_tr_b16 {V(vFQ+12*(s % 3)+4*dl+2*rd,2)}, v{vRQ+dl} offset:{qoff(s, rd)}", tag=f"qr{s}")
        return o.ins if s < 18 else []

    def mm_q(s):
        o = Asm()
        o.wait(f"qr{s}")
        for dl in range(3):
            for tau in range(3):
                d = V(vAQ + 4 * (3 * tau + dl), 4)
                o(f"v_mfma_f32_16x16x32_bf16 {d}, {V(vFQ+12*(s % 3)+4*dl,4)}, {A(xreg(s,tau),4)}, {d if s else V(vEPS,4)}")
        return o.ins
    flat = lambda L: [i for x in L for i in x]
    a.wait("x0", "k0"); prof(a, 36); a("s_barrier")
    rx = rd_x(0)
    a.ext(rx[:3] + rd_kv(0) + rx[3:])
    for P in range(9):
        w = Asm(); w.wait(f"xr{P}")
        if P < RAMP:
            ld = flat(dx(P + 2)) if P + 2 < 9 else []
        elif P == RAMP:
            ld = flat(dx(P + 2) + dk(P + 2)) if P + 2 < 9 else []
        elif P < 6:
            ld = w.ins + flat(dx(P + 3))
        else:
            ld = []
        if P == 7:
            ld += Asm()(f"v_lshlrev_b32 v{t0}, 4, v0\nglobal_load_dwordx4 {V(vTAB,4)}, v{t0}, s[6:7]").ins
        dd = []
        if 1 <= P < 6:
            dd, deferred = take(deferred, -(-len(deferred) // (12 - 2 * P)))
        a.ext(interleave(interleave(interleave(mm_kv(2 * P), dd, per=len(dd) / 14.0), ld, per=max(LDP, len(ld) / (14.0 - LDS_)), start=LDS_), rd_kv(2 * P + 1), per=KVP))
        fill, ld = [], []
        if P < 8:
            a.wait(f"x{P+1}", f"k{P+1}")
        if P >= 6:
            a.wait(f"xr{P}")
        if P == 8:
            a.wait("q3")
        a("s_barrier")
        if P < 8:
            rx = rd_x(P + 1)
            fill = rx[:3] + rd_kv(2 * P + 2) + rx[3:]
        else:
            fill = rd_q(0)
        if P < RAMP:
            ld = flat(dk(P + 2)) if P + 2 < 9 else []
        elif P < 6:
            ld = (w.ins + flat(dx(P + 3)) if P == RAMP else []) + flat(dk(P + 3))
        if P >= 6:
            ld += flat([dq(k) for k in range([0, 4, Q7][P - 6], [4, Q7, Q8][P - 6])])
        if P == 8:
            ld += Asm()(f"buffer_load_dword v{vDBG}, v{vDBA}, s[24:27], 0 offen sc1").ins
        dd = []
        if 1 <= P < 6:
            dd, deferred = take(deferred, -(-len(deferred) // (11 - 2 * P)))
        a.ext(interleave(interleave(interleave(mm_kv(2 * P + 1), dd, per=len(dd) / 14.0), ld, per=max(LDP, len(ld) / (14.0 - LDS_)), start=LDS_), fill, per=KVP * 1.2))
        if P in (0, 2, 4, 6):
            prof(a, 20 + P // 2)
    assert not deferred
    prof(a, 2)
    qstep = lambda s: spread(mm_q(s), rd_q(s + 1))
    fg = a
    bg = qstep(0) + qstep(1) + qstep(2) + mm_q(3)

    def slot(cnt):
        while bg and cnt:
            i = bg.pop(0); fg.ins.append(i)
            cnt -= i.kind == "mfma"
        while bg and bg[0].kind == "ds":
            fg.ins.append(bg.pop(0))
    n = 0
    qrest = [dq(k) for k in range(Q8, 18)]
    for T, tau in [(T, tau) for T in (3, 4, 0, 1, 2) for tau in (0, 1)] + [(T, 2) for T in (3, 4, 0, 1, 2)]:
        src = vACC + 4 * (5 * tau + T)
        pk = (vPK if (n >> 1) & 1 else vPH + 12) + 2 * (n & 1)
        if T >= 3:
            if n > 1:
                slot(1)
            fg(f"v_cvt_pk_bf16_f32 v{pk}, v{src}, v{src+1}\nv_cvt_pk_bf16_f32 v{pk+1}, v{src+2}, v{src+3}")
        else:
            phi4(fg, src, pk, vPH + 4 * (n & 1), keep=T == 2, slot=slot)
        if qrest and n >= 2:
            fg.ext(qrest.pop(0))
        if tau == 1:
            fg(f"ds_write_b128 v{vEW}, {V(pk-2,4)} offset:{1024*T}")
        elif tau == 2:
            fg(f"ds_write_b64 v{vEW2}, {V(pk,2)} offset:{1024*T}")
        n += 1
    a.ext(bg)
    assert not qrest
    a.wait("q7")
    a("s_waitcnt lgkmcnt(0)\ns_barrier")
    prof(a, 3)
    ef = lambda j, q: A(216 + 16 * j + 4 * q, 4) if j < 2 else V(56 + 16 * (j - 2) + 4 * q, 4) if j < 5 else V(156 + 4 * q, 4)
    a.ext(rd_q(4))
    er = Asm()
    for j in range(6):
        for q in range(4):
            er(f"ds_read_b128 {ef(j,q)}, v{vER+q} offset:{5120*j}")
    a.ext(er.ins[:8])
    a.ext(spread(mm_q(4), er.ins[8:]))
    a(f"s_mul_i32 s{sT}, s{sP}, 11\ns_add_u32 s{sT}, s{sT}, s{sRB}\ns_mul_i32 s{sT}, s{sT}, {S1_SLOT}")
    km = Asm()
    for j in range(6):
        for q in range(2):
            d = V(vKD + 4 * q, 4)
            km(f"v_mfma_f32_16x16x32_bf16 {d}, {ef(j,2*q)}, {ef(j,2*q+1)}, {'0' if j == 0 else d}")
    a.ext(spread(km, rd_q(5) + rd_q(6)))
    a(f"v_cmp_gt_u32 vcc, 8, v{vDBG}")
    m5 = mm_q(5)
    a.ext(spread(m5[:5], rd_q(7)))
    a(f"s_cbranch_vccnz L_B_INIT\nL_B_INIT_OK:")
    slow("L_B_INIT:")
    slow(f"buffer_load_dword v{vDBG}, v{vDBA}, s[24:27], 0 offen sc1\ns_add_u32 s{sRETRY}, s{sRETRY}, 1\ns_cmp_gt_u32 s{sRETRY}, 0x8000")
    slow(f"s_waitcnt vmcnt(0)\ns_cbranch_scc1 L_B_INIT_OK\nv_cmp_gt_u32 vcc, 8, v{vDBG}\ns_nop 1\ns_cbranch_vccnz L_B_INIT\ns_branch L_B_INIT_OK")
    st = Asm()
    for q in range(2):
        st(f"buffer_store_dwordx4 {V(vKD+4*q,4)}, v{vTAB+q}, s[20:23], s{sT} offen sc1")
    a.ext(spread(st, m5[5:]))
    a.wait("q17")
    a("s_barrier")
    prof(a, 4)

    def gather():
        o = Asm()
        for r in range(11):
            if r:
                o(f"s_mov_b32 s{sSO}, {r*S1_SLOT}")
            o(f"buffer_load_dwordx4 {V(vGAT+4*r,4)}, v{vGA}, s[20:23], {'s%d' % sSO if r else '0'} offen sc1")
        return o.ins
    ld = []
    for k in range(18):
        ld.append(dquad(16, vDO, "", sWB + (k >> 2), 72 * 1152 * (k & 3), WO, k, f"o{k}") if k < 16 else
                  dquad(16, vDO + 1, "", None, 288 * 1152 * (k - 16), WO, k, f"o{k}"))
    ga = gather()
    for s in range(6, 18):
        ex = []
        if GS <= s < GS + 3:
            ex += ga[:7]; ga = ga[7:]
        else:
            ex += flat(ld[:2]); ld = ld[2:]
        if s == 17:
            ex += Asm()(f"buffer_load_dword v{vDBG}, v{vDBA}, s[24:27], 0 offen offset:64 sc1").ins
        a.ext(spread(spread(mm_q(s), ex), rd_q(s + 2)))
    assert not ld and not ga
    prof(a, 5)
    for tau in range(3):
        for dl in range(3):
            phi4(a, vAQ + 4 * (3 * tau + dl), vPQ + 6 * tau + 2 * dl, 128 + 4 * (dl & 1))
    prof(a, 6)

    def check(o, regs, label):
        r = list(regs)
        o(f"v_max3_u32 v{vCK}, v{r[0]}, v{r[1]}, v{r[2]}")
        r = r[3:]
        while len(r) >= 2:
            o(f"v_max3_u32 v{vCK}, v{r[0]}, v{r[1]}, v{vCK}"); r = r[2:]
        if r:
            o(f"v_max_u32 v{vCK}, v{r[0]}, v{vCK}")
        o(f"v_cmp_eq_u32 vcc, -1, v{vCK}\ns_cbranch_vccnz {label}")

    def slow_path(name, loads, regs):
        slow(f"{name}:")
        slow.ext(loads)
        slow(f"s_add_u32 s{sRETRY}, s{sRETRY}, 1\ns_cmp_gt_u32 s{sRETRY}, 0x8000\ns_waitcnt vmcnt(0)\ns_cbranch_scc1 {name}_OK")
        check(slow, regs, name)
        slow(f"s_branch {name}_OK")
    def gsum(o):
        step = 1
        while step < 11:
            for r in range(0, 11 - step, 2 * step):
                for h in range(2):
                    o(f"v_pk_add_f32 {V(vGAT+4*r+2*h,2)}, {V(vGAT+4*r+2*h,2)}, {V(vGAT+4*(r+step)+2*h,2)}")
            step *= 2
    gsum(a)
    a(f"v_cmp_u_f32 vcc, v{vGAT}, v{vGAT+1}\nv_cmp_u_f32 {S(sT+4,2)}, v{vGAT+2}, v{vGAT+3}\ns_or_b64 vcc, vcc, {S(sT+4,2)}\ns_cbranch_vccnz L_B_GA\nL_B_GA_OK:")
    slow("L_B_GA:")
    slow.ext(gather())
    slow(f"s_add_u32 s{sRETRY}, s{sRETRY}, 1\ns_cmp_gt_u32 s{sRETRY}, 0x8000\ns_waitcnt vmcnt(0)\ns_cbranch_scc1 L_B_GA_OK")
    check(slow, range(vGAT, vGAT + 44), "L_B_GA")
    gsum(slow)
    slow("s_branch L_B_GA_OK")
    a(f"v_bfe_i32 v{t0}, v{vTAB+3}, 0, 1\nv_bfe_i32 v{t1}, v{vTAB+3}, 1, 1")
    a(f"v_cvt_pk_bf16_f32 v{t2}, v{vGAT}, v{vGAT+1}\nv_cvt_pk_bf16_f32 v{t3}, v{vGAT+2}, v{vGAT+3}")
    a(f"v_and_b32 v{t2}, v{t2}, v{t0}\nv_and_b32 v{t3}, v{t3}, v{t1}\nds_write_b64 v{vTAB+2}, {V(t2,2)}")
    a.wait("o17")
    a("s_waitcnt lgkmcnt(0)\ns_barrier")
    prof(a, 7)
    for h in range(2):
        a(f"ds_read_b64 {V(vFA+12+2*h,2)}, v{vFD} offset:{32*h}")
    a(f"ds_read_b64 {V(vFA+20,2)}, v{vFD} offset:64")
    for ep in range(3):
        for h in range(2):
            a(f"ds_read_b64 {V(vFA+4*ep+2*h,2)}, v{vFR} offset:{1536*ep+32*h}")
        if ep:
            a(f"ds_read_b64 {V(vFA+14+2*ep,2)}, v{vFR} offset:{1536*ep+64}")
    om_ = []
    for tau in range(3):
        o = Asm()
        b1, b2 = V(vPQ + 6 * tau, 4), V(vPQ + 6 * tau + 4, 2)
        for ep in (3, 0, 1, 2):
            d = V(vON + 16 * tau + 4 * ep, 4)
            o(f"v_mfma_f32_16x16x32_bf16 {d}, {V(vFA+4*ep,4)}, {b1}, {V(vEPS,4) if ep == 3 else '0'}")
        for ep in (3, 1, 2):
            d = V(vON + 16 * tau + 4 * ep, 4)
            o(f"v_mfma_f32_16x16x16_bf16 {d}, {V(vFA+14+2*ep,2)}, {b2}, {d}")
        om_.append(o.ins)
    su = Asm()
    for q in range(4):
        su(f"s_and_b32 s{sT+4}, s{sCB}, 1\ns_xor_b32 s{sT+4}, s{sT+4}, {q}\ns_lshl_b32 s{sOB+q}, s{sT+4}, 12\ns_add_u32 s{sWB+q}, s{sOB+q}, 16384")
    a.ext(spread(om_[0] + om_[1][:4], su.ins))
    a(f"v_cmp_gt_u32 vcc, 8, v{vDBG}\ns_cbranch_vccnz L_B_INI2\nL_B_INI2_OK:")
    slow("L_B_INI2:")
    slow(f"buffer_load_dword v{vDBG}, v{vDBA}, s[24:27], 0 offen offset:64 sc1\ns_add_u32 s{sRETRY}, s{sRETRY}, 1\ns_cmp_gt_u32 s{sRETRY}, 0x8000")
    slow(f"s_waitcnt vmcnt(0)\ns_cbranch_scc1 L_B_INI2_OK\nv_cmp_gt_u32 vcc, 8, v{vDBG}\ns_nop 1\ns_cbranch_vccnz L_B_INI2\ns_branch L_B_INI2_OK")
    for tau in range(3):
        n0 = vON + 16 * tau; of = vOF + 6 * tau; r = vR
        o = Asm()
        o(f"v_rcp_f32 v{r}, v{n0+12}\nv_rcp_f32 v{r+1}, v{n0+13}")
        if tau == 2:
            o(f"s_cmp_lt_u32 s{sRB}, 10\ns_cselect_b32 s{sT}, {2*65536}, {OOB}\ns_cselect_b32 s{sT+1}, {2*8192}, {OOB}") if False else None
            o(f"s_cmp_lt_u32 s{sRB}, 10\ns_cselect_b32 s{sT}, 0, {OOB}\ns_add_u32 s{sT+1}, s{sT}, {2*8192}\ns_add_u32 s{sT}, s{sT}, {2*65536}")
        else:
            o(f"s_mov_b32 s{sT}, {65536*tau}\ns_mov_b32 s{sT+1}, {8192*tau}")
        o(f"v_cndmask_b32 v{r+2}, v{r+1}, v{r}, {S(sMG0,2)}")
        if tau == 0:
            for q in range(12):
                o(f"v_mul_f32 v{n0+q}, v{r + (0 if q < 4 else 2 if q < 6 else 1)}, v{n0+q}")
        else:
            o(f"v_pk_mul_f32 {V(n0,2)}, {V(n0,2)}, {V(r,2)} op_sel_hi:[1,0]\nv_pk_mul_f32 {V(n0+2,2)}, {V(n0+2,2)}, {V(r,2)} op_sel_hi:[1,0]")
            o(f"v_pk_mul_f32 {V(n0+4,2)}, {V(n0+4,2)}, {V(r+2,2)} op_sel_hi:[1,0]")
            for q in (6, 8, 10):
                o(f"v_pk_mul_f32 {V(n0+q,2)}, {V(n0+q,2)}, {V(r,2)} op_sel:[0,1] op_sel_hi:[1,1]")
        for q in range(6):
            o(f"v_cvt_pk_bf16_f32 v{of+q}, v{n0+2*q}, v{n0+2*q+1}")
        o(f"buffer_store_dwordx4 {V(of,4)}, v{vS2}, s[20:23], s{sT} offen sc1")
        o(f"buffer_store_dwordx2 {V(of+4,2)}, v{vS2T}, s[20:23], s{sT+1} offen sc1")
        a.ext(spread(o, om_[1][4:] + om_[2]) if tau == 0 else o.ins)
    if prof.on:
        a(f"s_cmp_eq_u32 s{sG2}, 0\ns_cbranch_scc1 L_B_EXIT")
        pv = prof.prev
        slow("L_B_EXIT:"); prof(slow, 8, final=True); slow("s_endpgm")
        prof.prev = pv
    else:
        a(f"s_cmp_eq_u32 s{sG2}, 0\ns_cbranch_scc1 L_END")
    prof(a, 8)

    def wreg(k, T, n=4, o=0):
        return A(16 * k + 4 * T + o, n) if k < 16 else V(vWV + 16 * (k - 16) + 4 * T + o, n)
    om = lambda k, rt: vOM + 4 * (2 * k + rt)

    def oloads(ks):
        o = Asm()
        cur = None
        for k in ks:
            for rt in range(2):
                if k < 16:
                    o(f"buffer_load_dwordx4 {V(om(k,rt),4)}, v{vOL}, s[20:23], s{(sWB if rt else sOB) + (k >> 2)} offen offset:{1024*(k & 3)} sc1")
                else:
                    for hf in range(2):
                        o(f"buffer_load_dwordx2 {V(om(k,rt)+2*hf,2)}, v{vOLT}, s[20:23], 0 offen offset:{2048*rt+1024*(k-16)+128*hf} sc1")
        return o.ins
    def rd_o(ks):
        rd = Asm()
        for k in ks:
            if k == 16:
                for T in range(4):
                    rd(f"v_add_u32 v{vRO+T}, v{vQD}, v{vRO+T}")
            for T in range(4):
                for h in range(2):
                    rd(f"ds_read_b64_tr_b16 {wreg(k,T,2,2*h)}, v{vRO+T} offset:{qoff(k, h)}")
        return rd.ins
    rd = rd_o(range(RD0))
    late = rd_o(range(RD0, 18))
    groups = [list(range(4 * q, 4 * q + 4)) for q in range(4)] + [[16, 17]]
    gregs = lambda ks: [om(k, rt) + i for k in ks for rt in range(2) for i in range(4)]
    z = Asm()
    vCN = 10
    z(f"v_and_b32 v{vCK}, 63, v0\nv_lshlrev_b32 v{vCN}, 4, v{vCK}\nv_sub_u32 v{vCN}, v{vOL}, v{vCN}\nv_and_b32 v{vCN+1}, 1, v{vCK}\nv_lshl_add_u32 v{vCN}, v{vCN+1}, 14, v{vCN}")
    z(f"v_bfe_u32 v{vCN+1}, v{vCK}, 1, 2\nv_lshl_add_u32 v{vCN}, v{vCN+1}, 10, v{vCN}\nv_add_u32 v{vCN}, 1020, v{vCN}")
    z(f"v_readfirstlane_b32 s{sT+1}, v{vOLT}\nv_and_b32 v{vCN+1}, 31, v{vCK}\nv_lshlrev_b32 v{vCN+1}, 7, v{vCN+1}\nv_add_u32 v{vCN+1}, s{sT+1}, v{vCN+1}\nv_add_u32 v{vCN+1}, 124, v{vCN+1}")
    for i in range(32):
        z(f"v_mov_b32 v{vA2+i}, 0")
    isds = lambda i: i.kind == "ds"
    a.ext(interleave(interleave(rd, z, per=1, start=8 * RD0 - 48, pred=isds), oloads(groups[0] + groups[1]), per=OL_PER, start=OL_START, pred=isds))
    prof(a, 9)

    def mm_o(ks):
        o = Asm()
        for k in ks:
            for rt in range(2):
                for T in range(4):
                    d = V(vA2 + 4 * (4 * rt + T), 4)
                    o(f"v_mfma_f32_16x16x32_bf16 {d}, {wreg(k,T)}, {V(om(k,rt),4)}, {d}")
        return o

    def epilogue(rt):
        o = Asm()
        for T in range(4):
            n0 = vA2 + 4 * (4 * rt + T); p0 = vOM + 2 * (4 * rt + T)
            o(f"v_cvt_pk_bf16_f32 v{p0}, v{n0}, v{n0+1}\nv_cvt_pk_bf16_f32 v{p0+1}, v{n0+2}, v{n0+3}")
            o(f"ds_write_b64 v{vBW}, {V(p0,2)} offset:{16*144*rt+32*T}")
        for q in (2 * rt, 2 * rt + 1):
            o(f"ds_read_b128 {V(vOM+16+4*q,4)}, v{vBR} offset:{8*144*q}")
        for q in (2 * rt, 2 * rt + 1):
            if q:
                o(f"s_mov_b32 s{sT}, {8*2304*q}")
            o(f"buffer_store_dwordx4 {V(vOM+16+4*q,4)}, v{vOUT}, s[28:31], {'s%d' % sT if q else '0'} offen {OUT_FLAGS}")
        return o
    if 'oldepi' in EXP:
        def epilogue(rt):
            o = Asm()
            for u in range(2):
                p0 = vOM + 4 * (2 * rt + u)
                for h in range(2):
                    n0 = vA2 + 4 * (4 * rt + 2 * u + h)
                    o(f"v_cvt_pk_bf16_f32 v{p0+2*h}, v{n0}, v{n0+1}\nv_cvt_pk_bf16_f32 v{p0+2*h+1}, v{n0+2}, v{n0+3}")
                o(f"v_permlane16_swap_b32 v{p0}, v{p0+2}\nv_permlane16_swap_b32 v{p0+1}, v{p0+3}")
                o(f"buffer_store_dwordx4 {V(p0,4)}, v{vOUT}, s[28:31], {'s%d' % sT if rt else '0'} offen offset:{64*u} {OUT_FLAGS}")
            return o

    sPEND, sFORCE, sREADY = 83, 84, 85
    a(f"s_mov_b32 s{sT}, {16*2304}")
    taken = 0
    check(a, gregs(groups[0]), "L_B_R0")
    a("L_B_R0_OK:")
    for gi, ks in enumerate(groups):
        m = mm_o(ks).ins
        if gi < 4:
            c = Asm(); check(c, gregs(groups[gi + 1]), f"L_B_R{gi+1}")
            if gi + 2 < 5:
                m = interleave(m, oloads(groups[gi + 2]), per=0.3)
            need = max(0, 8 * (min(18, 4 * gi + 12) - RD0) + (4 if 4 * gi + 12 > 16 else 0) - taken)
            m = interleave(m, late[taken:taken + need], per=need / 30.0); taken += need
            a.ext(interleave(m, c.ins[:-1], per=1, start=32 - len(c.ins)))
            a.ext(c.ins[-1:])
            a(f"L_B_R{gi+1}_OK:")
        else:
            m0 = [i for n, i in enumerate(m) if (n >> 2) & 1 == 0]; m1 = [i for n, i in enumerate(m) if (n >> 2) & 1]
            a.ext(m0 + m1[:3])
            a.ext(spread(epilogue(0), m1[3:]))
            a.ext(epilogue(1))
        prof(a, 10 + gi)
    pv = prof.prev
    prof(a, 16, final=True)
    a("s_endpgm")
    dyn = Asm()
    for gi, ks in enumerate(groups):
        dyn(f"L_B_R{gi}:")
        if 'nocanary' not in EXP:
            if gi < 4:
                dyn(f"buffer_load_dword v{vCK}, v{vCN}, s[20:23], s{sOB+gi} offen sc1")
            else:
                dyn(f"buffer_load_dword v{vCK}, v{vCN+1}, s[20:23], 0 offen sc1")
            dyn(f"s_add_u32 s{sRETRY}, s{sRETRY}, 1\ns_cmp_gt_u32 s{sRETRY}, 0x8000\ns_waitcnt vmcnt(0)\ns_cbranch_scc1 L_B_R{gi}_OK")
            dyn(f"v_cmp_eq_u32 vcc, -1, v{vCK}\ns_cbranch_vccnz L_B_R{gi}")
        dyn.ext(oloads(ks + (groups[gi + 1] if gi < 4 and 'norefresh' not in EXP else [])))
        dyn(f"s_add_u32 s{sRETRY}, s{sRETRY}, 1\ns_cmp_gt_u32 s{sRETRY}, 0x8000\ns_waitcnt vmcnt({(8 if gi < 4 and 'norefresh' not in EXP else 0)})\ns_cbranch_scc1 L_B_R{gi}_OK")
        check(dyn, gregs(ks), f"L_B_R{gi}")
        dyn(f"s_waitcnt vmcnt(0)\ns_branch L_B_R{gi}_OK")
    return finish(a) + finish(slow) + finish(dyn)
```
